```python
import torch

def _softmax(x, axis=-1):
    return torch.softmax(x, dim=axis)
def _gelu(x):
    return torch.nn.functional.gelu(x, approximate="tanh")
def _silu(x):
    return torch.nn.functional.silu(x)
def _sigmoid(x):
    return torch.sigmoid(x)
def _layernorm(x, axis=-1, eps=1e-5):
    m = x.mean(dim=axis, keepdim=True)
    v = x.var(dim=axis, keepdim=True, unbiased=False)
    return (x - m) / torch.sqrt(v + eps)
def _scatter_add(tgt, idx, src, axis=0):
    return tgt.clone().index_add_(axis, idx, src)
def _segment_sum(src, seg, n):
    out = torch.zeros((n,) + src.shape[1:], dtype=src.dtype)
    return out.index_add_(0, seg, src)
def _pad(x, pw):
    flat = tuple(v for pair in reversed(pw) for v in pair)
    return torch.nn.functional.pad(x, flat)

kernel_name = 'gated_mix__linear_attn_block__ssm_conv_s4d__prompt'

def setup_inputs():

    _w = (lambda a: (lambda t: t.to(torch.bfloat16) if t.is_floating_point() else t)(torch.as_tensor(a)))
    def _A_setup():
        B, S, D = 1, 2048, 640
        return {
            "x": _w((lambda *s: torch.randn(*s, dtype=torch.bfloat16) * 0.05)(B, S, D)),
            "wqkv": _w((lambda *s: torch.randn(*s, dtype=torch.bfloat16) * 0.8)(D, 3 * D)),
            "wo": _w((lambda *s: torch.randn(*s, dtype=torch.bfloat16) * 0.05)(D, D)),
        }
    _A_in = _A_setup()

    def _B_setup():
        Bsz, L, D, N = 1, 2048, 640, 128
        return {
            "u": _w((lambda *s: torch.randn(*s, dtype=torch.bfloat16) * 0.05)(Bsz, L, D)),
            "log_A_real": _w((lambda *s: torch.randn(*s, dtype=torch.bfloat16) * 6.4)(D, N) * 0.5),
            "A_imag": _w((lambda *s: torch.randn(*s, dtype=torch.bfloat16) * 0.1)(D, N) * 3.14),
            "C_real": _w((lambda *s: torch.randn(*s, dtype=torch.bfloat16) * 0.2)(D, N) / N ** 0.5),
            "C_imag": _w((lambda *s: torch.randn(*s, dtype=torch.bfloat16) * 0.2)(D, N) / N ** 0.5),
            "log_dt": _w((lambda *s: torch.randn(*s, dtype=torch.bfloat16) * 0.1)(D) * 0.5 - 4.0),
            "D_skip": _w((lambda *s: torch.randn(*s, dtype=torch.bfloat16) * 0.1)(D)),
        }
    _B_in = _B_setup()

    return {
        "A_x": _A_in["x"],
        "A_wqkv": _A_in["wqkv"],
        "A_wo": _A_in["wo"],
        "B_u": _B_in["u"],
        "B_log_A_real": _B_in["log_A_real"],
        "B_A_imag": _B_in["A_imag"],
        "B_C_real": _B_in["C_real"],
        "B_C_imag": _B_in["C_imag"],
        "B_log_dt": _B_in["log_dt"],
        "B_D_skip": _B_in["D_skip"],
        "gate_w": _w((lambda *s: torch.randn(*s, dtype=torch.bfloat16) * 0.05)(640) * 16.0),
    }

def reference(A_x, A_wqkv, A_wo, B_u, B_log_A_real, B_A_imag, B_C_real, B_C_imag, B_log_dt, B_D_skip, gate_w):
    def _A_ref(x, wqkv, wo):
        B, S, D = x.shape
        H = 32; Dh = D // H
        qkv = (lambda x, *d: x.permute(*d))((x @ wqkv).reshape(B, S, 3, H, Dh), 2, 0, 3, 1, 4)
        q, k, v = qkv[0], qkv[1], qkv[2]
        phi = lambda t: torch.where(t > 0, t + 1, torch.exp(t)) + 1e-6
        pq, pk = phi(q), phi(k)
        kv = torch.einsum("bhsd,bhse->bhde", pk, v)
        z = torch.einsum("bhsd->bhd", pk)
        num = torch.einsum("bhqd,bhde->bhqe", pq, kv)
        den = torch.einsum("bhqd,bhd->bhq", pq, z)[..., None] + 1e-6
        o = num / den
        return (lambda x, *d: x.permute(*d))(o, 0, 2, 1, 3).reshape(B, S, D) @ wo

    def _B_ref(u, log_A_real, A_imag, C_real, C_imag, log_dt, D_skip):
        L = u.shape[1]
        dt = torch.exp(log_dt)
        A = -torch.exp(log_A_real) + 1j * A_imag
        C = (C_real + 1j * C_imag) * dt[:, None]
        pos = (lambda x, dt: x.to(dt))(torch.arange(L), log_dt.dtype)
        P = torch.exp((A * dt[:, None])[:, :, None] * pos[None, None, :])
        K = 2.0 * torch.einsum("dn,dnl->dl", C, P).real
        L2 = 2 * L
        u_t = (lambda x, *d: x.permute(*d))(u, 0, 2, 1)
        Kf = (lambda x, *a, **k: torch.fft.rfft(x.float(), *a, **k))(K, L2)
        Uf = (lambda x, *a, **k: torch.fft.rfft(x.float(), *a, **k))(u_t, L2)
        y = (lambda x, *a, **k: torch.fft.irfft(x, *a, **k).to(torch.bfloat16))(Uf * Kf[None, :, :], L2)[:, :, :L]
        y = (lambda x, *d: x.permute(*d))(y, 0, 2, 1)
        return y + u * D_skip[None, None, :]

    x = A_x
    g = _sigmoid((x * gate_w).sum(-1, keepdims=True))
    a = _A_ref(x, A_wqkv, A_wo)
    b = _B_ref(x, B_log_A_real, B_A_imag, B_C_real, B_C_imag, B_log_dt, B_D_skip)
    return g * a + (1 - g) * b
```

```python
from gen import Asm

WS_BT   = 0x000000
WS_O    = 0x280000
WS_PART = 0x500000
WS_G    = 0x600000
WS_DBG  = 0x700000
WS_SIZE = 0x800000

class Q:
    def __init__(self, a, name, cap):
        self.a, self.name, self.cap, self.q = a, name, cap, []
    def push(self, tag=None):
        self.q.append(tag)
    def wait(self, *tags):
        idx = max((i for i, t in enumerate(self.q) if t in tags), default=-1)
        if idx < 0: return
        n = len(self.q) - 1 - idx
        if n > self.cap: n = self.cap
        self.a(f"s_waitcnt {self.name}({n})")
        self.q = self.q[len(self.q) - n:] if n else []
    def drain(self):
        if self.q: self.a(f"s_waitcnt {self.name}(0)")
        self.q = []

def vr(b, n=1):
    return f"v{b}" if n == 1 else f"v[{b}:{b+n-1}]"

def srd(a, d, base, nbytes):
    a(f"s_mov_b32 s{d}, s{base}\ns_mov_b32 s{d+1}, s{base+1}\ns_mov_b32 s{d+2}, {nbytes}\ns_mov_b32 s{d+3}, 0x20000")

def mfma16(a, d, x, y, c=None):
    a(f"v_mfma_f32_16x16x32_bf16 {vr(d,4)}, {vr(x,4)}, {vr(y,4)}, {vr(c,4) if c is not None else '0'}")

def mfma32(a, d, x, y, c=None):
    a(f"v_mfma_f32_32x32x16_bf16 {vr(d,16)}, {vr(x,4)}, {vr(y,4)}, {vr(c,16) if c is not None else '0'}")

def stamp(a, on, idx):
    if on:
        a(f"s_memtime s[68:69]\ns_waitcnt lgkmcnt(0)\ns_mov_b32 s{70+idx}, s68")

def stamp_out(a, on, n, slot_sgpr):
    if not on: return
    a("s_memrealtime s[68:69]\ns_waitcnt lgkmcnt(0)")
    a(f"s_lshl_b32 s67, s{slot_sgpr}, 6\ns_add_u32 s67, s67, {WS_DBG}\ns_mov_b64 exec, 1\nv_mov_b32 v2, s67")
    for i in range(n):
        a(f"v_mov_b32 v3, s{70+i}\nbuffer_store_dword v3, v2, s[40:43], 0 offen offset:{4*i}")
    a("v_mov_b32 v3, s66\nbuffer_store_dword v3, v2, s[40:43], 0 offen offset:56")
    a("v_mov_b32 v3, s68\nbuffer_store_dword v3, v2, s[40:43], 0 offen offset:60")
    a("s_waitcnt vmcnt(0)")
```

```python
from common import *

SLOT = 36880
WK, WV = 16384, 16384 + 10240 + 16
QB = 3 * SLOT
SYNC = QB + 51200
KV32 = 0
KVT = 16384
PSTR = 4096
LOG2E = "0x3fb8aa3b"
EPS = "0x358637bd"

def qloc(s):
    return QB + s * 10240 if s < 5 else (SLOT + (s - 5) * 10240 if s < 8 else 2 * SLOT + (s - 8) * 10240)

def phi(a, regs, tmp):
    n = len(regs)
    for i, r in enumerate(regs): a(f"v_mul_f32 v{tmp+i}, s60, v{r}")
    for i, r in enumerate(regs): a(f"v_exp_f32 v{tmp+i}, v{tmp+i} clamp\nv_max_f32 v{r}, s61, v{r}")
    for i, r in enumerate(regs): a(f"v_add_f32 v{r}, v{r}, v{tmp+i}")

def gemm_role(a, prof=False, ost=""):
    a(f"""
    s_and_b32 s3, s2, 7
    s_lshr_b32 s54, s2, 3
    s_and_b32 s50, s3, 3
    s_lshl_b32 s50, s50, 2
    s_and_b32 s55, s54, 3
    s_add_u32 s50, s50, s55
    s_lshr_b32 s52, s3, 2
    s_lshl_b32 s52, s52, 2
    s_lshr_b32 s54, s54, 2
    s_add_u32 s52, s52, s54
    s_add_u32 s53, s54, s55
    s_and_b32 s53, s53, 3
    s_mul_i32 s53, s53, 5
    s_lshr_b32 s53, s53, 1
    s_mov_b32 s60, {LOG2E}
    s_mov_b32 s61, {EPS}
    s_cmp_lt_u32 s51, 4
    s_cbranch_scc1 G_kv
    """)
    q_waves(a, prof, ost)
    a("s_endpgm\nG_kv:")
    kv_waves(a, prof)

def lane_addrs(a):
    a("""
    v_and_b32 v5, 15, v1
    v_lshrrev_b32 v6, 4, v1
    v_and_b32 v7, 3, v1
    v_lshrrev_b32 v2, 1, v5
    v_xor_b32 v2, v2, v6
    v_lshlrev_b32 v2, 4, v2
    v_lshl_add_u32 v2, v5, 7, v2
    v_bfe_u32 v3, v1, 2, 3
    v_lshrrev_b32 v4, 5, v1
    v_lshl_add_u32 v3, v4, 4, v3
    v_mul_u32_u24 v3, 160, v3
    """)

def q_waves(a, prof, ost):
    vm = Q(a, "vmcnt", 63); lg = Q(a, "lgkmcnt", 15)
    XO, WO, XS, ACC, WB = 8, 12, 20, 180, 220
    srd(a, 36, 6, 2457600)
    a(f"""
    s_sub_u32 s51, s51, 4
    s_lshl_b32 s54, s50, 2
    s_add_u32 s54, s54, s51
    s_mul_i32 s54, s54, {32*1280}
    v_lshrrev_b32 v2, 3, v1
    v_mul_u32_u24 v2, 1280, v2
    v_lshrrev_b32 v3, 4, v1
    v_and_b32 v4, 7, v1
    v_xor_b32 v3, v3, v4
    v_lshl_add_u32 v2, v3, 4, v2
    v_add_u32 v{XO}, s54, v2
    v_xor_b32 v2, 64, v2
    s_add_u32 s54, s54, {8*1280}
    v_add_u32 v{XO+1}, s54, v2
    v_add_u32 v{XO+2}, {16*1280}, v{XO}
    v_add_u32 v{XO+3}, {16*1280}, v{XO+1}
    s_lshl_b32 s44, s51, 12
    s_lshl_b32 s46, s53, 7
    """)
    def ldx(slot):
        for i in range(4):
            a(f"s_add_u32 m0, s44, {slot*SLOT + i*1024}\ns_nop 0\nbuffer_load_dwordx4 v{XO+i}, s[32:35], s46 offen lds")
    ldx(0)
    a(f"""
    s_and_b32 s54, s51, 1
    s_lshr_b32 s55, s51, 1
    s_mul_i32 s56, s54, {32*3840}
    s_mul_i32 s57, s52, 160
    s_add_u32 s56, s56, s57
    s_mul_i32 s45, s54, 5120
    s_mul_i32 s57, s55, {WV-WK}
    s_add_u32 s48, s45, s57
    s_add_u32 s48, s48, {WK}
    s_mul_i32 s49, s55, 1280
    s_add_u32 s49, s49, 1280
    s_mul_i32 s47, s53, {64*3840}
    s_add_u32 s47, s47, s49
    """)
    for i in range(5):
        a(f"""
        v_add_u32 v2, {64*i}, v1
        v_mul_u32_u24 v3, 6554, v2
        v_lshrrev_b32 v3, 16, v3
        v_mul_u32_u24 v4, 10, v3
        v_sub_u32 v2, v2, v4
        v_lshrrev_b32 v4, 1, v3
        v_xor_b32 v4, v4, v3
        v_and_b32 v4, 4, v4
        v_mul_u32_u24 v4, 3, v4
        v_xor_b32 v3, v3, v4
        v_mul_u32_u24 v3, 3840, v3
        v_lshl_add_u32 v2, v2, 4, v3
        v_add_u32 v{WO+i}, s56, v2
        s_add_u32 m0, s48, {i*1024}
        s_nop 0
        buffer_load_dwordx4 v{WO+i}, s[36:39], s47 offen lds
        """)
    def adv():
        a(f"""
        s_add_u32 s46, s46, 128
        s_add_u32 s47, s47, {64*3840}
        s_cmp_eq_u32 s46, 1280
        s_cselect_b32 s46, 0, s46
        s_cselect_b32 s47, s49, s47
        """)
    def stage(s):
        adv(); ldx(s % 3)
        for i in range(5):
            a(f"s_add_u32 m0, s48, {(s%3)*SLOT + i*1024}\ns_nop 0\nbuffer_load_dwordx4 v{WO+i}, s[36:39], s47 offen lds")
        for i in range(9): vm.push(("S", s))
    def qpair(n):
        a(f"""
        s_add_u32 s57, s53, s55
        s_add_u32 s57, s57, {2*n}
        s_cmp_ge_u32 s57, 10
        s_cselect_b32 s58, 10, 0
        s_sub_u32 s57, s57, s58
        s_mul_i32 s57, s57, {64*3840}
        s_cmp_eq_u32 s55, 0
        s_mov_b32 s58, {qloc(2*n+1)}
        s_cselect_b32 s58, {qloc(2*n)}, s58
        s_add_u32 s58, s58, s45
        """)
        for i in range(5):
            a(f"s_add_u32 m0, s58, {i*1024}\ns_nop 0\nbuffer_load_dwordx4 v{WO+i}, s[36:39], s57 offen lds")
            vm.push(("Q", n))
    for i in range(9): vm.push(("S", 0))
    stage(1); stage(2)
    lane_addrs(a)
    a(f"""
    v_add_u32 v2, s44, v2
    v_xor_b32 v4, 64, v2
    v_add_u32 v18, {2*SLOT}, v2
    v_add_u32 v19, {2*SLOT}, v4
    v_mul_u32_u24 v17, 40, v7
    v_add3_u32 v17, v17, v3, 32
    v_lshl_add_u32 v3, v7, 3, v3
    """)
    stamp(a, prof, 1)
    for s in range(10):
        vm.wait(("S", s))
        a("s_waitcnt lgkmcnt(0)\ns_barrier")
        if s == 0: stamp(a, prof, 2)
        if 1 <= s <= 7: stage(s + 2)
        if s == 7: qpair(0); qpair(1)
        if s == 8: qpair(2); qpair(3)
        if s == 9: qpair(4)
        for ks in range(2):
            for i in range(2):
                ad = (2, 4)[ks] if s % 3 < 2 else (18, 19)[ks]
                a(f"ds_read_b128 {vr(XS+16*s+8*ks+4*i,4)}, v{ad} offset:{(s%3%2)*SLOT + i*2048}")
    vm.wait(("Q", 1))
    a("s_waitcnt lgkmcnt(0)\ns_barrier")
    stamp(a, prof, 3)
    NB = 7
    seq = [(s, ks, t) for s in range(10) for ks in range(2) for t in range(5)]
    def rd(n):
        s, ks, t = seq[n]
        if ks == 0 and t == 0:
            if s == 4:
                vm.drain(); a("s_barrier")
            a(f"v_add_u32 v{8+2*(s&1)}, {qloc(s)}, v3\nv_add_u32 v{9+2*(s&1)}, {qloc(s)}, v17")
        ad = 8 + 2 * (s & 1) + (1 if t == 4 else 0)
        o = ks * 5120 + (40 * t if t < 4 else 0)
        d = WB + 4 * (n % NB)
        a(f"ds_read_b64_tr_b16 {vr(d,2)}, v{ad} offset:{o}\nds_read_b64_tr_b16 {vr(d+2,2)}, v{ad} offset:{o+1280}")
        lg.push(None); lg.push(n)
    for n in range(NB - 1): rd(n)
    for n, (s, ks, t) in enumerate(seq):
        lg.wait(n)
        for i in range(2):
            d = ACC + 20 * i + 4 * t
            mfma16(a, d, WB + 4 * (n % NB), XS + 16 * s + 8 * ks + 4 * i, None if n < 5 else d)
        if n + NB - 1 < len(seq): rd(n + NB - 1)
    stamp(a, prof, 4)
    BQ, AF, D0, TMP = 20, 52, 84, 148
    a(f"""
    v_mul_u32_u24 v9, 40, v5
    v_add_u32 v9, {KVT}, v9
    v_lshl_add_u32 v8, v6, 3, v9
    v_lshrrev_b32 v11, 2, v5
    v_cmp_eq_u32 vcc, 0, v7
    v_mov_b32 v12, 4
    v_cmp_eq_u32 s[44:45], 0, v6
    v_cndmask_b32 v11, v12, v11, vcc
    v_cmp_eq_u32 s[46:47], 1, v6
    v_mul_u32_u24 v11, 40, v11
    v_cmp_eq_u32 s[48:49], 2, v6
    v_add_u32 v11, {KVT+640}, v11
    v_cmp_eq_u32 s[56:57], 3, v6
    v_lshl_add_u32 v10, v6, 3, v11
    v_lshlrev_b32 v12, 4, v1
    v_lshlrev_b32 v13, 3, v1
    s_lshl_b32 s54, s50, 3
    s_lshl_b32 s55, s51, 1
    s_add_u32 s54, s54, s55
    s_lshl_b32 s54, s54, 3
    s_add_u32 s54, s54, s52
    s_mul_i32 s54, s54, 2560
    s_add_u32 s54, s54, {WS_O}
    s_add_u32 s55, s54, {8*2560}
    """)
    msk = ["s[44:45]", "s[46:47]", "s[48:49]", "s[56:57]"]
    for i in range(2):
        phi(a, list(range(ACC + 20 * i, ACC + 20 * i + 20)), TMP)
        t4 = ACC + 20 * i + 16
        a(f"v_cvt_pk_bf16_f32 v14, v{t4}, v{t4+1}\nv_cvt_pk_bf16_f32 v15, v{t4+2}, v{t4+3}")
        for h in range(4):
            b, s = BQ + 16 * i + 4 * h, ACC + 20 * i + 4 * h
            a(f"v_cvt_pk_bf16_f32 v{b}, v{s}, v{s+1}\nv_cvt_pk_bf16_f32 v{b+1}, v{s+2}, v{s+3}")
            a(f"v_cndmask_b32 v{b+2}, 0, v14, {msk[h]}\nv_cndmask_b32 v{b+3}, 0, v15, {msk[h]}")
    stamp(a, prof, 5)
    a("s_barrier")
    stamp(a, prof, 6)
    for h in range(4):
        f = AF + 8 * h
        a(f"""
        ds_read_b64 {vr(f+4,2)}, v10 offset:{840*h}
        ds_read_b64 {vr(f+6,2)}, v11 offset:{840*h+32}
        ds_read_b64 {vr(f,2)}, v8 offset:{840*h}
        ds_read_b64 {vr(f+2,2)}, v9 offset:{840*h+32}
        """)
    for h in range(4):
        a(f"s_waitcnt lgkmcnt({12-4*h})")
        for i in range(2): mfma16(a, D0 + 32*i + 8*h + 4, AF + 8*h + 4, BQ + 16*i + 4*h)
        for i in range(2): mfma16(a, D0 + 32*i + 8*h, AF + 8*h, BQ + 16*i + 4*h)
    a("s_nop 1")
    for i in range(2):
        for h in range(4):
            d = D0 + 32*i + 8*h
            a(f"v_add_f32 v{d+5}, s61, v{d+5}")
        for h in range(4):
            d = D0 + 32*i + 8*h
            a(f"v_rcp_f32 v{d+5}, v{d+5}")
        o = TMP + 12 * i
        for h in range(4):
            d = D0 + 32*i + 8*h
            for r in range(5): a(f"v_mul_f32 v{d+r}, v{d+r}, v{d+5}")
            a(f"v_cvt_pk_bf16_f32 v{o+2*h}, v{d}, v{d+1}\nv_cvt_pk_bf16_f32 v{o+2*h+1}, v{d+2}, v{d+3}")
            if h & 1:
                a(f"v_cvt_pk_bf16_f32 v{o+8+(h>>1)}, v{d-8+4}, v{d+4}")
                a(f"buffer_store_dwordx4 {vr(o+2*h-2,4)}, v12, s[40:43], s{54+i} offen offset:{(h>>1)*1024} {ost}")
        a(f"buffer_store_dwordx2 {vr(o+8,2)}, v13, s[40:43], s{54+i} offen offset:2048 {ost}")
    stamp(a, prof, 7)
    stamp_out(a, prof, 8, 65)

def kv_waves(a, prof):
    ACC, B0, B1 = 16, 96, 132
    lane_addrs(a)
    a(f"""
    s_and_b32 s54, s51, 1
    s_lshr_b32 s55, s51, 1
    s_lshl_b32 s56, s54, 13
    v_add_u32 v8, s56, v2
    v_xor_b32 v9, 64, v8
    s_mul_i32 s56, s55, 80
    s_add_u32 s56, s56, {WK}
    v_lshl_add_u32 v10, v7, 3, v3
    v_add_u32 v10, s56, v10
    v_lshrrev_b32 v4, 1, v7
    v_cmp_eq_u32 vcc, s55, v4
    v_and_b32 v4, 1, v7
    v_mul_u32_u24 v4, 40, v4
    v_mov_b32 v11, {WV-WK+32}
    v_cndmask_b32 v11, v11, 32, vcc
    v_add3_u32 v11, v11, v4, v3
    v_add_u32 v11, s56, v11
    v_mov_b32 v12, 0
    v_mov_b32 v13, 0
    v_mov_b32 v4, {SYNC}
    ds_write_b64 v4, v[12:13]
    s_mov_b32 s57, 0
    s_mov_b32 s58, 0
    """)
    for r in range(80): a(f"v_mov_b32 v{ACC+r}, 0")
    def reads(buf, ks):
        out = []
        x = [f"ds_read_b128 {vr(buf+4*i,4)}, v{8+ks} offset:{2048*i}" for i in range(4)]
        w = []
        for t, (ad, o) in enumerate([(10, 0), (10, 40), (11, 0), (10, WV-WK), (10, WV-WK+40)]):
            d = buf + 16 + 4 * t
            w += [f"ds_read_b64_tr_b16 {vr(d,2)}, v{ad} offset:{o+ks*5120}", f"ds_read_b64_tr_b16 {vr(d+2,2)}, v{ad} offset:{o+ks*5120+1280}"]
        return x[:1] + w + x[1:]
    def group(buf, fill):
        fill = list(fill)
        for i in range(4):
            for t in range(5):
                d = ACC + 20 * i + 4 * t
                mfma16(a, d, buf + 4 * i, buf + 16 + 4 * t, d)
                if fill: a(fill.pop(0))
        assert not fill
    stamp(a, prof, 1)
    a("s_waitcnt lgkmcnt(0)\ns_barrier")
    stamp(a, prof, 2)
    for r in reads(B0, 0): a(r)
    a("s_branch G_mid\nG_loop:")
    group(B1, reads(B0, 0))
    a("G_mid:\ns_waitcnt lgkmcnt(0)")
    a(f"""
    s_add_u32 s57, s57, 1
    s_cmp_eq_u32 s57, 3
    s_cselect_b32 s57, 0, s57
    s_mov_b32 s59, {SLOT}
    s_cselect_b32 s59, {-2*SLOT}, s59
    s_add_u32 s58, s58, 1
    s_cmp_lt_u32 s58, 10
    """)
    group(B0, reads(B1, 1) + [f"v_add_u32 v{8+i}, s59, v{8+i}" for i in range(4)])
    a("s_waitcnt lgkmcnt(0)\ns_barrier\ns_cbranch_scc1 G_loop")
    group(B1, [])
    stamp(a, prof, 3)
    PK, P, TMP = 96, 144, 176
    a(f"""
    s_lshl_b32 s56, s54, 13
    s_mul_i32 s57, s55, 3360
    s_add_u32 s57, s57, s56
    v_mul_u32_u24 v9, 80, v5
    v_add_u32 v9, s57, v9
    v_lshl_add_u32 v8, v6, 4, v9
    v_lshrrev_b32 v2, 3, v5
    v_cmp_eq_u32 vcc, s55, v2
    v_mov_b32 v3, 4
    v_and_b32 v4, 1, v6
    v_cndmask_b32 v3, v7, v3, vcc
    v_mul_u32_u24 v4, 1680, v4
    v_mul_u32_u24 v3, 80, v3
    v_add_u32 v9, v9, v4
    v_add_u32 v3, s57, v3
    v_lshl_add_u32 v10, v6, 4, v3
    v_add_u32 v11, v3, v4
    v_mov_b32 v12, 0x3f803f80
    """)
    for i in range(4):
        b = ACC + 20 * i
        pk = PK + 24 * (i >> 1) + 2 * (i & 1)
        for t, o in ((2, 20), (3, 12), (4, 16)):
            a(f"v_cvt_pk_bf16_f32 v{pk+o}, v{b+4*t}, v{b+4*t+1}\nv_cvt_pk_bf16_f32 v{pk+o+1}, v{b+4*t+2}, v{b+4*t+3}")
        a(f"v_cndmask_b32 v{pk+20}, v{pk+20}, v12, vcc\nv_cndmask_b32 v{pk+21}, v{pk+21}, v12, vcc")
        phi(a, list(range(b, b + 12)), TMP)
        for t in range(3):
            a(f"v_cvt_pk_bf16_f32 v{pk+4*t}, v{b+4*t}, v{b+4*t+1}\nv_cvt_pk_bf16_f32 v{pk+4*t+1}, v{b+4*t+2}, v{b+4*t+3}")
        if i & 1:
            k = PK + 24 * (i >> 1)
            a("s_nop 1")
            for n, (x, y) in enumerate([(0, 12), (4, 16), (0, 20), (4, 20), (8, 12), (8, 16), (8, 20)]):
                mfma16(a, P + 4 * n, k + x, k + y, P + 4 * n if i == 3 else None)
    def rep(m16, qs): return sum(m16 << (16 * q) for q in qs)
    def colmask(h): return (0xf << (4 * (h ^ 2))) | (1 << (4 * h))
    masks = []
    for hp in range(2):
        ha, hb = 2 * hp, 2 * hp + 1
        masks.append([rep(colmask(ha), range(4)), rep(colmask(hb), range(4)), rep(0xffff, [ha]), rep(0xffff, [hb]),
                      rep(colmask(ha), [ha]) | rep(colmask(hb), [hb])])
    a("s_cmp_eq_u32 s55, 0")
    sregs = [44, 46, 48, 56, 58]
    for n in range(5):
        for half in range(2):
            c0, c1 = (masks[0][n] >> (32 * half)) & 0xffffffff, (masks[1][n] >> (32 * half)) & 0xffffffff
            a(f"s_mov_b32 s{sregs[n]+half}, {hex(c1)}\ns_cselect_b32 s{sregs[n]+half}, {hex(c0)}, s{sregs[n]+half}")
    a(f"""
    ds_write_b128 v8, {vr(P,4)}
    ds_write_b128 v8, {vr(P+4,4)} offset:1680
    s_mov_b64 exec, s[44:45]
    ds_write_b128 v10, {vr(P+8,4)} offset:1280
    s_mov_b64 exec, s[46:47]
    ds_write_b128 v10, {vr(P+12,4)} offset:{1280+1680}
    s_mov_b64 exec, s[48:49]
    ds_write_b128 v9, {vr(P+16,4)} offset:64
    s_mov_b64 exec, s[56:57]
    ds_write_b128 v9, {vr(P+20,4)} offset:64
    s_mov_b64 exec, s[58:59]
    ds_write_b128 v11, {vr(P+24,4)} offset:{1280+64}
    s_mov_b64 exec, -1
    v_lshlrev_b32 v2, 5, v0
    v_lshlrev_b32 v3, 4, v0
    s_lshl_b32 s56, s52, 4
    s_add_u32 s57, s56, s50
    s_mul_i32 s57, s57, {PSTR}
    s_add_u32 s57, s57, {WS_PART}
    s_waitcnt lgkmcnt(0)
    s_barrier
    """)
    stamp(a, prof, 4)
    a(f"""
    ds_read_b128 v[16:19], v2
    ds_read_b128 v[24:27], v2 offset:8192
    ds_read_b128 v[20:23], v2 offset:16
    ds_read_b128 v[28:31], v2 offset:8208
    v_mov_b32 v4, {SYNC}
    v_mov_b32 v12, 1
    v_cmp_gt_u32 vcc, 210, v0
    s_waitcnt lgkmcnt(2)
    """)
    for r in range(4): a(f"v_add_f32 v{16+r}, v{16+r}, v{24+r}")
    a("s_waitcnt lgkmcnt(0)")
    for r in range(4, 8): a(f"v_add_f32 v{16+r}, v{16+r}, v{24+r}")
    for r in range(4): a(f"v_cvt_pk_bf16_f32 v{32+r}, v{16+2*r}, v{17+2*r}")
    for r in range(4): a(f"v_cndmask_b32 v{32+r}, 0, v{32+r}, vcc")
    a(f"""
    buffer_store_dwordx4 v[32:35], v3, s[40:43], s57 offen sc0 sc1
    s_mul_i32 s57, s56, {PSTR}
    s_add_u32 s57, s57, {WS_PART}
    s_lshl_b32 s56, s51, 10
    s_add_u32 s57, s57, s56
    v_mul_u32_u24 v3, {PSTR}, v6
    v_lshl_add_u32 v3, v5, 4, v3
    v_lshrrev_b32 v8, 1, v5
    v_and_b32 v9, 1, v5
    v_lshlrev_b32 v9, 4, v9
    v_mov_b32 v10, 0x3f80
    v_lshlrev_b32 v9, v9, v10
    """)
    for r in range(8):
        a(f"v_cmp_eq_u32 vcc, {r}, v8\ns_nop 1\nv_cndmask_b32 v{40+r}, 0, v9, vcc")
    a(f"""
    v_lshrrev_b32 v8, 1, v6
    v_lshlrev_b32 v8, 8, v8
    v_lshl_add_u32 v8, v5, 4, v8
    v_and_b32 v9, 1, v6
    v_lshl_add_u32 v8, v9, 3, v8
    v_add_u32 v8, s56, v8
    s_lshl_b32 s58, s52, 5
    v_mov_b32 v13, s58
    s_cmp_eq_u32 s51, 3
    s_cselect_b32 s59, 0x7fff0000, 0
    v_or_b32 v15, s59, v3
    s_mov_b64 exec, 1
    s_waitcnt vmcnt(0)
    ds_add_rtn_u32 v14, v4, v12
    s_waitcnt lgkmcnt(0)
    v_readfirstlane_b32 s59, v14
    s_cmp_eq_u32 s59, 3
    s_cbranch_scc0 G_spin
    global_atomic_add v13, v12, s[28:29] sc1
    s_mov_b32 s58, 0
    G_poll:
    global_load_dword v14, v13, s[28:29] sc0 sc1
    s_add_u32 s58, s58, 1
    s_lshr_b32 s56, s58, 12
    s_and_b32 s56, s56, 16
    s_waitcnt vmcnt(0)
    v_readfirstlane_b32 s59, v14
    s_or_b32 s59, s59, s56
    s_cmp_ge_u32 s59, 16
    s_cbranch_scc0 G_poll
    ds_write_b32 v4, v12 offset:4
    s_branch G_go
    G_spin:
    s_sleep 1
    ds_read_b32 v14, v4 offset:4
    s_waitcnt lgkmcnt(0)
    v_readfirstlane_b32 s59, v14
    s_cmp_eq_u32 s59, 0
    s_cbranch_scc1 G_spin
    G_go:
    s_mov_b64 exec, -1
    """)
    stamp(a, prof, 5)
    L, D = 48, 16
    for g in range(4):
        for i in range(4):
            a(f"s_add_u32 s56, s57, {4*i*PSTR}\nbuffer_load_dwordx4 {vr(L+16*g+4*i,4)}, v{3 if g < 2 else 15}, s[40:43], s56 offen offset:{256*g} sc1")
    for g in range(4):
        for i in range(4):
            a(f"s_waitcnt vmcnt({15-4*g-i})")
            d = D + 4 * (g >> 1)
            mfma16(a, d, 40 + 4 * (g & 1), L + 16*g + 4*i, None if (g & 1) == 0 and i == 0 else d)
    a("s_nop 7")
    for p in range(2):
        d = D + 4 * p
        a(f"v_cvt_pk_bf16_f32 v{d}, v{d}, v{d+1}\nv_cvt_pk_bf16_f32 v{d+1}, v{d+2}, v{d+3}")
        a(f"ds_write_b64 v8, {vr(d,2)} offset:{KVT+512*p}")
    a("s_waitcnt lgkmcnt(0)\ns_barrier")
    stamp(a, prof, 6)
    stamp_out(a, prof, 7, 65)
```

```python
class Asm:
    def __init__(self):
        self.lines = []
        self.uid = 0
    def __call__(self, s):
        for l in s.strip("\n").split("\n"):
            self.lines.append("    " + l.strip() if not l.strip().endswith(":") else l.strip())
    def label(self, base):
        self.uid += 1
        return f"L_{base}_{self.uid}"
    def text(self):
        return "\n".join(self.lines) + "\n"

def kernel_text(name, body):
    return (f".globl {name}\n.p2align 8\n.type {name},@function\n{name}:\n" + body)

def kd(name, vgpr, sgpr=96, accum=None):
    accum = accum or ((min(vgpr, 256) + 3) // 4 * 4)
    return (f".p2align 6\n.amdhsa_kernel {name}\n  .amdhsa_next_free_vgpr {vgpr}\n  .amdhsa_next_free_sgpr {sgpr}\n"
            f"  .amdhsa_accum_offset {accum}\n  .amdhsa_group_segment_fixed_size 0\n  .amdhsa_kernarg_size 112\n"
            "  .amdhsa_user_sgpr_count 2\n  .amdhsa_user_sgpr_kernarg_segment_ptr 1\n"
            "  .amdhsa_system_sgpr_workgroup_id_x 1\n  .amdhsa_float_denorm_mode_32 3\n.end_amdhsa_kernel\n")

def module(kernels, header=""):
    out = header
    for k in kernels:
        out += f"; @launch kernel={k['name']} grid=({k['grid']},1,1) block=({k['block']},1,1) lds={k['lds']}\n"
    out += '.amdgcn_target "amdgcn-amd-amdhsa--gfx950"\n.text\n'
    seen = []
    for k in kernels:
        if k['name'] in seen: continue
        seen.append(k['name'])
        out += kernel_text(k['name'], k['body'])
    out += '.section .rodata,"a"\n'
    seen = []
    for k in kernels:
        if k['name'] in seen: continue
        seen.append(k['name'])
        out += kd(k['name'], k['vgpr'], k.get('sgpr', 96), k.get('accum'))
    return out
```

```python
from common import *

def gate_role(a, prof=False):
    a("""
    s_sub_u32 s3, s2, 208
    s_lshl_b32 s3, s3, 3
    s_add_u32 s3, s3, s51
    s_lshl_b32 s3, s3, 3
    v_lshrrev_b32 v2, 3, v1
    v_add_u32 v2, s3, v2
    v_mul_u32_u24 v3, 1280, v2
    v_and_b32 v4, 7, v1
    v_lshlrev_b32 v5, 4, v4
    v_add_u32 v3, v3, v5
    """)
    for i in range(10):
        a(f"global_load_dwordx4 {vr(8+8*i,4)}, v5, s[24:25] offset:{128*i}")
        a(f"buffer_load_dwordx4 {vr(12+8*i,4)}, v3, s[32:35], 0 offen offset:{128*i}")
    a("v_mov_b32 v6, 0\nv_mov_b32 v7, 0")
    for i in range(10):
        a(f"s_waitcnt vmcnt({18-2*i})")
        for r in range(4): a(f"v_dot2c_f32_bf16 v{6+(r&1)}, v{8+8*i+r}, v{12+8*i+r}")
    a(f"""
    s_nop 2
    v_add_f32 v6, v6, v7
    s_nop 1
    v_add_f32 v6, v6, v6 quad_perm:[1,0,3,2] row_mask:0xf bank_mask:0xf
    s_nop 1
    v_add_f32 v6, v6, v6 quad_perm:[2,3,0,1] row_mask:0xf bank_mask:0xf
    s_nop 1
    v_add_f32 v6, v6, v6 row_half_mirror row_mask:0xf bank_mask:0xf
    v_mul_f32 v6, 0xbfb8aa3b, v6
    v_exp_f32 v6, v6
    v_lshlrev_b32 v2, 2, v2
    v_add_f32 v6, 1.0, v6
    v_rcp_f32 v6, v6
    v_cmp_eq_u32 vcc, 0, v4
    s_mov_b32 s3, {WS_G}
    s_and_saveexec_b64 s[44:45], vcc
    buffer_store_dword v6, v2, s[40:43], s3 offen
    """)

BT_L = 102400

def k3(prof=False):
    a = Asm()
    vm = Q(a, "vmcnt", 63); lg = Q(a, "lgkmcnt", 15)
    if prof: a("s_memrealtime s[66:67]\ns_memtime s[70:71]")
    a("""
    s_load_dwordx2 s[8:9], s[0:1], 16
    s_load_dwordx2 s[26:27], s[0:1], 88
    s_load_dwordx2 s[30:31], s[0:1], 104
    v_lshrrev_b32 v2, 6, v0
    v_and_b32 v1, 63, v0
    s_cmp_ge_u32 s2, 256
    s_cbranch_scc1 K3_end
    v_readfirstlane_b32 s51, v2
    s_and_b32 s3, s2, 7
    s_lshr_b32 s54, s2, 3
    s_and_b32 s50, s3, 3
    s_lshl_b32 s50, s50, 3
    s_and_b32 s55, s54, 7
    s_add_u32 s50, s50, s55
    s_lshr_b32 s52, s3, 2
    s_lshl_b32 s52, s52, 2
    s_lshr_b32 s54, s54, 3
    s_add_u32 s52, s52, s54
    s_add_u32 s53, s54, s55
    s_and_b32 s53, s53, 3
    s_lshl_b32 s65, s2, 2
    s_add_u32 s65, s65, s51
    s_add_u32 s65, s65, 2048
    """)
    WO, OF, ACC, WB, BF = 8, 16, 96, 116, 148
    a(f"s_mul_i32 s56, s51, 384\ns_mul_i32 s57, s52, 160")
    for i in range(7):
        a(f"""
        v_add_u32 v2, s56, v1
        v_add_u32 v2, {64*i}, v2
        v_mul_u32_u24 v3, 6554, v2
        v_lshrrev_b32 v3, 16, v3
        v_mul_u32_u24 v3, {1280-160}, v3
        v_lshl_add_u32 v2, v2, 4, v3
        v_add_u32 v{WO+i}, s57, v2
        """)
    a(f"""
    v_lshlrev_b32 v4, 4, v1
    v_lshlrev_b32 v5, 3, v1
    s_lshl_b32 s58, s50, 2
    s_add_u32 s58, s58, s51
    s_mul_i32 s44, s58, {8*2560}
    s_add_u32 s44, s44, {WS_O}
    s_mul_i32 s45, s51, 6144
    s_waitcnt lgkmcnt(0)
    """)
    srd(a, 36, 8, 819200); srd(a, 40, 30, WS_SIZE); srd(a, 32, 26, 2621440)
    for c in range(4):
        a(f"""
        s_add_u32 s46, s53, {c}
        s_and_b32 s46, s46, 3
        s_mul_i32 s47, s46, {160*1280}
        s_mul_i32 s46, s46, 5120
        s_add_u32 s46, s46, s44
        s_add_u32 s48, s46, 2560
        """)
        lab = a.label("w")
        a(f"s_cmp_lg_u32 s51, 3\ns_cbranch_scc1 {lab}")
        a(f"s_add_u32 m0, s45, {c*25600 + 6*1024}\ns_nop 0\nbuffer_load_dwordx4 v{WO+6}, s[36:39], s47 offen lds\n{lab}:")
        for i in range(6):
            a(f"s_add_u32 m0, s45, {c*25600 + i*1024}\ns_nop 0\nbuffer_load_dwordx4 v{WO+i}, s[36:39], s47 offen lds")
            vm.push(("c", c))
        for g in range(2):
            o = OF + 20 * c
            a(f"buffer_load_dwordx4 {vr(o+8*g,4)}, v4, s[40:43], s{46+2*g} offen")
            a(f"buffer_load_dwordx4 {vr(o+8*g+4,4)}, v4, s[40:43], s{46+2*g} offen offset:1024")
            a(f"buffer_load_dwordx2 {vr(o+16+2*g,2)}, v5, s[40:43], s{46+2*g} offen offset:2048")
            for _ in range(3): vm.push(("c", c))
    a(f"""
    v_lshrrev_b32 v2, 3, v1
    v_lshlrev_b32 v2, 12, v2
    v_and_b32 v3, 7, v1
    v_lshl_add_u32 v2, v3, 4, v2
    s_mul_i32 s46, s52, 80
    s_mul_i32 s47, s51, 20
    s_add_u32 s46, s46, s47
    s_lshl_b32 s46, s46, 12
    s_lshl_b32 s47, s50, 7
    s_add_u32 s46, s46, s47
    s_add_u32 s46, s46, {WS_BT}
    s_mul_i32 s47, s51, 2560
    v_and_b32 v6, 15, v1
    v_lshlrev_b32 v3, 2, v6
    s_lshl_b32 s48, s58, 6
    s_add_u32 s48, s48, {WS_G}
    """)
    for i in range(3):
        if i == 2: a("s_mov_b32 exec_hi, 0")
        a(f"s_add_u32 m0, s47, {BT_L + i*1024}\ns_nop 0\nbuffer_load_dwordx4 v2, s[40:43], s46 offen lds\ns_add_u32 s46, s46, {8*4096}")
        vm.push("b")
    a("s_mov_b32 exec_hi, -1\nbuffer_load_dword v15, v3, s[40:43], s48 offen"); vm.push("b")
    a(f"""
    v_lshrrev_b32 v7, 4, v1
    v_and_b32 v4, 3, v1
    v_bfe_u32 v5, v1, 2, 2
    v_lshrrev_b32 v2, 2, v1
    v_mul_u32_u24 v2, 160, v2
    v_mul_u32_u24 v3, 40, v4
    v_add_u32 v2, v2, v3
    v_mul_u32_u24 v8, 20, v5
    v_add3_u32 v8, v8, v7, 16
    v_mul_u32_u24 v8, 160, v8
    v_add_u32 v3, v3, v8
    v_add_u32 v8, 51200, v2
    v_add_u32 v9, 51200, v3
    v_mul_u32_u24 v10, 20, v7
    v_add_u32 v10, v10, v5
    v_lshlrev_b32 v10, 7, v10
    v_lshl_add_u32 v10, v4, 3, v10
    s_lshl_b32 s46, s51, 5
    s_add_u32 s46, s46, {BT_L}
    v_add_u32 v10, s46, v10
    v_mul_u32_u24 v11, 1280, v6
    v_mul_u32_u24 v12, 40, v7
    v_add_u32 v11, v11, v12
    s_mul_i32 s46, s58, {16*1280}
    s_add_u32 s46, s46, s57
    """)
    stamp(a, prof, 1)
    NB = 8
    seq = [(c, ks, j) for c in range(4) for ks in range(5) for j in range(5)]
    def rd(n):
        c, ks, j = seq[n]
        if ks == 0 and j == 0:
            vm.wait(("c", c)); a("s_barrier")
            if c == 0: stamp(a, prof, 2)
        d = WB + 4 * (n % NB)
        for half in range(2):
            if ks < 4:
                g, h = ks >> 1, 2 * (ks & 1) + half
                ad, o = (2, 8)[c >> 1], (80 * g + 20 * h) * 160
            else:
                ad, o = (3, 9)[c >> 1], 80 * half * 160
            a(f"ds_read_b64_tr_b16 {vr(d+2*half,2)}, v{ad} offset:{(c&1)*25600 + o + 8*j}")
        lg.push(None); lg.push(n)
    for n in range(NB - 1): rd(n)
    for n, (c, ks, j) in enumerate(seq):
        lg.wait(n)
        mfma16(a, ACC + 4 * j, WB + 4 * (n % NB), OF + 20 * c + 4 * ks, None if n < 5 else ACC + 4 * j)
        if n + NB - 1 < len(seq): rd(n + NB - 1)
        if n + NB - 1 == len(seq):
            vm.wait("b"); a("s_barrier")
            for j2 in range(5):
                a(f"ds_read_b64_tr_b16 {vr(BF+2*j2,2)}, v10 offset:{512*j2}"); lg.push("b")
    stamp(a, prof, 3)
    lg.drain()
    a("s_nop 4")
    T = 16
    for j in range(5):
        for p in range(2):
            b, d = BF + 2 * j + p, ACC + 4 * j + 2 * p
            a(f"""
            v_lshlrev_b32 v{T}, 16, v{b}
            v_and_b32 v{T+1}, 0xffff0000, v{b}
            v_sub_f32 v{d}, v{d}, v{T}
            v_sub_f32 v{d+1}, v{d+1}, v{T+1}
            v_fmac_f32 v{T}, v{d}, v15
            v_fmac_f32 v{T+1}, v{d+1}, v15
            v_cvt_pk_bf16_f32 v{b}, v{T}, v{T+1}
            """)
        if j in (1, 3): a(f"buffer_store_dwordx4 {vr(BF+2*j-2,4)}, v11, s[32:35], s46 offen offset:{8*(j-1)}")
    a(f"buffer_store_dwordx2 {vr(BF+8,2)}, v11, s[32:35], s46 offen offset:32")
    stamp(a, prof, 4)
    stamp_out(a, prof, 5, 65)
    a("K3_end:\ns_endpgm")
    return dict(name="mix_kernel", body=a.text(), grid=256, block=256, lds=BT_L + 10240 + 512, vgpr=160, sgpr=96)
```

```python
from common import *

RS = 2064
BROW = 24 * RS
UB = 56 * RS
US = 4608
XB = UB + 8 * US
SSM_LDS = XB + 8192
TS = 8192
LOG2E = "0x3fb8aa3b"

def cmul(a, d, x, y, t):
    a(f"v_pk_mul_f32 {vr(t,2)}, {vr(x,2)}, {vr(y,2)} op_sel:[0,0] op_sel_hi:[0,1]")
    a(f"v_pk_fma_f32 {vr(d,2)}, {vr(x,2)}, {vr(y,2)}, {vr(t,2)} op_sel:[1,1,0] op_sel_hi:[1,0,1] neg_lo:[1,0,0]")

def cmul2(a, jobs):
    for d, x, y, t in jobs:
        a(f"v_pk_mul_f32 {vr(t,2)}, {vr(x,2)}, {vr(y,2)} op_sel:[0,0] op_sel_hi:[0,1]")
    for d, x, y, t in jobs:
        a(f"v_pk_fma_f32 {vr(d,2)}, {vr(x,2)}, {vr(y,2)}, {vr(t,2)} op_sel:[1,1,0] op_sel_hi:[1,0,1] neg_lo:[1,0,0]")

def ssm_role(a, prof=False, st=""):
    lg = Q(a, "lgkmcnt", 15); vm = Q(a, "vmcnt", 63)
    R, PRM, X = 12, 28, 32
    a(f"""
    s_lshl_b32 s52, s50, 3
    s_add_u32 s52, s52, s51
    s_lshl_b32 s53, s52, 8
    v_lshl_add_u32 v2, v1, 2, s53
    s_lshl_b32 s54, s52, 1
    s_and_b32 s55, s54, 0xfffffffc
    s_load_dword s56, s[20:21], s55
    s_load_dword s57, s[22:23], s55
    global_load_dword v{PRM}, v2, s[12:13]
    global_load_dword v{PRM+1}, v2, s[14:15]
    global_load_dword v{PRM+2}, v2, s[16:17]
    global_load_dword v{PRM+3}, v2, s[18:19]
    s_and_b32 s58, s50, 7
    s_lshl_b32 s58, s58, 8
    v_lshl_add_u32 v3, v0, 2, s58
    v_and_b32 v3, 2047, v3
    v_mul_u32_u24 v4, 1280, v3
    s_lshl_b32 s59, s50, 4
    """)
    for i in range(4): vm.push("prm")
    for i in range(4):
        a(f"buffer_load_dwordx4 {vr(R+4*i,4)}, v4, s[32:35], s59 offen offset:{1280*i}")
        vm.push("g")
    a(f"""
    v_lshlrev_b32 v3, 1, v3
    v_add_u32 v3, {UB+512}, v3
    v_and_b32 v5, 15, v1
    v_lshrrev_b32 v6, 4, v1
    s_mul_i32 s60, s51, {US}
    s_add_u32 s60, s60, {UB}
    v_mov_b32 v8, 0
    v_mov_b32 v9, 0
    v_mov_b32 v10, 0
    v_mov_b32 v11, 0
    v_lshl_add_u32 v7, v1, 3, s60
    ds_write_b64 v7, v[8:9]
    s_lshl_b32 s61, s51, 10
    s_add_u32 s61, s61, {XB}
    v_lshl_add_u32 v7, v1, 2, s61
    v_mov_b32 v50, 0x3f80
    v_mov_b32 v51, 0x3f800000
    """)
    for h in range(1, 5):
        a(f"""
        v_subrev_u32 v48, {32-h}, v1
        v_subrev_u32 v49, {33-h}, v1
        v_cmp_ge_u32 vcc, {2*h}, v48
        v_cmp_ge_u32 s[62:63], {2*h}, v49
        s_nop 0
        v_cndmask_b32 v48, 0, v50, vcc
        v_cndmask_b32 v49, 0, v51, s[62:63]
        v_or_b32 v{51+h}, v48, v49
        ds_write_b32 v7, v{51+h} offset:{256*(h-1)}
        """)
    a(f"""
    v_lshlrev_b32 v2, 3, v6
    v_sub_u32 v2, v5, v2
    v_add_u32 v2, 24, v2
    v_lshlrev_b32 v2, 2, v2
    v_add_u32 v7, s61, v2
    """)
    for h in range(1, 5):
        o = 64 * (h - 1) + (20 if h == 1 else 16)
        a(f"ds_read2_b32 {vr(X+4*(h-1),2)}, v7 offset0:{o} offset1:{o-2}")
        a(f"ds_read2_b32 {vr(X+4*(h-1)+2,2)}, v7 offset0:{o-4} offset1:{o-6}")
    a(f"""
    v_and_b32 v48, 31, v1
    v_lshrrev_b32 v49, 5, v1
    v_mul_u32_u24 v4, {RS}, v48
    s_lshl_b32 s53, s51, 8
    v_lshl_add_u32 v4, v49, 4, v4
    v_add_u32 v4, s53, v4
    s_waitcnt lgkmcnt(0)
    s_and_b32 s54, s54, 2
    s_lshl_b32 s54, s54, 3
    s_lshr_b32 s56, s56, s54
    s_lshl_b32 s56, s56, 16
    s_lshr_b32 s57, s57, s54
    s_lshl_b32 s57, s57, 16
    v_mov_b32 v60, {LOG2E}
    v_mul_f32 v61, s56, v60
    v_exp_f32 v61, v61
    s_nop 0
    v_cvt_pk_bf16_f32 v61, v61, v61
    v_and_b32 v61, 0xffff0000, v61
    v_mul_f32 v62, v61, v60
    v_mul_f32 v63, 0.15915494, v61
    v_add_f32 v61, v61, v61
    """)
    stamp(a, prof, 1)
    vm.wait("prm")
    OP, KA = 128, 192
    W1, W8, W256, A0 = 64, 66, 68, 70
    tmpi = [0]
    def put(src, rows):
        t = 56 + tmpi[0] % 4; tmpi[0] += 1
        a(f"v_cvt_pk_bf16_f32 v{t}, v{src}, v{src+1}")
        for r in rows: a(f"ds_write_addtid_b32 v{t} offset:{r*RS}")
    for p in range(2):
        for i in range(4):
            a(f"v_lshlrev_b32 v{48+i}, 16, v{PRM+i}" if p == 0 else f"v_and_b32 v{48+i}, 0xffff0000, v{PRM+i}")
        a(f"""
        v_mul_f32 v48, v48, v60
        v_exp_f32 v48, v48
        v_mul_f32 v49, v49, v63
        v_mul_f32 v{A0}, v50, v61
        v_mul_f32 v{A0+1}, v51, -v61
        v_cvt_pk_bf16_f32 v48, v48, v48
        v_and_b32 v48, 0xffff0000, v48
        v_mul_f32 v48, v48, -v62
        v_mul_f32 v50, 0x41000000, v49
        v_mul_f32 v51, 0x43800000, v49
        v_mul_f32 v52, 0x41000000, v48
        v_mul_f32 v53, 0x43800000, v48
        v_fract_f32 v49, v49
        v_fract_f32 v50, v50
        v_fract_f32 v51, v51
        v_exp_f32 v48, v48
        v_exp_f32 v52, v52
        v_exp_f32 v53, v53
        v_cos_f32 v{W1}, v49
        v_sin_f32 v{W1+1}, v49
        v_cos_f32 v{W8}, v50
        v_sin_f32 v{W8+1}, v50
        v_cos_f32 v{W256}, v51
        v_sin_f32 v{W256+1}, v51
        s_mov_b32 m0, s53
        v_mul_f32 v{W1}, v{W1}, v48
        v_mul_f32 v{W1+1}, v{W1+1}, -v48
        v_mul_f32 v{W8}, v{W8}, v52
        v_mul_f32 v{W8+1}, v{W8+1}, v52
        v_mul_f32 v{W256}, v{W256}, v53
        v_mul_f32 v{W256+1}, v{W256+1}, -v53
        """)
        rowA = {0:[0],1:[1],2:[2],3:[3],4:[4,8],5:[5],6:[6],7:[7],8:[12],256:[9],258:[10],260:[11,13],262:[14],264:[15],
                516:[16],520:[17],1032:[18],1544:[19],772:[20],776:[21],1288:[22],1800:[23]}
        reg = {0: A0}; nxt = [72]
        def R_(t):
            reg[t] = nxt[0]; nxt[0] += 2; return reg[t]
        W2, W512, T0, T1, T2 = 118, 120, 122, 124, 126
        cmul2(a, [(R_(1), A0, W1, T0), (W2, W1, W1, T1), (W512, W256, W256, T2)])
        put(A0, rowA[0])
        for t in (2, 4, 6):
            cmul2(a, [(R_(t), reg[t-2], W2, T0), (R_(t+1), reg[t-1], W2, T1), (R_(254+t), reg[t-2], W256, T2)])
            put(reg[t-1], rowA[t-1])
            put(reg[t], rowA[t]); put(reg[254+t], rowA[254+t])
        cmul2(a, [(R_(8), reg[6], W2, T0), (R_(262), reg[6], W256, T1), (R_(516), reg[4], W512, T2)])
        put(reg[7], rowA[7])
        cmul2(a, [(R_(264), reg[8], W256, T0), (R_(520), reg[8], W512, T1), (R_(772), reg[260], W512, T2)])
        for t in (8, 262, 516): put(reg[t], rowA[t])
        cmul2(a, [(R_(776), reg[264], W512, T0), (R_(1032), reg[520], W512, T1), (W2, W8, W8, T2)])
        for t in (264, 520, 772): put(reg[t], rowA[t])
        B3, W32 = 114, 116
        cmul2(a, [(R_(1288), reg[776], W512, T0), (R_(1544), reg[1032], W512, T1), (B3, W2, W8, T2)])
        for t in (776, 1032): put(reg[t], rowA[t])
        cmul2(a, [(R_(1800), reg[1288], W512, T0), (W32, W2, W2, T1)])
        for t in (1288, 1544, 1800): put(reg[t], rowA[t])
        assert nxt[0] <= 114
        a(f"s_add_u32 m0, s53, {BROW}\nv_mov_b32 v55, 0x3f80")
        if p == 0: a("ds_write_addtid_b32 v55 offset:0")
        cur = [W8, W2, B3, W32]
        buf = [[72, 74, 76, 78], [80, 82, 84, 86]]
        tmp = [88, 90, 92, 94]
        for g in range(8):
            n = 4 if g < 6 else (3 if g == 6 else 0)
            new = buf[g & 1]
            cmul2(a, [(new[i], cur[i], W32, tmp[i]) for i in range(n)])
            for i in range(4 if g < 7 else 3): put(cur[i], [4*g+1+i])
            cur = new
        for ks in range(8):
            a(f"ds_read_b128 {vr(OP+8*ks,4)}, v4 offset:{32*ks}")
            a(f"ds_read_b128 {vr(OP+8*ks+4,4)}, v4 offset:{BROW+32*ks}")
        for ks in range(8):
            a(f"s_waitcnt lgkmcnt({14-2*ks})")
            mfma32(a, KA, OP+8*ks, OP+8*ks+4, None if (p == 0 and ks == 0) else KA)
    stamp(a, prof, 2)
    a(f"""
    s_lshl_b32 s53, s51, 13
    v_lshl_add_u32 v48, v1, 4, s53
    v_and_b32 v49, 31, v1
    v_lshrrev_b32 v50, 5, v1
    v_lshlrev_b32 v51, 5, v49
    v_lshl_add_u32 v51, v50, 4, v51
    v_add_u32 v51, s53, v51
    v_and_b32 v52, 1, v1
    v_lshlrev_b32 v52, 8, v52
    v_lshl_add_u32 v52, v50, 6, v52
    v_and_b32 v53, 30, v1
    v_lshl_add_u32 v52, v53, 1, v52
    v_add_u32 v52, s53, v52
    v_lshl_add_u32 v53, v1, 1, s53
    v_mov_b32 v54, s53
    s_barrier
    ds_write_b128 v48, v[8:11]
    ds_write_b128 v48, v[8:11] offset:2112
    ds_write_b128 v48, v[8:11] offset:3136
    s_mov_b64 exec, 1
    s_nop 3
    v_add_f32 v{KA}, s57, v{KA}
    v_cvt_pk_bf16_f32 v55, v{KA}, 0
    ds_write_b32 v54, v55 offset:60
    s_mov_b64 exec, -1
    """)
    for i in range(4): a(f"v_cvt_pk_bf16_f32 v{56+i}, v{KA+i+1}, v{KA+i}")
    a("ds_write_b128 v51, v[56:59] offset:64")
    for i, (lo, hi) in enumerate([(5,5),(6,5),(7,6),(7,7)]): a(f"v_cvt_pk_bf16_f32 v{60+i}, v{KA+lo}, v{KA+hi}")
    a(f"""
    ds_write_b128 v51, v[60:63] offset:1088
    v_cvt_pk_bf16_f32 v64, v{KA+8}, v{KA+9}
    v_cvt_pk_bf16_f32 v65, v{KA+10}, v{KA+11}
    ds_write_b32 v52, v64 offset:{2240+64}
    ds_write_b16 v53, v65 offset:{2752+64}
    ds_write_b16_d16_hi v53, v65 offset:{2752+64+128}
    v_and_b32 v66, 0xffff0000, v63
    v_lshrrev_b32 v67, 16, v64
    v_and_b32 v69, 0xffff0000, v64
    v_or_b32 v68, v67, v69
    s_mov_b32 exec_lo, 0
    s_mov_b32 exec_hi, 0x80000000
    ds_write_b32 v54, v63 offset:2112
    ds_write_b32 v54, v63 offset:2116
    ds_write_b32 v54, v66 offset:2120
    ds_write_b32 v54, v67 offset:3144
    ds_write_b32 v54, v68 offset:3148
    ds_write_b32 v54, v69 offset:3152
    s_mov_b64 exec, -1
    s_add_u32 s54, s53, 4
    v_add_u32 v2, s54, v2
    v_add_u32 v4, 1024, v2
    v_add_u32 v7, 2048, v2
    v_add_u32 v8, 3072, v2
    v_lshlrev_b32 v9, 2, v6
    v_sub_u32 v9, v5, v9
    s_add_u32 s54, s53, {2240+52}
    v_lshl_add_u32 v9, v9, 2, s54
    """)
    T, E, ACC, F, BX, PK, OUT = 48, 120, 160, 192, 228, 12, 24
    def rd2(d, addr, o, step):
        a(f"ds_read2_b32 {vr(d,2)}, v{addr} offset0:{o+3*step} offset1:{o+2*step}")
        a(f"ds_read2_b32 {vr(d+2,2)}, v{addr} offset0:{o+step} offset1:{o}")
    Treg = {}
    for n, m in enumerate(list(range(0, 34, 2))):
        Treg[m] = T + 4 * n
        rd2(Treg[m], {0: 2, 1: 4, 2: 7}[m // 16], 16 * (m % 16), 2)
    TFIX = T + 68
    rd2(TFIX, 8, 0, 2)
    EA = {d: E + 4 * (d - 2) for d in (2, 3, 4)}
    EB = {d: E + 12 + 4 * (d - 2) for d in (2, 3, 4)}
    E3 = {d: E + 24 + 4 * (d - 4) for d in (4, 5, 6, 7)}
    for d in (2, 3, 4):
        rd2(EA[d], 9, 16 * (d - 2), 1); rd2(EB[d], 9, 64 + 16 * (d - 2), 1)
    for d in (4, 5, 6, 7): rd2(E3[d], 9, 128 + 16 * (d - 4), 1)
    stamp(a, prof, 3)
    a("s_mov_b32 s62, 0x05040100\ns_mov_b32 s63, 0x07060302")
    vm.wait("g")
    for c in range(8):
        d, s = c >> 1, 62 + (c & 1)
        t = F + 2 * c
        a(f"v_perm_b32 v{t}, v{R+4+d}, v{R+d}, s{s}\nv_perm_b32 v{t+1}, v{R+12+d}, v{R+8+d}, s{s}")
        a(f"ds_write_b64 v3, {vr(t,2)} offset:{c*US}")
    a(f"""
    v_lshlrev_b32 v2, 5, v5
    v_lshl_add_u32 v4, v6, 3, v2
    v_lshl_add_u32 v2, v6, 4, v2
    v_add_u32 v2, s60, v2
    s_lshl_b32 s53, s52, 12
    s_add_u32 s53, s53, {WS_BT}
    s_waitcnt lgkmcnt(0)
    s_barrier
    """)
    stamp(a, prof, 4)
    G = F + 32
    def ldF(j, mu):
        a(f"ds_read_b128 {vr(F+2*mu,4)}, v2 offset:{480+512*j-32*mu}"); lg.push(("F", j, mu))
    def ldG(j):
        a(f"ds_read_b128 {vr(G,4)}, v2 offset:{464+512*j}"); lg.push(("G", j))
    ldF(0, 0); ldG(0)
    for mu in range(2, 16, 2): ldF(0, mu)
    started = set()
    def acc(i, x, y):
        mfma16(a, ACC+4*i, x, y, ACC+4*i if i in started else None); started.add(i)
    def store(i):
        o = OUT + 2 * (i & 1)
        a(f"v_cvt_pk_bf16_f32 v{o}, v{ACC+4*i}, v{ACC+4*i+1}\nv_cvt_pk_bf16_f32 v{o+1}, v{ACC+4*i+2}, v{ACC+4*i+3}")
        a(f"buffer_store_dwordx2 {vr(o,2)}, v4, s[40:43], s53 offen offset:{512*i} {st}")
    for j in range(8):
        lg.wait(("F", j, 0))
        if j <= 5:
            mfma16(a, BX, F, X); mfma16(a, BX+4, F, X+4)
            if j <= 3: mfma16(a, BX+16, F, X+8)
            lg.wait(("G", j))
            mfma16(a, BX+8, G, X); mfma16(a, BX+12, G, X+4)
            if j <= 3: mfma16(a, BX+20, G, X+12)
        acc(j, Treg[0], F)
        if j <= 6: acc(j+1, Treg[16], F)
        if j <= 5: acc(j+2, Treg[32], F)
        if j <= 3: acc(j+4, TFIX, F)
        if j < 7: ldF(j+1, 0)
        if j + 1 <= 5: ldG(j+1)
        for mu in range(2, 16, 2):
            lg.wait(("F", j, mu))
            acc(j, Treg[mu], F+2*mu)
            if j <= 6: acc(j+1, Treg[mu+16], F+2*mu)
            if j < 7: ldF(j+1, mu)
            if mu == 2 and j > 0: store(j-1)
            if j <= 5 and mu in (4, 6) or j <= 3 and mu == 8:
                k = (mu - 4) // 2
                for r in range(4): a(f"v_cvt_pk_bf16_f32 v{PK+4*k+r}, v{BX+8*k+r}, v{BX+8*k+4+r}")
        for d in (2, 3, 4):
            if j + d <= 7: acc(j+d, PK, EA[d])
        for d in (4, 5, 6, 7):
            if j + d <= 7: acc(j+d, PK+8, E3[d])
        for d in (2, 3, 4):
            if j + d <= 7: acc(j+d, PK+4, EB[d])
    a("s_nop 7")
    store(7)
    stamp(a, prof, 5)
```

```python
import sys
sys.path.insert(0, "work")
from common import *
from gen import module
import ssm

def k1(prof=False, roles=("gemm", "ssm", "gate")):
    a = Asm()
    if prof: a("s_memrealtime s[66:67]\ns_memtime s[70:71]")
    a("""
    s_load_dwordx16 s[4:19], s[0:1], 0
    s_load_dwordx8 s[20:27], s[0:1], 64
    s_load_dwordx4 s[28:31], s[0:1], 96
    v_lshrrev_b32 v2, 6, v0
    v_and_b32 v1, 63, v0
    s_cmp_ge_u32 s2, 240
    s_cbranch_scc1 K1_end
    v_readfirstlane_b32 s51, v2
    s_lshl_b32 s65, s2, 3
    s_waitcnt lgkmcnt(0)
    s_add_u32 s65, s65, s51
    """)
    srd(a, 32, 4, 2621440)
    srd(a, 40, 30, WS_SIZE)
    a("""
    s_cmp_ge_u32 s2, 208
    s_cbranch_scc1 K1_gate
    s_cmp_ge_u32 s2, 128
    s_cbranch_scc1 K1_ssm
    """)
    if "gemm" in roles:
        import gemm
        gemm.gemm_role(a, prof)
    a("s_endpgm\nK1_ssm:")
    if "ssm" in roles:
        a("""
        s_sub_u32 s3, s2, 128
        s_and_b32 s50, s3, 7
        s_lshr_b32 s3, s3, 3
        s_mul_i32 s50, s50, 10
        s_add_u32 s50, s50, s3
        """)
        ssm.ssm_role(a, prof)
        stamp_out(a, prof, 6, 65)
    a("s_endpgm\nK1_gate:")
    if "gate" in roles:
        import outk
        outk.gate_role(a, prof)
    a("K1_end:\ns_endpgm")
    return a.text()

HEADER = open("gated_mix__linear_attn_block__ssm_conv_s4d__prompt.s.ref").read().split("; Override")[0] \
    if __name__ == "__main__" and len(sys.argv) > 2 else ""

def build(prof=False, roles=("gemm", "ssm", "gate"), with_k3=True, header=""):
    ks = [dict(name="proj_kernel", body=k1(prof, roles), grid=240, block=512, lds=163840, vgpr=256, sgpr=96)]
    if with_k3:
        import outk
        ks.append(outk.k3(prof))
    return module(ks, header)

if __name__ == "__main__":
    open(sys.argv[1], "w").write(build(header=HEADER))
```

```python
from common import *

BL  = 102400
RED = 118784
NHELP = 48
POLL_MAX = 1 << 14

def tile_ids(a):
    a("""
    s_and_b32 s62, s2, 7
    s_lshl_b32 s62, s62, 2
    s_lshr_b32 s63, s2, 6
    s_add_u32 s62, s62, s63
    s_bfe_u32 s63, s2, 0x30003
    """)

def wo_addr(a, regs, t0, t1):
    srd(a, 36, 8, 819200)
    a("s_mul_i32 s3, s63, 160")
    for i, r in enumerate(regs):
        a(f"""
        v_add_u32 v{t0}, {64*i}, v1
        v_mul_u32_u24 v{t1}, 6554, v{t0}
        v_lshrrev_b32 v{t1}, 16, v{t1}
        v_mul_u32_u24 v{t1}, {1280-160}, v{t1}
        v_lshl_add_u32 v{t0}, v{t0}, 4, v{t1}
        v_add_u32 v{r}, s3, v{t0}
        """)

def wo_group(regs, sl, sg, dl):
    return [f"s_add_u32 m0, s{sl}, {dl + 1024*i}\ns_nop 0\nbuffer_load_dwordx4 v{r}, s[36:39], s{sg} offen lds" for i, r in enumerate(regs)]

def ready_issue(a, va, vd):
    l = a.label("rdi")
    a(f"v_min_u32 v{va}, {NHELP-1}, v1\nv_lshlrev_b32 v{va}, 2, v{va}\nv_mov_b32 v{vd}, 1\ns_cmp_lg_u32 s64, 0\ns_cbranch_scc1 {l}")
    a(f"global_load_dword v{vd}, v{va}, s[28:29] sc1\n{l}:")

def ready_wait(a, va, vd, st):
    l = a.label("rdy")
    a(f"""
    s_mov_b32 s{st}, 0
    {l}:
    s_waitcnt vmcnt(0)
    v_cmp_eq_u32 vcc, 0, v{vd}
    s_cbranch_vccz {l}x
    s_sleep 16
    global_load_dword v{vd}, v{va}, s[28:29] sc1
    s_add_u32 s{st}, s{st}, 1
    s_cmp_lt_u32 s{st}, {POLL_MAX}
    s_cbranch_scc1 {l}
    s_waitcnt vmcnt(0)
    {l}x:
    """)

def help_role(a, prof):
    a("""
    s_sub_u32 s50, s2, 208
    s_lshl_b32 s52, s50, 3
    s_add_u32 s52, s52, s64
    s_cmp_ge_u32 s50, 32
    s_cbranch_scc1 H_reset
    s_lshl_b32 s3, s52, 3
    v_lshrrev_b32 v2, 3, v1
    v_add_u32 v2, s3, v2
    v_mul_u32_u24 v3, 1280, v2
    v_and_b32 v4, 7, v1
    v_lshlrev_b32 v5, 4, v4
    v_add_u32 v3, v3, v5
    """)
    for i in range(10):
        a(f"global_load_dwordx4 {vr(8+8*i,4)}, v5, s[24:25] offset:{128*i}")
        a(f"buffer_load_dwordx4 {vr(12+8*i,4)}, v3, s[32:35], 0 offen offset:{128*i}")
    a("v_mov_b32 v6, 0\nv_mov_b32 v7, 0")
    for i in range(10):
        a(f"s_waitcnt vmcnt({18-2*i})")
        for r in range(4): a(f"v_dot2c_f32_bf16 v{6+(r&1)}, v{8+8*i+r}, v{12+8*i+r}")
    a(f"""
    s_nop 2
    v_add_f32 v6, v6, v7
    s_nop 1
    v_add_f32 v6, v6, v6 quad_perm:[1,0,3,2] row_mask:0xf bank_mask:0xf
    s_nop 1
    v_add_f32 v6, v6, v6 quad_perm:[2,3,0,1] row_mask:0xf bank_mask:0xf
    s_nop 1
    v_add_f32 v6, v6, v6 row_half_mirror row_mask:0xf bank_mask:0xf
    v_mul_f32 v6, 0xbfb8aa3b, v6
    v_exp_f32 v6, v6
    v_lshlrev_b32 v2, 2, v2
    v_add_f32 v6, 1.0, v6
    v_rcp_f32 v6, v6
    v_cmp_eq_u32 vcc, 0, v4
    s_mov_b32 s3, {WS_G}
    s_and_saveexec_b64 s[44:45], vcc
    buffer_store_dword v6, v2, s[40:43], s3 offen sc1
    s_mov_b64 exec, -1
    H_reset:
    v_mov_b32 v8, -1
    v_mov_b32 v9, -1
    v_mov_b32 v10, -1
    v_mov_b32 v11, -1
    v_lshlrev_b32 v2, 4, v1
    s_mul_i32 s3, s52, {15*1024}
    """)
    for i in range(15):
        a(f"buffer_store_dwordx4 v[8:11], v2, s[40:43], s3 offen offset:{(i&3)*1024} sc1")
        if i & 3 == 3: a("s_add_u32 s3, s3, 4096")
    W = [12, 13, 14, 15, 16]
    wo_addr(a, W, 2, 3)
    stamp(a, prof, 1)
    a(f"""
    s_waitcnt vmcnt(0)
    s_barrier
    s_cmp_lg_u32 s64, 0
    s_cbranch_scc1 H_dma
    s_lshl_b32 s3, s50, 2
    v_mov_b32 v2, s3
    v_mov_b32 v3, 1
    s_mov_b64 exec, 1
    global_store_dword v2, v3, s[28:29] sc1
    s_mov_b64 exec, -1
    H_dma:
    s_mul_i32 s44, s64, 5120
    s_mul_i32 s45, s64, {32*1280}
    """)
    stamp(a, prof, 2)
    for g in range(3):
        if g == 2: a("s_cmp_ge_u32 s64, 4\ns_cbranch_scc1 H_wait")
        for x in wo_group(W, 44, 45, 40960 * g): a(x)
        a(f"s_add_u32 s45, s45, {256*1280}")
    a("H_wait:")
    a("s_waitcnt vmcnt(0)")
    ready_issue(a, 2, 3); ready_wait(a, 2, 3, 44)
    a("s_barrier")
    stamp(a, prof, 3)
    a("s_mov_b32 s59, 1")

def final(a, prof):
    FR, OF, ACC, BR, BF = 88, 28, 68, 12, 20
    NP = 21
    a(f"""
    FIN:
    s_and_b32 s44, s64, 3
    s_lshr_b32 s45, s64, 2
    s_lshl_b32 s46, s62, 2
    s_add_u32 s46, s46, s44
    s_lshl_b32 s47, s46, 1
    s_add_u32 s47, s47, s45
    s_mul_i32 s47, s47, {4*2560}
    s_add_u32 s47, s47, {WS_O}
    s_add_u32 s48, s47, 2560
    s_add_u32 s49, s47, 5120
    s_add_u32 s50, s47, 7680
    s_mul_i32 s51, s63, 80
    s_lshl_b32 s52, s45, 5
    s_add_u32 s51, s51, s52
    s_lshl_b32 s52, s51, 12
    s_lshl_b32 s53, s46, 5
    s_add_u32 s52, s52, s53
    s_add_u32 s52, s52, {WS_BT}
    s_add_u32 s53, s52, {32*4096}
    s_lshl_b32 s54, s46, 6
    s_add_u32 s54, s54, {WS_G}
    v_lshlrev_b32 v4, 4, v1
    v_lshlrev_b32 v5, 3, v1
    v_lshrrev_b32 v6, 1, v1
    v_lshlrev_b32 v6, 12, v6
    v_and_b32 v7, 1, v1
    v_lshl_add_u32 v6, v7, 4, v6
    v_lshrrev_b32 v7, 5, v1
    v_cmp_gt_u32 vcc, s45, v7
    v_and_b32 v8, 15, v1
    v_lshlrev_b32 v9, 2, v8
    v_mov_b32 v7, 0x7fff0000
    v_cndmask_b32 v7, v7, v6, vcc
    buffer_load_dword v26, v9, s[40:43], s54 offen sc1
    s_cmp_eq_u32 s59, 0
    s_cbranch_scc1 F_go
    s_mov_b32 s55, 0
    F_idle:
    buffer_load_dwordx2 v[2:3], v5, s[40:43], s47 offen offset:2048 sc1
    s_add_u32 s55, s55, 1
    s_cmp_ge_u32 s55, {POLL_MAX}
    s_cbranch_scc1 F_go
    s_waitcnt vmcnt(0)
    v_cmp_eq_u32 vcc, -1, v2
    s_cbranch_vccz F_go
    s_sleep 6
    s_branch F_idle
    F_go:
    """)
    def issueC():
        a(f"buffer_load_dwordx4 {vr(BR,4)}, v6, s[40:43], s52 offen sc1")
        a(f"buffer_load_dwordx4 {vr(BR+4,4)}, v7, s[40:43], s53 offen sc1")
    def issue(c):
        o = OF + 20 * c
        for g in range(2):
            s = 47 + 2 * c + g
            a(f"buffer_load_dwordx2 {vr(o+16+2*g,2)}, v5, s[40:43], s{s} offen offset:2048 sc1")
            a(f"buffer_load_dwordx4 {vr(o+8*g,4)}, v4, s[40:43], s{s} offen sc1")
            a(f"buffer_load_dwordx4 {vr(o+8*g+4,4)}, v4, s[40:43], s{s} offen offset:1024 sc1")
    stamp(a, prof, 8)
    a("s_waitcnt vmcnt(0)")
    issueC(); issue(0); issue(1)
    a(f"""
    s_mul_i32 s55, s45, 51200
    v_and_b32 v27, 3, v1
    v_lshrrev_b32 v2, 2, v1
    v_mul_u32_u24 v2, 160, v2
    v_add_u32 v2, s55, v2
    v_bfe_u32 v10, v1, 2, 2
    v_mul_u32_u24 v10, 20, v10
    v_lshrrev_b32 v9, 4, v1
    v_add3_u32 v10, v10, v9, 16
    v_mul_u32_u24 v10, 160, v10
    v_add_u32 v10, s55, v10
    v_lshl_add_u32 v3, v27, 3, v2
    v_lshl_add_u32 v11, v27, 3, v10
    v_lshrrev_b32 v0, 1, v27
    v_lshlrev_b32 v0, 3, v0
    v_lshl_add_u32 v0, v27, 4, v0
    v_add_u32 v2, v2, v0
    v_add_u32 v10, v10, v0
    v_xor_b32 v0, 8, v2
    v_xor_b32 v27, 8, v10
    s_barrier
    """)
    stamp(a, prof, 9)
    def rd(c, n, d):
        ks, j = divmod(n, 5)
        out = []
        for half in range(2):
            if ks < 4: ad, o = (2, 0, 2, 0, 3)[j], (80 * (ks >> 1) + 20 * (2 * (ks & 1) + half)) * 160
            else: ad, o = (10, 27, 10, 27, 11)[j], 80 * half * 160
            out.append(f"ds_read_b64_tr_b16 {vr(d+2*half,2)}, v{ad} offset:{c*25600 + o + 64*(j>>1)}")
        return "\n".join(out)
    def freg(c, n): return FR + 4 * NP * c + 4 * (n % NP)
    for c in range(2):
        for n in range(NP):
            a(rd(c, n, freg(c, n)))
            if c == 0 and n < 20: a(f"v_mov_b32 v{ACC+n}, 0")
    a(f"""
    s_mov_b32 s56, 7
    s_mov_b32 s57, 0
    s_mov_b64 s[60:61], -1
    s_lshl_b32 s55, s64, 11
    s_add_u32 s55, s55, {BL}
    s_waitcnt lgkmcnt(0)
    """)
    stamp(a, prof, 10)
    def block(c, done):
        o = OF + 20 * c
        l = a.label("ok")
        a(f"""
        v_max3_u32 v1, v{o}, v{o+4}, v{o+8}
        v_max3_u32 v1, v1, v{o+12}, v{o+16}
        v_max_u32 v1, v1, v{o+18}
        v_cmp_eq_u32 vcc, -1, v1
        s_and_b64 vcc, vcc, s[60:61]
        s_cbranch_scc0 {l}
        """)
        issue(c)
        a(f"s_branch {done}\n{l}:\ns_bitset0_b32 s56, {c}")
        for n in range(25):
            ks, j = divmod(n, 5)
            if n == NP: a("s_waitcnt lgkmcnt(0)")
            mfma16(a, ACC + 4 * j, freg(c, n), o + 4 * ks, ACC + 4 * j)
            if 2 <= n < 2 + 25 - NP: a(rd(c, NP + n - 2, freg(c, NP + n - 2)))
    a(f"""
    F_loop:
    s_and_b32 s3, s56, 5
    s_cbranch_scc0 F_b
    s_waitcnt vmcnt(6)
    s_bitcmp1_b32 s56, 1
    s_cbranch_scc1 F_c
    s_waitcnt vmcnt(0)
    F_c:
    s_bitcmp1_b32 s56, 2
    s_cbranch_scc0 F_a
    v_max_u32 v1, v{BR}, v{BR+4}
    v_cmp_eq_u32 vcc, -1, v1
    s_and_b64 vcc, vcc, s[60:61]
    s_cbranch_scc0 F_cok
    """)
    issueC()
    a(f"""
    s_branch F_a
    F_cok:
    s_bitset0_b32 s56, 2
    v_add_u32 v1, s55, v4
    ds_write_b128 v1, {vr(BR,4)}
    ds_write_b128 v1, {vr(BR+4,4)} offset:1024
    v_lshrrev_b32 v1, 1, v9
    v_lshlrev_b32 v1, 7, v1
    v_lshl_add_u32 v1, v9, 8, v1
    v_lshl_add_u32 v1, v8, 3, v1
    v_add_u32 v1, s55, v1
    ds_read_b64_tr_b16 {vr(BF,2)}, v1
    v_xor_b32 v1, 128, v1
    ds_read_b64_tr_b16 {vr(BF+2,2)}, v1
    v_add_u32 v1, s55, v5
    ds_read_b64_tr_b16 {vr(BF+4,2)}, v1 offset:1024
    F_a:
    s_bitcmp1_b32 s56, 0
    s_cbranch_scc0 F_b
    """)
    block(0, "F_b")
    a(f"""
    F_b:
    s_bitcmp1_b32 s56, 1
    s_cbranch_scc0 F_next
    s_waitcnt vmcnt(6)
    s_bitcmp1_b32 s56, 0
    s_cbranch_scc1 F_b2
    s_waitcnt vmcnt(0)
    F_b2:
    """)
    block(1, "F_next")
    a(f"""
    F_next:
    s_add_u32 s57, s57, 1
    s_cmp_lt_u32 s57, {POLL_MAX}
    s_cselect_b64 s[60:61], -1, 0
    s_cmp_lg_u32 s56, 0
    s_cbranch_scc1 F_loop
    """)
    stamp(a, prof, 11)
    srd(a, 36, 26, 2621440)
    a(f"""
    s_mul_i32 s55, s44, 5120
    s_add_u32 s55, s55, {RED}
    v_add_u32 v2, s55, v4
    v_mul_u32_u24 v3, 1280, v8
    v_lshl_add_u32 v10, v9, 3, v3
    v_lshl_add_u32 v3, v9, 4, v3
    s_mul_i32 s46, s46, {16*1280}
    s_lshl_b32 s51, s51, 1
    s_add_u32 s46, s46, s51
    v_cmp_lt_u32 vcc, 1, v9
    s_cmp_eq_u32 s45, 0
    s_cbranch_scc0 F_hi
    """)
    T, P = FR, FR + 16
    def finish(mine, other):
        for j in other: a(f"ds_write_b128 v2, {vr(ACC+4*j,4)} offset:{1024*j}")
        a("s_waitcnt lgkmcnt(0)\ns_barrier")
        for i, j in enumerate(mine): a(f"ds_read_b128 {vr(T+4*i,4)}, v2 offset:{1024*j}")
        for i, j in enumerate(mine):
            for p in range(2):
                b, d = BF + 2 * i + p, ACC + 4 * j + 2 * p
                a(f"v_lshlrev_b32 v{P+4*i+2*p}, 16, v{b}\nv_and_b32 v{P+4*i+2*p+1}, 0xffff0000, v{b}")
                a(f"v_sub_f32 v{d}, v{d}, v{P+4*i+2*p}\nv_sub_f32 v{d+1}, v{d+1}, v{P+4*i+2*p+1}")
        for i, j in enumerate(mine):
            a(f"s_waitcnt lgkmcnt({len(mine)-1-i})")
            for r in range(4): a(f"v_add_f32 v{ACC+4*j+r}, v{ACC+4*j+r}, v{T+4*i+r}")
            for r in range(4): a(f"v_fmac_f32 v{P+4*i+r}, v{ACC+4*j+r}, v26")
            for p in range(2): a(f"v_cvt_pk_bf16_f32 v{BF+2*i+p}, v{P+4*i+2*p}, v{P+4*i+2*p+1}")
            if i == 1:
                for p in range(4): a(f"v_cndmask_b32 v{BR+p}, v{BF+p}, v{BF+(p^2)}, vcc")
                a(f"buffer_store_dwordx4 {vr(BR,4)}, v3, s[36:39], s46 offen")
            if i == 2: a(f"buffer_store_dwordx2 {vr(BF+4,2)}, v10, s[36:39], s46 offen offset:64")
        stamp(a, prof, 12)
        stamp_out(a, prof, 13, 65)
        a("s_endpgm")
    finish([0, 1], [2, 3, 4])
    a("F_hi:")
    finish([2, 3, 4], [0, 1])
```

```python
from common import *
import fin

SLOT = 36880
WK, WV = 16384, 16384 + 10240 + 16
QB = 3 * SLOT
SYNC = QB + 51200
KV32 = 0
KVT = QB + 2048
PSTR = 4096
LOG2E = "0x3fb8aa3b"
EPS = "0x358637bd"

def qloc(s):
    return QB + s * 10240 if s < 5 else (SLOT + (s - 5) * 10240 if s < 8 else 2 * SLOT + (s - 8) * 10240)

def phi(a, regs, tmp):
    n = len(regs)
    for i, r in enumerate(regs): a(f"v_mul_f32 v{tmp+i}, s60, v{r}")
    for i, r in enumerate(regs): a(f"v_exp_f32 v{tmp+i}, v{tmp+i} clamp\nv_max_f32 v{r}, s61, v{r}")
    for i, r in enumerate(regs): a(f"v_add_f32 v{r}, v{r}, v{tmp+i}")

def gemm_role(a, prof=False, ost="sc1"):
    a(f"""
    s_and_b32 s3, s2, 7
    s_lshr_b32 s54, s2, 3
    s_and_b32 s50, s3, 3
    s_lshl_b32 s50, s50, 2
    s_and_b32 s55, s54, 3
    s_add_u32 s50, s50, s55
    s_lshr_b32 s52, s3, 2
    s_lshl_b32 s52, s52, 2
    s_lshr_b32 s54, s54, 2
    s_add_u32 s52, s52, s54
    s_add_u32 s53, s54, s55
    s_and_b32 s53, s53, 3
    s_mul_i32 s53, s53, 5
    s_lshr_b32 s53, s53, 1
    s_mov_b32 s60, {LOG2E}
    s_mov_b32 s61, {EPS}
    s_cmp_lt_u32 s51, 4
    s_cbranch_scc1 G_kv
    """)
    q_waves(a, prof, ost)
    a("G_kv:")
    kv_waves(a, prof)

def lane_addrs(a):
    a("""
    v_and_b32 v5, 15, v1
    v_lshrrev_b32 v6, 4, v1
    v_and_b32 v7, 3, v1
    v_lshrrev_b32 v2, 1, v5
    v_xor_b32 v2, v2, v6
    v_lshlrev_b32 v2, 4, v2
    v_lshl_add_u32 v2, v5, 7, v2
    v_bfe_u32 v3, v1, 2, 3
    v_lshrrev_b32 v4, 5, v1
    v_lshl_add_u32 v3, v4, 4, v3
    v_mul_u32_u24 v3, 160, v3
    """)

def q_waves(a, prof, ost):
    vm = Q(a, "vmcnt", 63); lg = Q(a, "lgkmcnt", 15)
    XO, WO, XS, ACC, WB = 8, 12, 20, 180, 220
    srd(a, 36, 6, 2457600)
    a(f"""
    s_sub_u32 s51, s51, 4
    s_lshl_b32 s54, s50, 2
    s_add_u32 s54, s54, s51
    s_mul_i32 s54, s54, {32*1280}
    v_lshrrev_b32 v2, 3, v1
    v_mul_u32_u24 v2, 1280, v2
    v_lshrrev_b32 v3, 4, v1
    v_and_b32 v4, 7, v1
    v_xor_b32 v3, v3, v4
    v_lshl_add_u32 v2, v3, 4, v2
    v_add_u32 v{XO}, s54, v2
    v_xor_b32 v2, 64, v2
    s_add_u32 s54, s54, {8*1280}
    v_add_u32 v{XO+1}, s54, v2
    v_add_u32 v{XO+2}, {16*1280}, v{XO}
    v_add_u32 v{XO+3}, {16*1280}, v{XO+1}
    s_lshl_b32 s44, s51, 12
    s_lshl_b32 s46, s53, 7
    """)
    def ldx(slot):
        for i in range(4):
            a(f"s_add_u32 m0, s44, {slot*SLOT + i*1024}\ns_nop 0\nbuffer_load_dwordx4 v{XO+i}, s[32:35], s46 offen lds")
    ldx(0)
    a(f"""
    s_and_b32 s54, s51, 1
    s_lshr_b32 s55, s51, 1
    s_mul_i32 s56, s54, {32*3840}
    s_mul_i32 s57, s52, 160
    s_add_u32 s56, s56, s57
    s_mul_i32 s45, s54, 5120
    s_mul_i32 s57, s55, {WV-WK}
    s_add_u32 s48, s45, s57
    s_add_u32 s48, s48, {WK}
    s_mul_i32 s49, s55, 1280
    s_add_u32 s49, s49, 1280
    s_mul_i32 s47, s53, {64*3840}
    s_add_u32 s47, s47, s49
    """)
    for i in range(5):
        a(f"""
        v_add_u32 v2, {64*i}, v1
        v_mul_u32_u24 v3, 6554, v2
        v_lshrrev_b32 v3, 16, v3
        v_mul_u32_u24 v4, 10, v3
        v_sub_u32 v2, v2, v4
        v_lshrrev_b32 v4, 1, v3
        v_xor_b32 v4, v4, v3
        v_and_b32 v4, 4, v4
        v_mul_u32_u24 v4, 3, v4
        v_xor_b32 v3, v3, v4
        v_mul_u32_u24 v3, 3840, v3
        v_lshl_add_u32 v2, v2, 4, v3
        v_add_u32 v{WO+i}, s56, v2
        s_add_u32 m0, s48, {i*1024}
        s_nop 0
        buffer_load_dwordx4 v{WO+i}, s[36:39], s47 offen lds
        """)
    def adv():
        a(f"""
        s_add_u32 s46, s46, 128
        s_add_u32 s47, s47, {64*3840}
        s_cmp_eq_u32 s46, 1280
        s_cselect_b32 s46, 0, s46
        s_cselect_b32 s47, s49, s47
        """)
    def stage(s):
        adv(); ldx(s % 3)
        for i in range(5):
            a(f"s_add_u32 m0, s48, {(s%3)*SLOT + i*1024}\ns_nop 0\nbuffer_load_dwordx4 v{WO+i}, s[36:39], s47 offen lds")
        for i in range(9): vm.push(("S", s))
    def qpair(n):
        a(f"""
        s_add_u32 s57, s53, s55
        s_add_u32 s57, s57, {2*n}
        s_cmp_ge_u32 s57, 10
        s_cselect_b32 s58, 10, 0
        s_sub_u32 s57, s57, s58
        s_mul_i32 s57, s57, {64*3840}
        s_cmp_eq_u32 s55, 0
        s_mov_b32 s58, {qloc(2*n+1)}
        s_cselect_b32 s58, {qloc(2*n)}, s58
        s_add_u32 s58, s58, s45
        """)
        for i in range(5):
            a(f"s_add_u32 m0, s58, {i*1024}\ns_nop 0\nbuffer_load_dwordx4 v{WO+i}, s[36:39], s57 offen lds")
            vm.push(("Q", n))
    for i in range(9): vm.push(("S", 0))
    stage(1); stage(2)
    lane_addrs(a)
    a(f"""
    v_add_u32 v2, s44, v2
    v_xor_b32 v4, 64, v2
    v_add_u32 v18, {2*SLOT}, v2
    v_add_u32 v19, {2*SLOT}, v4
    v_mul_u32_u24 v17, 40, v7
    v_add3_u32 v17, v17, v3, 32
    v_lshl_add_u32 v3, v7, 3, v3
    """)
    stamp(a, prof, 1)
    for s in range(10):
        vm.wait(("S", s))
        a("s_waitcnt lgkmcnt(0)\ns_barrier")
        if s == 0: stamp(a, prof, 2)
        if 1 <= s <= 7: stage(s + 2)
        if s == 7: qpair(0); qpair(1)
        if s == 8: qpair(2); qpair(3)
        if s == 9: qpair(4)
        for ks in range(2):
            for i in range(2):
                ad = (2, 4)[ks] if s % 3 < 2 else (18, 19)[ks]
                a(f"ds_read_b128 {vr(XS+16*s+8*ks+4*i,4)}, v{ad} offset:{(s%3%2)*SLOT + i*2048}")
    vm.wait(("Q", 1))
    a("s_waitcnt lgkmcnt(0)\ns_barrier")
    stamp(a, prof, 3)
    NB = 7
    seq = [(s, ks, t) for s in range(10) for ks in range(2) for t in range(5)]
    def rd(n):
        s, ks, t = seq[n]
        if ks == 0 and t == 0:
            if s == 4:
                vm.drain(); a("s_barrier")
            a(f"v_add_u32 v{8+2*(s&1)}, {qloc(s)}, v3\nv_add_u32 v{9+2*(s&1)}, {qloc(s)}, v17")
        ad = 8 + 2 * (s & 1) + (1 if t == 4 else 0)
        o = ks * 5120 + (40 * t if t < 4 else 0)
        d = WB + 4 * (n % NB)
        a(f"ds_read_b64_tr_b16 {vr(d,2)}, v{ad} offset:{o}\nds_read_b64_tr_b16 {vr(d+2,2)}, v{ad} offset:{o+1280}")
        lg.push(None); lg.push(n)
    for n in range(NB - 1): rd(n)
    for n, (s, ks, t) in enumerate(seq):
        lg.wait(n)
        for i in range(2):
            d = ACC + 20 * i + 4 * t
            mfma16(a, d, WB + 4 * (n % NB), XS + 16 * s + 8 * ks + 4 * i, None if n < 5 else d)
        if n + NB - 1 < len(seq): rd(n + NB - 1)
    stamp(a, prof, 4)
    BQ, AF, D0, TMP = 20, 52, 84, 148
    a(f"""
    v_mul_u32_u24 v9, 40, v5
    v_add_u32 v9, {KVT}, v9
    v_lshl_add_u32 v8, v6, 3, v9
    v_lshrrev_b32 v11, 2, v5
    v_cmp_eq_u32 vcc, 0, v7
    v_mov_b32 v12, 4
    v_cmp_eq_u32 s[44:45], 0, v6
    v_cndmask_b32 v11, v12, v11, vcc
    v_cmp_eq_u32 s[46:47], 1, v6
    v_mul_u32_u24 v11, 40, v11
    v_cmp_eq_u32 s[48:49], 2, v6
    v_add_u32 v11, {KVT+640}, v11
    v_cmp_eq_u32 s[56:57], 3, v6
    v_lshl_add_u32 v10, v6, 3, v11
    v_lshlrev_b32 v12, 4, v1
    v_lshlrev_b32 v13, 3, v1
    s_lshl_b32 s54, s50, 3
    s_lshl_b32 s55, s51, 1
    s_add_u32 s54, s54, s55
    s_lshl_b32 s54, s54, 3
    s_add_u32 s54, s54, s52
    s_mul_i32 s54, s54, 2560
    s_add_u32 s54, s54, {WS_O}
    s_add_u32 s55, s54, {8*2560}
    """)
    msk = ["s[44:45]", "s[46:47]", "s[48:49]", "s[56:57]"]
    for i in range(2):
        phi(a, list(range(ACC + 20 * i, ACC + 20 * i + 20)), TMP)
        t4 = ACC + 20 * i + 16
        a(f"v_cvt_pk_bf16_f32 v14, v{t4}, v{t4+1}\nv_cvt_pk_bf16_f32 v15, v{t4+2}, v{t4+3}")
        for h in range(4):
            b, s = BQ + 16 * i + 4 * h, ACC + 20 * i + 4 * h
            a(f"v_cvt_pk_bf16_f32 v{b}, v{s}, v{s+1}\nv_cvt_pk_bf16_f32 v{b+1}, v{s+2}, v{s+3}")
            a(f"v_cndmask_b32 v{b+2}, 0, v14, {msk[h]}\nv_cndmask_b32 v{b+3}, 0, v15, {msk[h]}")
    stamp(a, prof, 5)
    a("s_barrier")
    stamp(a, prof, 6)
    for h in range(4):
        f = AF + 8 * h
        a(f"""
        ds_read_b64 {vr(f+4,2)}, v10 offset:{840*h}
        ds_read_b64 {vr(f+6,2)}, v11 offset:{840*h+32}
        ds_read_b64 {vr(f,2)}, v8 offset:{840*h}
        ds_read_b64 {vr(f+2,2)}, v9 offset:{840*h+32}
        """)
    for h in range(4):
        a(f"s_waitcnt lgkmcnt({12-4*h})")
        for i in range(2): mfma16(a, D0 + 32*i + 8*h + 4, AF + 8*h + 4, BQ + 16*i + 4*h)
        for i in range(2): mfma16(a, D0 + 32*i + 8*h, AF + 8*h, BQ + 16*i + 4*h)
    a("s_nop 1")
    for i in range(2):
        for h in range(4):
            d = D0 + 32*i + 8*h
            a(f"v_add_f32 v{d+5}, s61, v{d+5}")
        for h in range(4):
            d = D0 + 32*i + 8*h
            a(f"v_rcp_f32 v{d+5}, v{d+5}")
        o = TMP + 12 * i
        for h in range(4):
            d = D0 + 32*i + 8*h
            for r in range(5): a(f"v_mul_f32 v{d+r}, v{d+r}, v{d+5}")
            a(f"v_cvt_pk_bf16_f32 v{o+2*h}, v{d}, v{d+1}\nv_cvt_pk_bf16_f32 v{o+2*h+1}, v{d+2}, v{d+3}")
            if h & 1:
                a(f"v_cvt_pk_bf16_f32 v{o+8+(h>>1)}, v{d-8+4}, v{d+4}")
                a(f"buffer_store_dwordx4 {vr(o+2*h-2,4)}, v12, s[40:43], s{54+i} offen offset:{(h>>1)*1024} {ost}")
        a(f"buffer_store_dwordx2 {vr(o+8,2)}, v13, s[40:43], s{54+i} offen offset:2048 {ost}")
    stamp(a, prof, 7)
    fin.tile_ids(a)
    a("s_mov_b32 s59, 0\ns_branch FIN")

def kv_waves(a, prof):
    ACC, B0, B1 = 16, 96, 132
    lane_addrs(a)
    a(f"""
    s_and_b32 s54, s51, 1
    s_lshr_b32 s55, s51, 1
    s_lshl_b32 s56, s54, 13
    v_add_u32 v8, s56, v2
    v_xor_b32 v9, 64, v8
    s_mul_i32 s56, s55, 80
    s_add_u32 s56, s56, {WK}
    v_lshl_add_u32 v10, v7, 3, v3
    v_add_u32 v10, s56, v10
    v_lshrrev_b32 v4, 1, v7
    v_cmp_eq_u32 vcc, s55, v4
    v_and_b32 v4, 1, v7
    v_mul_u32_u24 v4, 40, v4
    v_mov_b32 v11, {WV-WK+32}
    v_cndmask_b32 v11, v11, 32, vcc
    v_add3_u32 v11, v11, v4, v3
    v_add_u32 v11, s56, v11
    s_mov_b32 s57, 0
    s_mov_b32 s58, 0
    """)
    for r in range(80): a(f"v_mov_b32 v{ACC+r}, 0")
    def reads(buf, ks):
        out = []
        x = [f"ds_read_b128 {vr(buf+4*i,4)}, v{8+ks} offset:{2048*i}" for i in range(4)]
        w = []
        for t, (ad, o) in enumerate([(10, 0), (10, 40), (11, 0), (10, WV-WK), (10, WV-WK+40)]):
            d = buf + 16 + 4 * t
            w += [f"ds_read_b64_tr_b16 {vr(d,2)}, v{ad} offset:{o+ks*5120}", f"ds_read_b64_tr_b16 {vr(d+2,2)}, v{ad} offset:{o+ks*5120+1280}"]
        return x[:1] + w + x[1:]
    def group(buf, fill):
        fill = list(fill)
        for i in range(4):
            for t in range(5):
                d = ACC + 20 * i + 4 * t
                mfma16(a, d, buf + 4 * i, buf + 16 + 4 * t, d)
                if fill: a(fill.pop(0))
        assert not fill
    stamp(a, prof, 1)
    a("s_waitcnt lgkmcnt(0)\ns_barrier")
    stamp(a, prof, 2)
    for r in reads(B0, 0): a(r)
    a("s_branch G_mid\nG_loop:")
    group(B1, reads(B0, 0))
    a("G_mid:\ns_waitcnt lgkmcnt(0)")
    a(f"""
    s_add_u32 s57, s57, 1
    s_cmp_eq_u32 s57, 3
    s_cselect_b32 s57, 0, s57
    s_mov_b32 s59, {SLOT}
    s_cselect_b32 s59, {-2*SLOT}, s59
    s_add_u32 s58, s58, 1
    s_cmp_lt_u32 s58, 10
    """)
    group(B0, reads(B1, 1) + [f"v_add_u32 v{8+i}, s59, v{8+i}" for i in range(4)])
    a("s_waitcnt lgkmcnt(0)\ns_barrier\ns_cbranch_scc1 G_loop")
    group(B1, [])
    stamp(a, prof, 3)
    fin.ready_issue(a, 14, 15)
    PK, P, TMP = 96, 144, 176
    a(f"""
    s_lshl_b32 s56, s54, 13
    s_mul_i32 s57, s55, 3360
    s_add_u32 s57, s57, s56
    v_mul_u32_u24 v9, 80, v5
    v_add_u32 v9, s57, v9
    v_lshl_add_u32 v8, v6, 4, v9
    v_lshrrev_b32 v2, 3, v5
    v_cmp_eq_u32 vcc, s55, v2
    v_mov_b32 v3, 4
    v_and_b32 v4, 1, v6
    v_cndmask_b32 v3, v7, v3, vcc
    v_mul_u32_u24 v4, 1680, v4
    v_mul_u32_u24 v3, 80, v3
    v_add_u32 v9, v9, v4
    v_add_u32 v3, s57, v3
    v_lshl_add_u32 v10, v6, 4, v3
    v_add_u32 v11, v3, v4
    v_mov_b32 v12, 0x3f803f80
    """)
    for i in range(4):
        b = ACC + 20 * i
        pk = PK + 24 * (i >> 1) + 2 * (i & 1)
        for t, o in ((2, 20), (3, 12), (4, 16)):
            a(f"v_cvt_pk_bf16_f32 v{pk+o}, v{b+4*t}, v{b+4*t+1}\nv_cvt_pk_bf16_f32 v{pk+o+1}, v{b+4*t+2}, v{b+4*t+3}")
        a(f"v_cndmask_b32 v{pk+20}, v{pk+20}, v12, vcc\nv_cndmask_b32 v{pk+21}, v{pk+21}, v12, vcc")
        phi(a, list(range(b, b + 12)), TMP)
        for t in range(3):
            a(f"v_cvt_pk_bf16_f32 v{pk+4*t}, v{b+4*t}, v{b+4*t+1}\nv_cvt_pk_bf16_f32 v{pk+4*t+1}, v{b+4*t+2}, v{b+4*t+3}")
        if i & 1:
            k = PK + 24 * (i >> 1)
            a("s_nop 1")
            for n, (x, y) in enumerate([(0, 12), (4, 16), (0, 20), (4, 20), (8, 12), (8, 16), (8, 20)]):
                mfma16(a, P + 4 * n, k + x, k + y, P + 4 * n if i == 3 else None)
    def rep(m16, qs): return sum(m16 << (16 * q) for q in qs)
    def colmask(h): return (0xf << (4 * (h ^ 2))) | (1 << (4 * h))
    masks = []
    for hp in range(2):
        ha, hb = 2 * hp, 2 * hp + 1
        masks.append([rep(colmask(ha), range(4)), rep(colmask(hb), range(4)), rep(0xffff, [ha]), rep(0xffff, [hb]),
                      rep(colmask(ha), [ha]) | rep(colmask(hb), [hb])])
    a("s_cmp_eq_u32 s55, 0")
    sregs = [44, 46, 48, 56, 58]
    for n in range(5):
        for half in range(2):
            c0, c1 = (masks[0][n] >> (32 * half)) & 0xffffffff, (masks[1][n] >> (32 * half)) & 0xffffffff
            a(f"s_mov_b32 s{sregs[n]+half}, {hex(c1)}\ns_cselect_b32 s{sregs[n]+half}, {hex(c0)}, s{sregs[n]+half}")
    a(f"""
    ds_write_b128 v8, {vr(P,4)}
    ds_write_b128 v8, {vr(P+4,4)} offset:1680
    s_mov_b64 exec, s[44:45]
    ds_write_b128 v10, {vr(P+8,4)} offset:1280
    s_mov_b64 exec, s[46:47]
    ds_write_b128 v10, {vr(P+12,4)} offset:{1280+1680}
    s_mov_b64 exec, s[48:49]
    ds_write_b128 v9, {vr(P+16,4)} offset:64
    s_mov_b64 exec, s[56:57]
    ds_write_b128 v9, {vr(P+20,4)} offset:64
    s_mov_b64 exec, s[58:59]
    ds_write_b128 v11, {vr(P+24,4)} offset:{1280+64}
    s_mov_b64 exec, -1
    v_lshlrev_b32 v2, 5, v0
    v_lshlrev_b32 v3, 4, v0
    s_lshl_b32 s56, s52, 4
    s_add_u32 s57, s56, s50
    s_mul_i32 s57, s57, {PSTR}
    s_add_u32 s57, s57, {WS_PART}
    """)
    fin.ready_wait(a, 14, 15, 58)
    a("s_waitcnt lgkmcnt(0)\ns_barrier")
    stamp(a, prof, 4)
    a(f"""
    ds_read_b128 v[16:19], v2
    ds_read_b128 v[24:27], v2 offset:8192
    ds_read_b128 v[20:23], v2 offset:16
    ds_read_b128 v[28:31], v2 offset:8208
    v_cmp_gt_u32 vcc, 210, v0
    s_waitcnt lgkmcnt(2)
    """)
    for r in range(4): a(f"v_add_f32 v{16+r}, v{16+r}, v{24+r}")
    a("s_waitcnt lgkmcnt(0)")
    for r in range(4, 8): a(f"v_add_f32 v{16+r}, v{16+r}, v{24+r}")
    for r in range(4): a(f"v_cvt_pk_bf16_f32 v{32+r}, v{16+2*r}, v{17+2*r}")
    for r in range(4): a(f"v_cndmask_b32 v{32+r}, 0, v{32+r}, vcc")
    L, D = 48, 16
    a(f"""
    buffer_store_dwordx4 v[32:35], v3, s[40:43], s57 offen sc1
    s_mul_i32 s44, s56, {PSTR}
    s_add_u32 s44, s44, {WS_PART}
    s_lshl_b32 s56, s51, 10
    s_add_u32 s44, s44, s56
    s_add_u32 s45, s44, {4*PSTR}
    s_add_u32 s46, s44, {8*PSTR}
    s_add_u32 s47, s44, {12*PSTR}
    v_mul_u32_u24 v3, {PSTR}, v6
    v_lshl_add_u32 v3, v5, 4, v3
    s_cmp_eq_u32 s51, 3
    s_cselect_b32 s59, 0x7fff0000, 0
    v_or_b32 v15, s59, v3
    v_lshrrev_b32 v8, 1, v5
    v_and_b32 v9, 1, v5
    v_lshlrev_b32 v9, 4, v9
    v_mov_b32 v10, 0x3f80
    v_lshlrev_b32 v9, v9, v10
    """)
    for r in range(8):
        a(f"v_cmp_eq_u32 vcc, {r}, v8\nv_mov_b32 v{D+r}, 0\ns_nop 0\nv_cndmask_b32 v{40+r}, 0, v9, vcc")
    a(f"""
    v_lshrrev_b32 v8, 1, v6
    v_lshlrev_b32 v8, 8, v8
    v_lshl_add_u32 v8, v5, 4, v8
    v_and_b32 v9, 1, v6
    v_lshl_add_u32 v8, v9, 3, v8
    s_add_u32 s56, s56, {KVT}
    v_add_u32 v8, s56, v8
    """)
    fin.tile_ids(a)
    WA = [9, 10, 11, 12, 13]
    fin.wo_addr(a, WA, 2, 4)
    def issue(i):
        for g in range(4):
            a(f"buffer_load_dwordx4 {vr(L+16*i+4*g,4)}, v{3 if g < 2 else 15}, s[40:43], s{44+i} offen offset:{256*g} sc1")
    for i in range(4): issue(i)
    a("s_mov_b32 s56, 15\ns_mov_b32 s58, 0\ns_mov_b64 s[48:49], -1")
    stamp(a, prof, 5)
    a("G_poll:")
    for i in range(4):
        b = L + 16 * i
        a(f"""
        s_bitcmp1_b32 s56, {i}
        s_cbranch_scc0 G_n{i}
        s_bcnt1_i32_b32 s57, s56
        s_waitcnt vmcnt(12)
        s_cmp_eq_u32 s57, 4
        s_cbranch_scc1 G_c{i}
        s_waitcnt vmcnt(8)
        s_cmp_eq_u32 s57, 3
        s_cbranch_scc1 G_c{i}
        s_waitcnt vmcnt(4)
        s_cmp_eq_u32 s57, 2
        s_cbranch_scc1 G_c{i}
        s_waitcnt vmcnt(0)
        G_c{i}:
        v_max3_u32 v2, v{b}, v{b+4}, v{b+8}
        v_max_u32 v2, v2, v{b+12}
        v_cmp_eq_u32 vcc, -1, v2
        s_and_b64 vcc, vcc, s[48:49]
        s_cbranch_scc0 G_k{i}
        """)
        issue(i)
        a(f"s_branch G_n{i}\nG_k{i}:\ns_bitset0_b32 s56, {i}")
        for g in range(4):
            d = D + 4 * (g >> 1)
            mfma16(a, d, 40 + 4 * (g & 1), b + 4 * g, d)
        a(f"G_n{i}:")
    a(f"""
    s_add_u32 s58, s58, 1
    s_cmp_lt_u32 s58, {fin.POLL_MAX}
    s_cselect_b64 s[48:49], -1, 0
    s_cmp_lg_u32 s56, 0
    s_cbranch_scc1 G_poll
    s_mul_i32 s44, s51, 25600
    s_mul_i32 s45, s51, {160*1280}
    s_nop 1
    """)
    for p in range(2):
        d = D + 4 * p
        a(f"v_cvt_pk_bf16_f32 v{d}, v{d}, v{d+1}\nv_cvt_pk_bf16_f32 v{d+1}, v{d+2}, v{d+3}")
        a(f"ds_write_b64 v8, {vr(d,2)} offset:{512*p}")
    a("s_waitcnt lgkmcnt(0)\ns_barrier")
    stamp(a, prof, 6)
    for g in range(5):
        for x in fin.wo_group(WA, 44, 45, 5120 * g): a(x)
        a(f"s_add_u32 s45, s45, {32*1280}")
    stamp(a, prof, 7)
    a("s_mov_b32 s59, 0\ns_branch FIN")
```

```python
from common import *
import fin

RS = 2064
BROW = 24 * RS
UB = 56 * RS
US = 4608
XB = UB + 8 * US
SSM_LDS = XB + 8192
TS = 8192
LOG2E = "0x3fb8aa3b"

def cmul(a, d, x, y, t):
    a(f"v_pk_mul_f32 {vr(t,2)}, {vr(x,2)}, {vr(y,2)} op_sel:[0,0] op_sel_hi:[0,1]")
    a(f"v_pk_fma_f32 {vr(d,2)}, {vr(x,2)}, {vr(y,2)}, {vr(t,2)} op_sel:[1,1,0] op_sel_hi:[1,0,1] neg_lo:[1,0,0]")

def cmul2(a, jobs):
    for d, x, y, t in jobs:
        a(f"v_pk_mul_f32 {vr(t,2)}, {vr(x,2)}, {vr(y,2)} op_sel:[0,0] op_sel_hi:[0,1]")
    for d, x, y, t in jobs:
        a(f"v_pk_fma_f32 {vr(d,2)}, {vr(x,2)}, {vr(y,2)}, {vr(t,2)} op_sel:[1,1,0] op_sel_hi:[1,0,1] neg_lo:[1,0,0]")

def ssm_role(a, prof=False, st=""):
    lg = Q(a, "lgkmcnt", 15); vm = Q(a, "vmcnt", 63)
    R, PRM, X = 12, 28, 32
    a(f"""
    s_lshl_b32 s52, s50, 3
    s_add_u32 s52, s52, s51
    s_lshl_b32 s53, s52, 8
    v_lshl_add_u32 v2, v1, 2, s53
    s_lshl_b32 s54, s52, 1
    s_and_b32 s55, s54, 0xfffffffc
    s_load_dword s56, s[20:21], s55
    s_load_dword s57, s[22:23], s55
    global_load_dword v{PRM}, v2, s[12:13]
    global_load_dword v{PRM+1}, v2, s[14:15]
    global_load_dword v{PRM+2}, v2, s[16:17]
    global_load_dword v{PRM+3}, v2, s[18:19]
    s_and_b32 s58, s50, 7
    s_lshl_b32 s58, s58, 8
    v_lshl_add_u32 v3, v0, 2, s58
    v_and_b32 v3, 2047, v3
    v_mul_u32_u24 v4, 1280, v3
    s_lshl_b32 s59, s50, 4
    """)
    for i in range(4): vm.push("prm")
    for i in range(4):
        a(f"buffer_load_dwordx4 {vr(R+4*i,4)}, v4, s[32:35], s59 offen offset:{1280*i}")
        vm.push("g")
    a(f"""
    v_lshlrev_b32 v3, 1, v3
    v_add_u32 v3, {UB+512}, v3
    v_and_b32 v5, 15, v1
    v_lshrrev_b32 v6, 4, v1
    s_mul_i32 s60, s51, {US}
    s_add_u32 s60, s60, {UB}
    v_mov_b32 v8, 0
    v_mov_b32 v9, 0
    v_mov_b32 v10, 0
    v_mov_b32 v11, 0
    v_lshl_add_u32 v7, v1, 3, s60
    ds_write_b64 v7, v[8:9]
    s_lshl_b32 s61, s51, 10
    s_add_u32 s61, s61, {XB}
    v_lshl_add_u32 v7, v1, 2, s61
    v_mov_b32 v50, 0x3f80
    v_mov_b32 v51, 0x3f800000
    """)
    for h in range(1, 5):
        a(f"""
        v_subrev_u32 v48, {32-h}, v1
        v_subrev_u32 v49, {33-h}, v1
        v_cmp_ge_u32 vcc, {2*h}, v48
        v_cmp_ge_u32 s[62:63], {2*h}, v49
        s_nop 0
        v_cndmask_b32 v48, 0, v50, vcc
        v_cndmask_b32 v49, 0, v51, s[62:63]
        v_or_b32 v{51+h}, v48, v49
        ds_write_b32 v7, v{51+h} offset:{256*(h-1)}
        """)
    a(f"""
    v_lshlrev_b32 v2, 3, v6
    v_sub_u32 v2, v5, v2
    v_add_u32 v2, 24, v2
    v_lshlrev_b32 v2, 2, v2
    v_add_u32 v7, s61, v2
    """)
    for h in range(1, 5):
        o = 64 * (h - 1) + (20 if h == 1 else 16)
        a(f"ds_read2_b32 {vr(X+4*(h-1),2)}, v7 offset0:{o} offset1:{o-2}")
        a(f"ds_read2_b32 {vr(X+4*(h-1)+2,2)}, v7 offset0:{o-4} offset1:{o-6}")
    a(f"""
    v_and_b32 v48, 31, v1
    v_lshrrev_b32 v49, 5, v1
    v_mul_u32_u24 v4, {RS}, v48
    s_lshl_b32 s53, s51, 8
    v_lshl_add_u32 v4, v49, 4, v4
    v_add_u32 v4, s53, v4
    s_waitcnt lgkmcnt(0)
    s_and_b32 s54, s54, 2
    s_lshl_b32 s54, s54, 3
    s_lshr_b32 s56, s56, s54
    s_lshl_b32 s56, s56, 16
    s_lshr_b32 s57, s57, s54
    s_lshl_b32 s57, s57, 16
    v_mov_b32 v60, {LOG2E}
    v_mul_f32 v61, s56, v60
    v_exp_f32 v61, v61
    s_nop 0
    v_cvt_pk_bf16_f32 v61, v61, v61
    v_and_b32 v61, 0xffff0000, v61
    v_mul_f32 v62, v61, v60
    v_mul_f32 v63, 0.15915494, v61
    v_add_f32 v61, v61, v61
    """)
    stamp(a, prof, 1)
    vm.wait("prm")
    OP, KA = 128, 192
    W1, W8, W256, A0 = 64, 66, 68, 70
    tmpi = [0]
    def put(src, rows):
        t = 56 + tmpi[0] % 4; tmpi[0] += 1
        a(f"v_cvt_pk_bf16_f32 v{t}, v{src}, v{src+1}")
        for r in rows: a(f"ds_write_addtid_b32 v{t} offset:{r*RS}")
    for p in range(2):
        for i in range(4):
            a(f"v_lshlrev_b32 v{48+i}, 16, v{PRM+i}" if p == 0 else f"v_and_b32 v{48+i}, 0xffff0000, v{PRM+i}")
        a(f"""
        v_mul_f32 v48, v48, v60
        v_exp_f32 v48, v48
        v_mul_f32 v49, v49, v63
        v_mul_f32 v{A0}, v50, v61
        v_mul_f32 v{A0+1}, v51, -v61
        v_cvt_pk_bf16_f32 v48, v48, v48
        v_and_b32 v48, 0xffff0000, v48
        v_mul_f32 v48, v48, -v62
        v_mul_f32 v50, 0x41000000, v49
        v_mul_f32 v51, 0x43800000, v49
        v_mul_f32 v52, 0x41000000, v48
        v_mul_f32 v53, 0x43800000, v48
        v_fract_f32 v49, v49
        v_fract_f32 v50, v50
        v_fract_f32 v51, v51
        v_exp_f32 v48, v48
        v_exp_f32 v52, v52
        v_exp_f32 v53, v53
        v_cos_f32 v{W1}, v49
        v_sin_f32 v{W1+1}, v49
        v_cos_f32 v{W8}, v50
        v_sin_f32 v{W8+1}, v50
        v_cos_f32 v{W256}, v51
        v_sin_f32 v{W256+1}, v51
        s_mov_b32 m0, s53
        v_mul_f32 v{W1}, v{W1}, v48
        v_mul_f32 v{W1+1}, v{W1+1}, -v48
        v_mul_f32 v{W8}, v{W8}, v52
        v_mul_f32 v{W8+1}, v{W8+1}, v52
        v_mul_f32 v{W256}, v{W256}, v53
        v_mul_f32 v{W256+1}, v{W256+1}, -v53
        """)
        rowA = {0:[0],1:[1],2:[2],3:[3],4:[4,8],5:[5],6:[6],7:[7],8:[12],256:[9],258:[10],260:[11,13],262:[14],264:[15],
                516:[16],520:[17],1032:[18],1544:[19],772:[20],776:[21],1288:[22],1800:[23]}
        reg = {0: A0}; nxt = [72]
        def R_(t):
            reg[t] = nxt[0]; nxt[0] += 2; return reg[t]
        W2, W512, T0, T1, T2 = 118, 120, 122, 124, 126
        cmul2(a, [(R_(1), A0, W1, T0), (W2, W1, W1, T1), (W512, W256, W256, T2)])
        put(A0, rowA[0])
        for t in (2, 4, 6):
            cmul2(a, [(R_(t), reg[t-2], W2, T0), (R_(t+1), reg[t-1], W2, T1), (R_(254+t), reg[t-2], W256, T2)])
            put(reg[t-1], rowA[t-1])
            put(reg[t], rowA[t]); put(reg[254+t], rowA[254+t])
        cmul2(a, [(R_(8), reg[6], W2, T0), (R_(262), reg[6], W256, T1), (R_(516), reg[4], W512, T2)])
        put(reg[7], rowA[7])
        cmul2(a, [(R_(264), reg[8], W256, T0), (R_(520), reg[8], W512, T1), (R_(772), reg[260], W512, T2)])
        for t in (8, 262, 516): put(reg[t], rowA[t])
        cmul2(a, [(R_(776), reg[264], W512, T0), (R_(1032), reg[520], W512, T1), (W2, W8, W8, T2)])
        for t in (264, 520, 772): put(reg[t], rowA[t])
        B3, W32 = 114, 116
        cmul2(a, [(R_(1288), reg[776], W512, T0), (R_(1544), reg[1032], W512, T1), (B3, W2, W8, T2)])
        for t in (776, 1032): put(reg[t], rowA[t])
        cmul2(a, [(R_(1800), reg[1288], W512, T0), (W32, W2, W2, T1)])
        for t in (1288, 1544, 1800): put(reg[t], rowA[t])
        assert nxt[0] <= 114
        a(f"s_add_u32 m0, s53, {BROW}\nv_mov_b32 v55, 0x3f80")
        if p == 0: a("ds_write_addtid_b32 v55 offset:0")
        cur = [W8, W2, B3, W32]
        buf = [[72, 74, 76, 78], [80, 82, 84, 86]]
        tmp = [88, 90, 92, 94]
        for g in range(8):
            n = 4 if g < 6 else (3 if g == 6 else 0)
            new = buf[g & 1]
            cmul2(a, [(new[i], cur[i], W32, tmp[i]) for i in range(n)])
            for i in range(4 if g < 7 else 3): put(cur[i], [4*g+1+i])
            cur = new
        for ks in range(8):
            a(f"ds_read_b128 {vr(OP+8*ks,4)}, v4 offset:{32*ks}")
            a(f"ds_read_b128 {vr(OP+8*ks+4,4)}, v4 offset:{BROW+32*ks}")
        for ks in range(8):
            a(f"s_waitcnt lgkmcnt({14-2*ks})")
            mfma32(a, KA, OP+8*ks, OP+8*ks+4, None if (p == 0 and ks == 0) else KA)
    stamp(a, prof, 2)
    fin.ready_issue(a, 252, 253)
    a(f"""
    s_lshl_b32 s53, s51, 13
    v_lshl_add_u32 v48, v1, 4, s53
    v_and_b32 v49, 31, v1
    v_lshrrev_b32 v50, 5, v1
    v_lshlrev_b32 v51, 5, v49
    v_lshl_add_u32 v51, v50, 4, v51
    v_add_u32 v51, s53, v51
    v_and_b32 v52, 1, v1
    v_lshlrev_b32 v52, 8, v52
    v_lshl_add_u32 v52, v50, 6, v52
    v_and_b32 v53, 30, v1
    v_lshl_add_u32 v52, v53, 1, v52
    v_add_u32 v52, s53, v52
    v_lshl_add_u32 v53, v1, 1, s53
    v_mov_b32 v54, s53
    s_barrier
    ds_write_b128 v48, v[8:11]
    ds_write_b128 v48, v[8:11] offset:2112
    ds_write_b128 v48, v[8:11] offset:3136
    s_mov_b64 exec, 1
    s_nop 3
    v_add_f32 v{KA}, s57, v{KA}
    v_cvt_pk_bf16_f32 v55, v{KA}, 0
    ds_write_b32 v54, v55 offset:60
    s_mov_b64 exec, -1
    """)
    for i in range(4): a(f"v_cvt_pk_bf16_f32 v{56+i}, v{KA+i+1}, v{KA+i}")
    a("ds_write_b128 v51, v[56:59] offset:64")
    for i, (lo, hi) in enumerate([(5,5),(6,5),(7,6),(7,7)]): a(f"v_cvt_pk_bf16_f32 v{60+i}, v{KA+lo}, v{KA+hi}")
    a(f"""
    ds_write_b128 v51, v[60:63] offset:1088
    v_cvt_pk_bf16_f32 v64, v{KA+8}, v{KA+9}
    v_cvt_pk_bf16_f32 v65, v{KA+10}, v{KA+11}
    ds_write_b32 v52, v64 offset:{2240+64}
    ds_write_b16 v53, v65 offset:{2752+64}
    ds_write_b16_d16_hi v53, v65 offset:{2752+64+128}
    v_and_b32 v66, 0xffff0000, v63
    v_lshrrev_b32 v67, 16, v64
    v_and_b32 v69, 0xffff0000, v64
    v_or_b32 v68, v67, v69
    s_mov_b32 exec_lo, 0
    s_mov_b32 exec_hi, 0x80000000
    ds_write_b32 v54, v63 offset:2112
    ds_write_b32 v54, v63 offset:2116
    ds_write_b32 v54, v66 offset:2120
    ds_write_b32 v54, v67 offset:3144
    ds_write_b32 v54, v68 offset:3148
    ds_write_b32 v54, v69 offset:3152
    s_mov_b64 exec, -1
    s_add_u32 s54, s53, 4
    v_add_u32 v2, s54, v2
    v_add_u32 v4, 1024, v2
    v_add_u32 v7, 2048, v2
    v_add_u32 v8, 3072, v2
    v_lshlrev_b32 v9, 2, v6
    v_sub_u32 v9, v5, v9
    s_add_u32 s54, s53, {2240+52}
    v_lshl_add_u32 v9, v9, 2, s54
    """)
    T, E, ACC, F, BX, PK, OUT = 48, 120, 160, 192, 228, 12, 24
    def rd2(d, addr, o, step):
        a(f"ds_read2_b32 {vr(d,2)}, v{addr} offset0:{o+3*step} offset1:{o+2*step}")
        a(f"ds_read2_b32 {vr(d+2,2)}, v{addr} offset0:{o+step} offset1:{o}")
    Treg = {}
    for n, m in enumerate(list(range(0, 34, 2))):
        Treg[m] = T + 4 * n
        rd2(Treg[m], {0: 2, 1: 4, 2: 7}[m // 16], 16 * (m % 16), 2)
    TFIX = T + 68
    rd2(TFIX, 8, 0, 2)
    EA = {d: E + 4 * (d - 2) for d in (2, 3, 4)}
    EB = {d: E + 12 + 4 * (d - 2) for d in (2, 3, 4)}
    E3 = {d: E + 24 + 4 * (d - 4) for d in (4, 5, 6, 7)}
    for d in (2, 3, 4):
        rd2(EA[d], 9, 16 * (d - 2), 1); rd2(EB[d], 9, 64 + 16 * (d - 2), 1)
    for d in (4, 5, 6, 7): rd2(E3[d], 9, 128 + 16 * (d - 4), 1)
    stamp(a, prof, 3)
    a("s_mov_b32 s62, 0x05040100\ns_mov_b32 s63, 0x07060302")
    fin.ready_wait(a, 252, 253, 54)
    for c in range(8):
        d, s = c >> 1, 62 + (c & 1)
        t = F + 2 * c
        a(f"v_perm_b32 v{t}, v{R+4+d}, v{R+d}, s{s}\nv_perm_b32 v{t+1}, v{R+12+d}, v{R+8+d}, s{s}")
        a(f"ds_write_b64 v3, {vr(t,2)} offset:{c*US}")
    a(f"""
    v_lshlrev_b32 v2, 5, v5
    v_and_b32 v4, 1, v6
    v_lshl_add_u32 v4, v4, 9, v2
    v_lshrrev_b32 v7, 1, v6
    v_lshl_add_u32 v4, v7, 4, v4
    v_lshl_add_u32 v2, v6, 4, v2
    v_add_u32 v2, s60, v2
    s_lshl_b32 s53, s52, 12
    s_add_u32 s53, s53, {WS_BT}
    s_mul_i32 s44, s64, 5120
    s_mul_i32 s45, s64, {32*1280}
    s_add_u32 s46, s45, {256*1280}
    s_add_u32 s47, s45, {512*1280}
    """)
    fin.tile_ids(a)
    WA = [28, 29, 30, 31, 252]
    fin.wo_addr(a, WA, 7, 8)
    a("s_waitcnt lgkmcnt(0)\ns_barrier")
    stamp(a, prof, 4)
    G = F + 32
    def ldF(j, mu):
        a(f"ds_read_b128 {vr(F+2*mu,4)}, v2 offset:{480+512*j-32*mu}"); lg.push(("F", j, mu))
    def ldG(j):
        a(f"ds_read_b128 {vr(G,4)}, v2 offset:{464+512*j}"); lg.push(("G", j))
    ldF(0, 0); ldG(0)
    for mu in range(2, 16, 2): ldF(0, mu)
    started = set()
    def acc(i, x, y):
        mfma16(a, ACC+4*i, x, y, ACC+4*i if i in started else None); started.add(i)
    def store(i):
        o = OUT + 2 * (i & 1)
        a(f"v_cvt_pk_bf16_f32 v{o}, v{ACC+4*i}, v{ACC+4*i+1}\nv_cvt_pk_bf16_f32 v{o+1}, v{ACC+4*i+2}, v{ACC+4*i+3}")
        if i & 1:
            a(f"s_nop 1\nv_permlane16_swap_b32 v{OUT}, v{OUT+2}\nv_permlane16_swap_b32 v{OUT+1}, v{OUT+3}")
            a(f"buffer_store_dwordx4 {vr(OUT,4)}, v4, s[40:43], s53 offen offset:{512*(i-1)} sc1")
    for j in range(8):
        lg.wait(("F", j, 0))
        if j <= 5:
            mfma16(a, BX, F, X); mfma16(a, BX+4, F, X+4)
            if j <= 3: mfma16(a, BX+16, F, X+8)
            lg.wait(("G", j))
            mfma16(a, BX+8, G, X); mfma16(a, BX+12, G, X+4)
            if j <= 3: mfma16(a, BX+20, G, X+12)
        acc(j, Treg[0], F)
        if j <= 6: acc(j+1, Treg[16], F)
        if j <= 5: acc(j+2, Treg[32], F)
        if j <= 3: acc(j+4, TFIX, F)
        if j < 7: ldF(j+1, 0)
        if j + 1 <= 5: ldG(j+1)
        for mu in range(2, 16, 2):
            lg.wait(("F", j, mu))
            acc(j, Treg[mu], F+2*mu)
            if j <= 6: acc(j+1, Treg[mu+16], F+2*mu)
            if j < 7: ldF(j+1, mu)
            if mu == 2 and j > 0: store(j-1)
            if j < 2 and mu >= 6: a(fin.wo_group(WA, 44, 45 + j, 40960 * j)[(mu - 6) // 2])
            if j == 2 and mu == 10:
                a("s_cmp_ge_u32 s64, 4\ns_cbranch_scc1 S_nodma")
                for x in fin.wo_group(WA, 44, 47, 81920): a(x)
                a("S_nodma:")
            if j <= 5 and mu in (4, 6) or j <= 3 and mu == 8:
                k = (mu - 4) // 2
                for r in range(4): a(f"v_cvt_pk_bf16_f32 v{PK+4*k+r}, v{BX+8*k+r}, v{BX+8*k+4+r}")
        for d in (2, 3, 4):
            if j + d <= 7: acc(j+d, PK, EA[d])
        for d in (4, 5, 6, 7):
            if j + d <= 7: acc(j+d, PK+8, E3[d])
        for d in (2, 3, 4):
            if j + d <= 7: acc(j+d, PK+4, EB[d])
    a("s_nop 7")
    store(7)
    stamp(a, prof, 5)
    a("s_mov_b32 s59, 0\ns_branch FIN")
```

```python
import sys
sys.path.insert(0, "work")
from common import *
from gen import kernel_text, kd
import ssm, gemm, fin

NAME = "gated_mix__linear_attn_block__ssm_conv_s4d__prompt_kernel"

def body(prof=False):
    a = Asm()
    if prof: a("s_memrealtime s[66:67]\ns_memtime s[70:71]")
    a("""
    s_load_dwordx16 s[4:19], s[0:1], 0
    s_load_dwordx8 s[20:27], s[0:1], 64
    s_load_dwordx4 s[28:31], s[0:1], 96
    v_lshrrev_b32 v2, 6, v0
    v_and_b32 v1, 63, v0
    s_cmp_ge_u32 s2, 256
    s_cbranch_scc1 K_end
    v_readfirstlane_b32 s51, v2
    s_lshl_b32 s65, s2, 3
    s_mov_b32 s64, s51
    s_waitcnt lgkmcnt(0)
    s_add_u32 s65, s65, s51
    """)
    srd(a, 32, 4, 2621440)
    srd(a, 40, 30, WS_SIZE)
    a("""
    s_cmp_ge_u32 s2, 208
    s_cbranch_scc1 K_help
    s_cmp_ge_u32 s2, 128
    s_cbranch_scc1 K_ssm
    """)
    gemm.gemm_role(a, prof)
    a("""
    K_ssm:
    s_sub_u32 s3, s2, 128
    s_and_b32 s50, s3, 7
    s_lshr_b32 s3, s3, 3
    s_mul_i32 s50, s50, 10
    s_add_u32 s50, s50, s3
    """)
    ssm.ssm_role(a, prof)
    a("K_help:")
    fin.tile_ids(a)
    fin.help_role(a, prof)
    fin.final(a, prof)
    a("K_end:\ns_endpgm")
    return a.text()

def build(prof=False, header=""):
    return (header + "; @launch grid=(256,1,1) block=(512,1,1) lds=163840\n" +
            '.amdgcn_target "amdgcn-amd-amdhsa--gfx950"\n.text\n' + kernel_text(NAME, body(prof)) +
            '.section .rodata,"a"\n' + kd(NAME, 256, 96))

if __name__ == "__main__":
    hdr = open("cdna_kernels/" + NAME[:-7] + ".s.ref").read().split("; Override")[0] if len(sys.argv) > 2 else ""
    open(sys.argv[1], "w").write(build(header=hdr))
```

```python
from gen import Asm

WS_BT   = 0x000000
WS_O    = 0x280000
WS_PART = 0x500000
WS_FLAG = 0x580000
WS_G    = 0x600000
WS_DBG  = 0x700000
WS_SIZE = 0x800000

OPT = {}
def opt(name, default=0): return OPT.get(name, default)

class Q:
    def __init__(self, a, name, cap):
        self.a, self.name, self.cap, self.q = a, name, cap, []
    def push(self, tag=None):
        self.q.append(tag)
    def wait(self, *tags):
        idx = max((i for i, t in enumerate(self.q) if t in tags), default=-1)
        if idx < 0: return
        n = len(self.q) - 1 - idx
        if n > self.cap: n = self.cap
        self.a(f"s_waitcnt {self.name}({n})")
        self.q = self.q[len(self.q) - n:] if n else []
    def drain(self):
        if self.q: self.a(f"s_waitcnt {self.name}(0)")
        self.q = []

def vr(b, n=1):
    return f"v{b}" if n == 1 else f"v[{b}:{b+n-1}]"

def srd(a, d, base, nbytes):
    a(f"s_mov_b32 s{d}, s{base}\ns_mov_b32 s{d+1}, s{base+1}\ns_mov_b32 s{d+2}, {nbytes}\ns_mov_b32 s{d+3}, 0x20000")

def mfma16(a, d, x, y, c=None):
    a(f"v_mfma_f32_16x16x32_bf16 {vr(d,4)}, {vr(x,4)}, {vr(y,4)}, {vr(c,4) if c is not None else '0'}")

def mfma32(a, d, x, y, c=None):
    a(f"v_mfma_f32_32x32x16_bf16 {vr(d,16)}, {vr(x,4)}, {vr(y,4)}, {vr(c,16) if c is not None else '0'}")

def stamp(a, on, idx):
    if on:
        a(f"{'s_memrealtime' if opt('rt') else 's_memtime'} s[68:69]\ns_waitcnt lgkmcnt(0)\ns_mov_b32 s{70+idx}, s68")

def stamp_out(a, on, n, slot_sgpr):
    if not on: return
    a("s_memrealtime s[68:69]\ns_waitcnt lgkmcnt(0)")
    a(f"s_lshl_b32 s67, s{slot_sgpr}, 6\ns_add_u32 s67, s67, {WS_DBG}\ns_mov_b64 exec, 1\nv_mov_b32 v2, s67")
    for i in range(n):
        a(f"v_mov_b32 v3, s{70+i}\nbuffer_store_dword v3, v2, s[40:43], 0 offen offset:{4*i}")
    a("v_mov_b32 v3, s66\nbuffer_store_dword v3, v2, s[40:43], 0 offen offset:56")
    a("v_mov_b32 v3, s68\nbuffer_store_dword v3, v2, s[40:43], 0 offen offset:60")
    a("s_waitcnt vmcnt(0)")
```

```python
from common import *

POLL_MAX = 1 << 14
TILE_IDS = ["s_and_b32 s62, s2, 7", "s_lshl_b32 s62, s62, 2", "s_lshr_b32 s63, s2, 6", "s_add_u32 s62, s62, s63",
            "s_bfe_u32 s63, s2, 0x30003"]

def tile_ids(a):
    for x in TILE_IDS: a(x)

def wo_addr(a, regs, t0, t1, step=64, vid=1):
    srd(a, 36, 8, 819200)
    a("s_mul_i32 s3, s63, 160")
    for i, r in enumerate(regs):
        a(f"""
        v_add_u32 v{t0}, {step*i}, v{vid}
        v_mul_u32_u24 v{t1}, 6554, v{t0}
        v_lshrrev_b32 v{t1}, 16, v{t1}
        v_mul_u32_u24 v{t1}, {1280-160}, v{t1}
        v_lshl_add_u32 v{t0}, v{t0}, 4, v{t1}
        v_add_u32 v{r}, s3, v{t0}
        """)

def wo_group(regs, sl, sg, dl):
    return [f"s_add_u32 m0, s{sl}, {dl + 1024*i}\ns_nop 0\nbuffer_load_dwordx4 v{r}, s[36:39], s{sg} offen lds" for i, r in enumerate(regs)]

def ready_set(a, va, vd, wave=0, n=48, off=0):
    l = a.label("rds")
    a(f"""
    s_cmp_lg_u32 s64, {wave}
    s_cbranch_scc1 {l}
    v_mov_b32 v{va}, {off}
    v_mov_b32 v{vd}, 1
    s_mov_b64 exec, 1
    global_atomic_add v{vd}, v{va}, v{vd}, s[28:29] sc0 sc1
    s_waitcnt vmcnt(0)
    v_cmp_eq_u32 vcc, {n-1}, v{vd}
    s_cbranch_vccz {l}x
    global_store_dword v{va}, v{vd}, s[28:29] offset:128 sc1
    {l}x:
    s_mov_b64 exec, -1
    {l}:
    """)

def ready_issue(a, va, vd, wave=0):
    l = a.label("rdi")
    a(f"v_mov_b32 v{va}, 0\nv_mov_b32 v{vd}, 1\ns_cmp_lg_u32 s64, {wave}\ns_cbranch_scc1 {l}")
    a(f"global_load_dword v{vd}, v{va}, s[28:29] offset:128 sc1\n{l}:")

def ready_wait(a, va, vd, st, newer=0):
    l = a.label("rdy")
    a(f"""
    s_mov_b32 s{st}, 0
    s_waitcnt vmcnt({newer})
    {l}:
    v_cmp_eq_u32 vcc, 0, v{vd}
    s_cbranch_vccz {l}x
    s_sleep 4
    global_load_dword v{vd}, v{va}, s[28:29] offset:128 sc1
    s_add_u32 s{st}, s{st}, 1
    s_cmp_lt_u32 s{st}, {POLL_MAX}
    s_waitcnt vmcnt(0)
    s_cbranch_scc1 {l}
    {l}x:
    """)

def l2_prefetch(a, sn, vd):
    l = a.label("pf")
    a(f"""
    s_cmp_ge_u32 s{sn}, 108
    s_cbranch_scc1 {l}q
    s_mul_i32 s44, s{sn}, 3641
    s_lshr_b32 s44, s44, 16
    s_mul_i32 s45, s44, 18
    s_sub_u32 s45, s{sn}, s45
    s_lshl_b32 s44, s44, 2
    s_lshr_b32 s44, 0x948631, s44
    s_and_b32 s44, s44, 15
    s_cmp_ge_u32 s45, 8
    s_cbranch_scc1 {l}w
    s_and_b32 s46, s2, 3
    s_lshl_b32 s46, s46, 3
    s_add_u32 s46, s46, s45
    s_mul_i32 s46, s46, {64*1280}
    s_lshl_b32 s44, s44, 7
    s_add_u32 s46, s46, s44
    v_mul_u32_u24 v{vd}, 1280, v1
    buffer_load_dword v{vd}, v{vd}, s[32:35], s46 offen
    s_branch {l}x
    {l}q:
    s_sub_u32 s45, s{sn}, 108
    s_mul_i32 s44, s45, 13108
    s_lshr_b32 s44, s44, 16
    s_mul_i32 s46, s44, 5
    s_sub_u32 s45, s45, s46
    s_branch {l}v
    {l}w:
    s_cmp_ge_u32 s45, 13
    s_cselect_b32 s46, 7, 2
    s_add_u32 s45, s45, s46
    {l}v:
    s_mul_i32 s44, s44, {64*3840}
    s_lshl_b32 s45, s45, 7
    s_add_u32 s44, s44, s45
    s_bfe_u32 s45, s2, 0x10002
    s_mul_i32 s45, s45, 640
    s_add_u32 s44, s44, s45
    v_mul_u32_u24 v{vd}, 3840, v1
    v_add_u32 v{vd}, s44, v{vd}
    global_load_dword v{vd}, v{vd}, s[6:7]
    {l}x:
    """)

def pf_first(a, vd):
    a("s_lshr_b32 s47, s2, 3\ns_lshl_b32 s3, s64, 4\ns_add_u32 s47, s47, s3\ns_sub_u32 s47, s47, 16")
    l2_prefetch(a, 47, vd)

def help_role(a, prof):
    if opt("l2pf", 1):
        pf_first(a, 254)
        a("s_lshr_b32 s47, s2, 3\ns_mul_i32 s3, s64, 6\ns_add_u32 s47, s47, s3\ns_add_u32 s47, s47, 102\ns_cmp_ge_u32 s47, 158\ns_cbranch_scc1 H_gate")
        l2_prefetch(a, 47, 253)
        a("H_gate:")
        if opt("pfw", 0): a("s_waitcnt vmcnt(0)")
    a("""
    s_sub_u32 s50, s2, 208
    s_lshl_b32 s52, s50, 3
    s_add_u32 s52, s52, s64
    s_and_b32 s3, s2, 3
    s_lshl_b32 s3, s3, 1
    s_bfe_u32 s44, s2, 0x10002
    s_add_u32 s3, s3, s44
    s_lshl_b32 s3, s3, 2
    s_lshr_b32 s44, s50, 3
    s_add_u32 s3, s3, s44
    s_lshl_b32 s3, s3, 3
    s_add_u32 s3, s3, s64
    s_lshl_b32 s3, s3, 3
    v_lshrrev_b32 v2, 3, v1
    v_add_u32 v2, s3, v2
    v_mul_u32_u24 v3, 1280, v2
    v_and_b32 v4, 7, v1
    v_lshlrev_b32 v5, 4, v4
    v_add_u32 v3, v3, v5
    v_lshlrev_b32 v2, 2, v2
    """)
    def gstore(v):
        a(f"""
        v_cmp_eq_u32 vcc, 0, v4
        s_mov_b32 s3, {WS_G}
        s_and_saveexec_b64 s[44:45], vcc
        buffer_store_dword v{v}, v2, s[40:43], s3 offen sc1
        s_mov_b64 exec, -1
        """)
    def gate():
        a("s_cmp_ge_u32 s50, 32\ns_cbranch_scc1 H_nogate")
        for i in range(10):
            a(f"global_load_dwordx4 {vr(8+8*i,4)}, v5, s[24:25] offset:{128*i}")
            a(f"buffer_load_dwordx4 {vr(12+8*i,4)}, v3, s[32:35], 0 offen offset:{128*i}")
        a("v_mov_b32 v6, 0\nv_mov_b32 v7, 0")
        for i in range(10):
            a(f"s_waitcnt vmcnt({18-2*i})")
            for r in range(4): a(f"v_dot2c_f32_bf16 v{6+(r&1)}, v{8+8*i+r}, v{12+8*i+r}")
        a("""
        s_nop 2
        v_add_f32 v6, v6, v7
        s_nop 1
        v_add_f32 v6, v6, v6 quad_perm:[1,0,3,2] row_mask:0xf bank_mask:0xf
        s_nop 1
        v_add_f32 v6, v6, v6 quad_perm:[2,3,0,1] row_mask:0xf bank_mask:0xf
        s_nop 1
        v_add_f32 v6, v6, v6 row_half_mirror row_mask:0xf bank_mask:0xf
        v_mul_f32 v6, 0xbfb8aa3b, v6
        v_exp_f32 v6, v6
        s_nop 0
        v_add_f32 v6, 1.0, v6
        v_rcp_f32 v6, v6
        s_nop 0
        v_and_b32 v6, 0x7fffffff, v6
        """)
        gstore(6)
        a("H_nogate:")
    first = opt("gfirst", 0)
    if first: gate()
    a(f"""
    v_mov_b32 v96, -1
    v_mov_b32 v97, -1
    v_mov_b32 v98, -1
    v_mov_b32 v99, -1
    v_lshlrev_b32 v100, 4, v1
    s_lshl_b32 s46, s52, 13
    s_add_u32 s46, s46, {WS_O}
    s_add_u32 s47, s46, 4096
    s_cmp_ge_u32 s50, 32
    s_cbranch_scc1 H_fill
    """)
    if not first: gstore(96)
    a("H_fill:")
    for i in range(8): a(f"buffer_store_dwordx4 v[96:99], v100, s[40:43], s{46+(i>>2)} offen offset:{(i&3)*1024} sc1")
    W = [101, 102, 103, 104, 105]
    wo_addr(a, W, 6, 7)
    stamp(a, prof, 1)
    a("s_waitcnt vmcnt(0)\ns_barrier")
    ready_set(a, 6, 7)
    stamp(a, prof, 2)
    if not first: gate()
    a(f"s_mul_i32 s44, s64, 5120\ns_mul_i32 s45, s64, {32*1280}")
    stamp(a, prof, 3)
    for g in range(3):
        if g == 2: a("s_cmp_ge_u32 s64, 4\ns_cbranch_scc1 H_wait")
        for x in wo_group(W, 44, 45, 40960 * g): a(x)
        a(f"s_add_u32 s45, s45, {256*1280}")
    a("H_wait:\ns_waitcnt vmcnt(0)")
    ready_issue(a, 252, 253)
    ready_wait(a, 252, 253, 44)
    a("FIN_B:")
    a("s_mov_b32 s58, 51200\ns_mov_b32 s59, 102400\ns_barrier")
    stamp(a, prof, 7)

def final(a, prof):
    FR, OF, ACC, BR, BF = 88, 28, 68, 12, 20
    NP = 21
    a(f"""
    FIN:
    s_and_b32 s44, s64, 3
    s_lshr_b32 s45, s64, 2
    s_lshl_b32 s46, s62, 2
    s_add_u32 s46, s46, s44
    s_lshl_b32 s47, s46, 1
    s_add_u32 s47, s47, s45
    s_mul_i32 s47, s47, {4*2560}
    s_add_u32 s47, s47, {WS_O}
    s_add_u32 s48, s47, 2560
    s_add_u32 s49, s47, 5120
    s_add_u32 s50, s47, 7680
    s_mul_i32 s51, s63, 80
    s_lshl_b32 s52, s45, 5
    s_add_u32 s51, s51, s52
    s_lshl_b32 s52, s51, 12
    s_lshl_b32 s53, s46, 5
    s_add_u32 s52, s52, s53
    s_add_u32 s52, s52, {WS_BT}
    s_add_u32 s53, s52, {32*4096}
    s_lshl_b32 s54, s46, 6
    s_add_u32 s54, s54, {WS_G}
    v_lshlrev_b32 v4, 4, v1
    v_lshlrev_b32 v5, 3, v1
    v_lshrrev_b32 v6, 1, v1
    v_lshlrev_b32 v6, 12, v6
    v_and_b32 v7, 1, v1
    v_lshl_add_u32 v6, v7, 4, v6
    v_lshrrev_b32 v7, 5, v1
    v_cmp_gt_u32 vcc, s45, v7
    v_and_b32 v8, 15, v1
    v_lshlrev_b32 v9, 2, v8
    v_mov_b32 v7, 0x7fff0000
    v_cndmask_b32 v7, v7, v6, vcc
    v_mov_b32 v{BF+1}, v9
    v_mov_b32 v{BF}, 0
    buffer_load_dword v26, v{BF+1}, s[40:43], s54 offen sc1
    """)
    def issueC():
        a(f"buffer_load_dwordx4 {vr(BR,4)}, v6, s[40:43], s52 offen sc1")
        a(f"buffer_load_dwordx4 {vr(BR+4,4)}, v7, s[40:43], s53 offen sc1")
    def issue(c):
        o = OF + 20 * c
        for g in range(2):
            s = 47 + 2 * c + g
            a(f"buffer_load_dwordx2 {vr(o+16+2*g,2)}, v5, s[40:43], s{s} offen offset:2048 sc1")
            a(f"buffer_load_dwordx4 {vr(o+8*g,4)}, v4, s[40:43], s{s} offen sc1")
            a(f"buffer_load_dwordx4 {vr(o+8*g+4,4)}, v4, s[40:43], s{s} offen offset:1024 sc1")
    stamp(a, prof, 8)
    a(f"""
    s_mul_i32 s55, s45, s58
    v_and_b32 v27, 3, v1
    v_lshrrev_b32 v2, 2, v1
    v_mul_u32_u24 v2, 160, v2
    v_add_u32 v2, s55, v2
    v_bfe_u32 v10, v1, 2, 2
    v_mul_u32_u24 v10, 20, v10
    v_lshrrev_b32 v9, 4, v1
    v_add3_u32 v10, v10, v9, 16
    v_mul_u32_u24 v10, 160, v10
    v_add_u32 v10, s55, v10
    v_lshl_add_u32 v3, v27, 3, v2
    v_lshl_add_u32 v11, v27, 3, v10
    v_lshrrev_b32 v0, 1, v27
    v_lshlrev_b32 v0, 3, v0
    v_lshl_add_u32 v0, v27, 4, v0
    v_add_u32 v2, v2, v0
    v_add_u32 v10, v10, v0
    v_xor_b32 v0, 8, v2
    v_xor_b32 v27, 8, v10
    """)
    def rd(c, n, d):
        ks, j = divmod(n, 5)
        out = []
        for half in range(2):
            if ks < 4: ad, o = (2, 0, 2, 0, 3)[j], (80 * (ks >> 1) + 20 * (2 * (ks & 1) + half)) * 160
            else: ad, o = (10, 27, 10, 27, 11)[j], 80 * half * 160
            out.append(f"ds_read_b64_tr_b16 {vr(d+2*half,2)}, v{ad} offset:{c*25600 + o + 64*(j>>1)}")
        return "\n".join(out)
    a("""
    s_cmp_ge_u32 s2, 128
    s_cbranch_scc1 F_pre
    """ + ("s_cmp_eq_u32 s45, 0\ns_cbranch_scc1 F_pre" if opt("wo1", 13) >= 13 else
           "s_cmp_lg_u32 s45, 0\ns_cbranch_scc1 F_sync\ns_waitcnt vmcnt(0)\nF_sync:") + """
    s_barrier
    F_pre:
    """)
    def freg(c, n): return FR + 4 * NP * c + 4 * (n % NP)
    for c in range(2):
        for n in range(NP):
            a(rd(c, n, freg(c, n)))
            if c == 0 and n < 20: a(f"v_mov_b32 v{ACC+n}, 0")
    a(f"""
    s_mov_b32 s56, 3
    s_mov_b32 s57, 0
    s_mov_b64 s[60:61], -1
    s_lshl_b32 s55, s64, 11
    s_add_u32 s55, s55, s59
    s_waitcnt vmcnt(0) lgkmcnt(0)
    """)
    stamp(a, prof, 9)
    a(f"""
    F_gw:
    v_cmp_eq_u32 vcc, -1, v26
    s_cbranch_vccz F_gok
    s_sleep 8
    buffer_load_dword v26, v{BF+1}, s[40:43], s54 offen sc1
    s_add_u32 s57, s57, 1
    s_cmp_lt_u32 s57, {POLL_MAX}
    s_waitcnt vmcnt(0)
    s_cbranch_scc1 F_gw
    F_gok:
    s_mov_b32 s57, 0
    s_cmp_ge_u32 s2, 128
    s_cbranch_scc1 F_other
    """ + ("s_cmp_lg_u32 s45, 0\ns_cbranch_scc1 F_go\ns_barrier" if opt("wo1", 13) >= 13 else "") + """
    s_branch F_go
    F_other:
    s_cmp_ge_u32 s2, 208
    s_cbranch_scc1 F_help
    s_barrier
    """)
    ready_set(a, 1, 25, 1, 80, 64)
    a(f"""
    F_help:
    s_cmp_lg_u32 s64, 0
    s_cbranch_scc1 F_go
    v_mul_u32_u24 v1, 160, v4
    s_mov_b64 exec, 0xff
    F_idle:
    buffer_load_dword v25, v1, s[40:43], s47 offen sc1
    s_add_u32 s57, s57, 1
    s_cmp_ge_u32 s57, {POLL_MAX}
    s_waitcnt vmcnt(0)
    s_cbranch_scc1 F_seen
    v_cmp_{"eq" if opt("pall", 0) else "ne"}_u32 vcc, -1, v25
    s_cbranch_vcc{"z" if opt("pall", 0) else "nz"} F_seen
    s_sleep 2
    s_branch F_idle
    F_seen:
    s_mov_b64 exec, -1
    s_mov_b32 s57, 0
    F_go:
    s_barrier
    """)
    bflag = f"global_load_dword v25, v{BF}, s[28:29] offset:192 sc1"
    a(bflag)
    issue(0); issue(1)
    stamp(a, prof, 10)
    def block(c):
        o = OF + 20 * c
        a(f"""
        s_bitcmp1_b32 s56, {c}
        s_cbranch_scc0 F_n{c}
        s_waitcnt vmcnt({8-6*c})
        v_max3_u32 v1, v{o}, v{o+4}, v{o+8}
        v_max3_u32 v1, v1, v{o+12}, v{o+16}
        v_max_u32 v1, v1, v{o+18}
        v_cmp_eq_u32 vcc, -1, v1
        s_and_b64 vcc, vcc, s[60:61]
        s_cbranch_scc1 F_n{c}
        s_bitset0_b32 s56, {c}
        """)
        for n in range(25):
            ks, j = divmod(n, 5)
            if n == NP: a("s_waitcnt lgkmcnt(0)")
            mfma16(a, ACC + 4 * j, freg(c, n), o + 4 * ks, ACC + 4 * j)
            if 2 <= n < 2 + 25 - NP: a(rd(c, NP + n - 2, freg(c, NP + n - 2)))
        a(f"F_n{c}:")
    a(f"""
    s_waitcnt vmcnt(12)
    v_readfirstlane_b32 s96, v25
    s_cmp_lg_u32 s96, 0
    s_cbranch_scc1 F_bnow
    {bflag}
    {bflag}
    s_branch F_loop
    F_bnow:
    """)
    issueC()
    a("F_loop:")
    block(0); block(1)
    a(f"""
    s_cmp_eq_u32 s56, 0
    s_cbranch_scc1 F_done
    s_bitcmp1_b32 s56, 0
    s_cbranch_scc0 F_r1
    """)
    issue(0)
    a("F_r1:\ns_bitcmp1_b32 s56, 1\ns_cbranch_scc0 F_r2")
    issue(1)
    a(f"""
    F_r2:
    s_add_u32 s57, s57, 1
    s_cmp_lt_u32 s57, {POLL_MAX}
    s_cselect_b64 s[60:61], -1, 0
    s_waitcnt vmcnt(0)
    s_branch F_loop
    F_done:
    """)
    stamp(a, prof, 13)
    a(f"""
    s_cmp_lg_u32 s96, 0
    s_cbranch_scc1 F_bin
    s_mov_b32 s57, 0
    F_bw:
    s_waitcnt vmcnt(0)
    v_cmp_eq_u32 vcc, 0, v25
    s_cbranch_vccz F_bok
    {bflag}
    s_add_u32 s57, s57, 1
    s_cmp_lt_u32 s57, {POLL_MAX}
    s_cbranch_scc1 F_bw
    F_bok:
    """)
    issueC()
    a(f"""
    F_bin:
    v_lshrrev_b32 v0, 1, v9
    v_lshlrev_b32 v0, 7, v0
    v_lshl_add_u32 v0, v9, 8, v0
    v_lshl_add_u32 v0, v8, 3, v0
    v_add_u32 v0, s55, v0
    v_add_u32 v1, s55, v4
    v_xor_b32 v2, 128, v0
    v_add_u32 v3, s55, v5
    s_waitcnt vmcnt(0)
    ds_write_b128 v1, {vr(BR,4)}
    ds_write_b128 v1, {vr(BR+4,4)} offset:1024
    ds_read_b64_tr_b16 {vr(BF,2)}, v0
    ds_read_b64_tr_b16 {vr(BF+2,2)}, v2
    ds_read_b64_tr_b16 {vr(BF+4,2)}, v3 offset:1024
    """)
    stamp(a, prof, 11)
    srd(a, 36, 26, 2621440)
    a(f"""
    s_mul_i32 s55, s44, 5120
    s_add_u32 s55, s55, s59
    s_add_u32 s55, s55, 16384
    v_add_u32 v2, s55, v4
    v_mul_u32_u24 v3, 1280, v8
    v_lshl_add_u32 v10, v9, 3, v3
    v_lshl_add_u32 v3, v9, 4, v3
    s_mul_i32 s46, s46, {16*1280}
    s_lshl_b32 s51, s51, 1
    s_add_u32 s46, s46, s51
    v_cmp_lt_u32 vcc, 1, v9
    s_cmp_eq_u32 s45, 0
    s_cbranch_scc0 F_hi
    """)
    T, P = FR, FR + 16
    def finish(mine, other):
        for j in other: a(f"ds_write_b128 v2, {vr(ACC+4*j,4)} offset:{1024*j}")
        a("s_waitcnt lgkmcnt(0)\ns_barrier")
        for i, j in enumerate(mine): a(f"ds_read_b128 {vr(T+4*i,4)}, v2 offset:{1024*j}")
        for i, j in enumerate(mine):
            for p in range(2):
                b, d = BF + 2 * i + p, ACC + 4 * j + 2 * p
                a(f"v_lshlrev_b32 v{P+4*i+2*p}, 16, v{b}\nv_and_b32 v{P+4*i+2*p+1}, 0xffff0000, v{b}")
                a(f"v_sub_f32 v{d}, v{d}, v{P+4*i+2*p}\nv_sub_f32 v{d+1}, v{d+1}, v{P+4*i+2*p+1}")
        for i, j in enumerate(mine):
            a(f"s_waitcnt lgkmcnt({len(mine)-1-i})")
            for r in range(4): a(f"v_add_f32 v{ACC+4*j+r}, v{ACC+4*j+r}, v{T+4*i+r}")
            for r in range(4): a(f"v_fmac_f32 v{P+4*i+r}, v{ACC+4*j+r}, v26")
            for p in range(2): a(f"v_cvt_pk_bf16_f32 v{BF+2*i+p}, v{P+4*i+2*p}, v{P+4*i+2*p+1}")
            if i == 1:
                for p in range(4): a(f"v_cndmask_b32 v{BR+p}, v{BF+p}, v{BF+(p^2)}, vcc")
                a(f"buffer_store_dwordx4 {vr(BR,4)}, v3, s[36:39], s46 offen")
            if i == 2: a(f"buffer_store_dwordx2 {vr(BF+4,2)}, v10, s[36:39], s46 offen offset:64")
        stamp(a, prof, 12)
        stamp_out(a, prof, 14, 65)
        a("s_endpgm")
    finish([0, 1], [2, 3, 4])
    a("F_hi:")
    finish([2, 3, 4], [0, 1])
```

```python
from common import *
import fin

SLOT = 36880
WK, WV = 16384, 16384 + 10240 + 16
QB = 3 * SLOT
Q2 = QB - 51200
KVT = 51200
PSTR = 4096
LOG2E = "0x3fb8aa3b"
EPS = "0x358637bd"

def qloc(s):
    return QB + s * 10240 if s < 5 else Q2 + (s - 5) * 10240

def phi(r, n, tmp):
    out = [f"v_pk_mul_f32 {vr(tmp+i,2)}, {vr(r+i,2)}, s[60:61] op_sel_hi:[1,0]" for i in range(0, n, 2)]
    for i in range(n): out += [f"v_exp_f32 v{tmp+i}, v{tmp+i} clamp", f"v_max_f32 v{r+i}, s61, v{r+i}"]
    return out + [f"v_pk_add_f32 {vr(r+i,2)}, {vr(r+i,2)}, {vr(tmp+i,2)}" for i in range(0, n, 2)]

def gemm_role(a, prof=False, ost="sc1"):
    a(f"""
    s_and_b32 s3, s2, 7
    s_lshr_b32 s54, s2, 3
    s_and_b32 s50, s3, 3
    s_lshl_b32 s50, s50, 2
    s_and_b32 s55, s54, 3
    s_add_u32 s50, s50, s55
    s_lshr_b32 s52, s3, 2
    s_lshl_b32 s52, s52, 2
    s_lshr_b32 s54, s54, 2
    s_add_u32 s52, s52, s54
    s_add_u32 s53, s54, s55
    s_and_b32 s53, s53, 3
    s_mul_i32 s53, s53, 5
    s_lshr_b32 s53, s53, 1
    s_mov_b32 s60, {LOG2E}
    s_mov_b32 s61, {EPS}
    s_cmp_lt_u32 s51, 4
    s_cbranch_scc1 G_kv
    """)
    q_waves(a, prof, ost)
    a("G_kv:")
    kv_waves(a, prof)

def lane_addrs(a):
    a("""
    v_and_b32 v5, 15, v1
    v_lshrrev_b32 v6, 4, v1
    v_and_b32 v7, 3, v1
    v_lshrrev_b32 v2, 1, v5
    v_xor_b32 v2, v2, v6
    v_lshlrev_b32 v2, 4, v2
    v_lshl_add_u32 v2, v5, 7, v2
    v_bfe_u32 v3, v1, 2, 3
    v_lshrrev_b32 v4, 5, v1
    v_lshl_add_u32 v3, v4, 4, v3
    v_mul_u32_u24 v3, 160, v3
    """)

def q_waves(a, prof, ost):
    vm = Q(a, "vmcnt", 63); lg = Q(a, "lgkmcnt", 15)
    XO, WO, XS, ACC, WB = 8, 12, 20, 180, 220
    srd(a, 36, 6, 2457600)
    a(f"""
    s_sub_u32 s51, s51, 4
    s_lshl_b32 s54, s50, 2
    s_add_u32 s54, s54, s51
    s_mul_i32 s54, s54, {32*1280}
    v_lshrrev_b32 v2, 3, v1
    v_mul_u32_u24 v2, 1280, v2
    v_lshrrev_b32 v3, 4, v1
    v_and_b32 v4, 7, v1
    v_xor_b32 v3, v3, v4
    v_lshl_add_u32 v2, v3, 4, v2
    v_add_u32 v{XO}, s54, v2
    v_xor_b32 v2, 64, v2
    s_add_u32 s54, s54, {8*1280}
    v_add_u32 v{XO+1}, s54, v2
    v_add_u32 v{XO+2}, {16*1280}, v{XO}
    v_add_u32 v{XO+3}, {16*1280}, v{XO+1}
    s_lshl_b32 s44, s51, 12
    s_lshl_b32 s46, s53, 7
    """)
    def ldx(slot):
        for i in range(4):
            a(f"s_add_u32 m0, s44, {slot*SLOT + i*1024}\ns_nop 0\nbuffer_load_dwordx4 v{XO+i}, s[32:35], s46 offen lds")
    ldx(0)
    a(f"""
    s_and_b32 s54, s51, 1
    s_lshr_b32 s55, s51, 1
    s_mul_i32 s56, s54, {32*3840}
    s_mul_i32 s57, s52, 160
    s_add_u32 s56, s56, s57
    s_mul_i32 s45, s54, 5120
    s_mul_i32 s57, s55, {WV-WK}
    s_add_u32 s48, s45, s57
    s_add_u32 s48, s48, {WK}
    s_mul_i32 s49, s55, 1280
    s_add_u32 s49, s49, 1280
    s_mul_i32 s47, s53, {64*3840}
    s_add_u32 s47, s47, s49
    """)
    for i in range(5):
        a(f"""
        v_add_u32 v2, {64*i}, v1
        v_mul_u32_u24 v3, 6554, v2
        v_lshrrev_b32 v3, 16, v3
        v_mul_u32_u24 v4, 10, v3
        v_sub_u32 v2, v2, v4
        v_lshrrev_b32 v4, 1, v3
        v_xor_b32 v4, v4, v3
        v_and_b32 v4, 4, v4
        v_mul_u32_u24 v4, 3, v4
        v_xor_b32 v3, v3, v4
        v_mul_u32_u24 v3, 3840, v3
        v_lshl_add_u32 v2, v2, 4, v3
        v_add_u32 v{WO+i}, s56, v2
        s_add_u32 m0, s48, {i*1024}
        s_nop 0
        buffer_load_dwordx4 v{WO+i}, s[36:39], s47 offen lds
        """)
    def adv():
        a(f"""
        s_add_u32 s46, s46, 128
        s_add_u32 s47, s47, {64*3840}
        s_cmp_eq_u32 s46, 1280
        s_cselect_b32 s46, 0, s46
        s_cselect_b32 s47, s49, s47
        """)
    def stage(s):
        adv(); ldx(s % 3)
        for i in range(5):
            a(f"s_add_u32 m0, s48, {(s%3)*SLOT + i*1024}\ns_nop 0\nbuffer_load_dwordx4 v{WO+i}, s[36:39], s47 offen lds")
        for i in range(9): vm.push(("S", s))
    def qpair(n):
        a(f"""
        s_add_u32 s57, s53, s55
        s_add_u32 s57, s57, {2*n}
        s_cmp_ge_u32 s57, 10
        s_cselect_b32 s58, 10, 0
        s_sub_u32 s57, s57, s58
        s_mul_i32 s57, s57, {64*3840}
        s_cmp_eq_u32 s55, 0
        s_mov_b32 s58, {qloc(2*n+1)}
        s_cselect_b32 s58, {qloc(2*n)}, s58
        s_add_u32 s58, s58, s45
        """)
        for i in range(5):
            a(f"s_add_u32 m0, s58, {i*1024}\ns_nop 0\nbuffer_load_dwordx4 v{WO+i}, s[36:39], s57 offen lds")
            vm.push(("Q", n))
    for i in range(9): vm.push(("S", 0))
    stage(1); stage(2)
    lane_addrs(a)
    a(f"""
    v_add_u32 v2, s44, v2
    v_xor_b32 v4, 64, v2
    v_add_u32 v18, {2*SLOT}, v2
    v_add_u32 v19, {2*SLOT}, v4
    v_mul_u32_u24 v17, 40, v7
    v_add3_u32 v17, v17, v3, 32
    v_lshl_add_u32 v3, v7, 3, v3
    """)
    stamp(a, prof, 1)
    for s in range(10):
        vm.wait(("S", s))
        a("s_waitcnt lgkmcnt(0)\ns_barrier")
        if s == 0: stamp(a, prof, 2)
        if 1 <= s <= 7: stage(s + 2)
        if s == 7: qpair(0); qpair(1)
        if s == 8: qpair(2)
        if s == 9:
            qpair(3); qpair(4)
            a("v_mov_b32 v248, 0\nglobal_load_dword v249, v248, s[28:29] offset:128 sc1"); vm.push("R")
        for ks in range(2):
            for i in range(2):
                ad = (2, 4)[ks] if s % 3 < 2 else (18, 19)[ks]
                a(f"ds_read_b128 {vr(XS+16*s+8*ks+4*i,4)}, v{ad} offset:{(s%3%2)*SLOT + i*2048}")
    a(f"v_add_u32 v18, {QB}, v3\nv_add_u32 v19, {QB}, v17\nv_add_u32 v3, {Q2}, v3\nv_add_u32 v17, {Q2}, v17")
    vm.wait(("Q", 0))
    a("s_waitcnt lgkmcnt(0)\ns_barrier")
    stamp(a, prof, 3)
    NB = 7
    BQ, AF, D0, TMP = 20, 52, 84, 148
    T8 = 52
    order = (4, 0, 1, 2, 3)
    seq = [(s, ks, t) for s in range(5) for ks in range(2) for t in range(5)]
    seq += [(s, ks, t) for t in order for s in range(5, 10) for ks in range(2)]
    def rd(n):
        s, ks, t = seq[n]
        if n == 20:
            vm.wait(("Q", 2)); a("s_barrier")
        if n == 50:
            vm.q = []; fin.ready_wait(a, 248, 249, 58); lg.drain(); a("s_barrier")
        ad = ((18, 19), (3, 17))[s >= 5][t == 4]
        o = (s % 5) * 10240 + ks * 5120 + (40 * t if t < 4 else 0)
        d = WB + 4 * (n % NB)
        a(f"ds_read_b64_tr_b16 {vr(d,2)}, v{ad} offset:{o}\nds_read_b64_tr_b16 {vr(d+2,2)}, v{ad} offset:{o+1280}")
        lg.push(None); lg.push(n)
    msk = ["s[44:45]", "s[46:47]", "s[48:49]", "s[56:57]"]
    setup = f"""
    v_mul_u32_u24 v9, 40, v5
    v_add_u32 v9, {KVT}, v9
    v_lshl_add_u32 v8, v6, 3, v9
    v_lshrrev_b32 v11, 2, v5
    v_cmp_eq_u32 vcc, 0, v7
    v_mov_b32 v12, 4
    v_cmp_eq_u32 s[44:45], 0, v6
    v_cndmask_b32 v11, v12, v11, vcc
    v_cmp_eq_u32 s[46:47], 1, v6
    v_mul_u32_u24 v11, 40, v11
    v_cmp_eq_u32 s[48:49], 2, v6
    v_add_u32 v11, {KVT+640}, v11
    v_cmp_eq_u32 s[56:57], 3, v6
    v_lshl_add_u32 v10, v6, 3, v11
    v_lshlrev_b32 v12, 4, v1
    v_lshlrev_b32 v13, 3, v1
    s_lshl_b32 s54, s50, 3
    s_lshl_b32 s55, s51, 1
    s_add_u32 s54, s54, s55
    s_lshl_b32 s54, s54, 3
    s_add_u32 s54, s54, s52
    s_mul_i32 s54, s54, 2560
    s_add_u32 s54, s54, {WS_O}
    s_add_u32 s55, s54, {8*2560}
    """.strip().split("\n") + fin.TILE_IDS + [f"s_mov_b32 s58, {QB}", f"s_mov_b32 s59, 59648"]
    def post(t):
        out = []
        for i in range(2):
            r = ACC + 20 * i + 4 * t
            out += phi(r, 4, T8 + 4 * i)
            b = 14 if t == 4 else BQ + 16 * i + 4 * t
            out += [f"v_cvt_pk_bf16_f32 v{b}, v{r}, v{r+1}", f"v_cvt_pk_bf16_f32 v{b+1}, v{r+2}, v{r+3}"]
            if t == 4:
                for h in range(4): out += [f"v_cndmask_b32 v{BQ+16*i+4*h+2+p}, 0, v{14+p}, {msk[h]}" for p in range(2)]
        return out
    for n in range(NB - 1): rd(n)
    fill = []
    for n, (s, ks, t) in enumerate(seq):
        if n == 51: fill = setup
        if n >= 60 and n % 10 == 1: fill = fill + post(order[n // 10 - 6])
        lg.wait(n)
        for i in range(2):
            d = ACC + 20 * i + 4 * t
            mfma16(a, d, WB + 4 * (n % NB), XS + 16 * s + 8 * ks + 4 * i, None if n < 5 else d)
            if i == 1 and n + NB - 1 < len(seq): rd(n + NB - 1)
            for _ in range(2):
                if fill: a(fill.pop(0))
    stamp(a, prof, 4)
    a("s_nop 7")
    for x in fill + post(order[4]): a(x)
    stamp(a, prof, 5)
    a("s_barrier")
    stamp(a, prof, 6)
    for h in range(4):
        f = AF + 8 * h
        a(f"""
        ds_read_b64 {vr(f+4,2)}, v10 offset:{840*h}
        ds_read_b64 {vr(f+6,2)}, v11 offset:{840*h+32}
        ds_read_b64 {vr(f,2)}, v8 offset:{840*h}
        ds_read_b64 {vr(f+2,2)}, v9 offset:{840*h+32}
        """)
    for h in range(4):
        a(f"s_waitcnt lgkmcnt({12-4*h})")
        for i in range(2): mfma16(a, D0 + 32*i + 8*h + 4, AF + 8*h + 4, BQ + 16*i + 4*h)
        for i in range(2): mfma16(a, D0 + 32*i + 8*h, AF + 8*h, BQ + 16*i + 4*h)
    a("s_nop 1")
    for i in range(2):
        for h in range(4):
            d = D0 + 32*i + 8*h
            a(f"v_add_f32 v{d+5}, s61, v{d+5}")
        for h in range(4):
            d = D0 + 32*i + 8*h
            a(f"v_rcp_f32 v{d+5}, v{d+5}")
        o = TMP + 12 * i
        for h in range(4):
            d = D0 + 32*i + 8*h
            for r in range(5): a(f"v_mul_f32 v{d+r}, v{d+r}, v{d+5}")
            a(f"v_cvt_pk_bf16_f32 v{o+2*h}, v{d}, v{d+1}\nv_cvt_pk_bf16_f32 v{o+2*h+1}, v{d+2}, v{d+3}")
            if h & 1:
                a(f"v_cvt_pk_bf16_f32 v{o+8+(h>>1)}, v{d-8+4}, v{d+4}")
                a(f"buffer_store_dwordx4 {vr(o+2*h-2,4)}, v12, s[40:43], s{54+i} offen offset:{(h>>1)*1024} {ost}")
        a(f"buffer_store_dwordx2 {vr(o+8,2)}, v13, s[40:43], s{54+i} offen offset:2048 {ost}")
    stamp(a, prof, 7)
    a("s_branch FIN")

def kv_waves(a, prof):
    ACC, B0, B1 = 16, 96, 132
    lane_addrs(a)
    a(f"""
    s_and_b32 s54, s51, 1
    s_lshr_b32 s55, s51, 1
    s_lshl_b32 s56, s54, 13
    v_add_u32 v8, s56, v2
    v_xor_b32 v9, 64, v8
    s_mul_i32 s56, s55, 80
    s_add_u32 s56, s56, {WK}
    v_lshl_add_u32 v10, v7, 3, v3
    v_add_u32 v10, s56, v10
    v_lshrrev_b32 v4, 1, v7
    v_cmp_eq_u32 vcc, s55, v4
    v_and_b32 v4, 1, v7
    v_mul_u32_u24 v4, 40, v4
    v_mov_b32 v11, {WV-WK+32}
    v_cndmask_b32 v11, v11, 32, vcc
    v_add3_u32 v11, v11, v4, v3
    v_add_u32 v11, s56, v11
    s_mov_b32 s57, 0
    s_mov_b32 s58, 0
    """)
    for r in range(80): a(f"v_mov_b32 v{ACC+r}, 0")
    PK, P, TMP, EA, ONE, TID, GA, SEL, KA, RA = 168, 96, 216, 228, 235, 241, 242, 244, 252, 253
    WA = [236, 237, 238, 239, 240]
    a(f"""
    s_mul_i32 s3, s55, 210
    v_mul_u32_u24 v12, 5, v5
    v_add_u32 v12, s3, v12
    v_lshrrev_b32 v13, 3, v5
    v_cmp_eq_u32 s[94:95], s55, v13
    v_and_b32 v14, 1, v6
    v_mul_u32_u24 v14, 105, v14
    v_cndmask_b32 v13, v7, 4, s[94:95]
    v_mul_u32_u24 v13, 5, v13
    v_add_u32 v13, s3, v13
    v_add_u32 v{EA}, v12, v6
    v_add_u32 v{EA+1}, 105, v{EA}
    v_add_u32 v{EA+2}, v13, v6
    v_add_u32 v{EA+2}, 80, v{EA+2}
    v_add_u32 v{EA+3}, 105, v{EA+2}
    v_add3_u32 v{EA+4}, v12, v14, 4
    v_add3_u32 v{EA+5}, v13, v14, 4
    v_add_u32 v{EA+5}, 80, v{EA+5}
    s_lshl_b32 s3, s54, 13
    """)
    for i in range(6):
        a(f"""
        v_and_b32 v12, 1, v{EA+i}
        v_lshrrev_b32 v{EA+i}, 1, v{EA+i}
        v_lshl_add_u32 v12, v12, 12, s3
        v_lshl_add_u32 v{EA+i}, v{EA+i}, 4, v12
        """)
    def rep(m16, qs): return sum(m16 << (16 * q) for q in qs)
    def colmask(h): return (0xf << (4 * (h ^ 2))) | (1 << (4 * h))
    masks = []
    for hp in range(2):
        ha, hb = 2 * hp, 2 * hp + 1
        masks.append([rep(colmask(ha), range(4)), rep(colmask(hb), range(4)), rep(0xffff, [ha]), rep(0xffff, [hb]),
                      rep(colmask(ha), [ha]) | rep(colmask(hb), [hb])])
    a("s_cmp_eq_u32 s55, 0")
    for n in range(5):
        for half in range(2):
            c0, c1 = (masks[0][n] >> (32 * half)) & 0xffffffff, (masks[1][n] >> (32 * half)) & 0xffffffff
            a(f"s_mov_b32 s{84+2*n+half}, {hex(c1)}\ns_cselect_b32 s{84+2*n+half}, {hex(c0)}, s{84+2*n+half}")
    a(f"""
    v_mov_b32 v{ONE}, 0x3f803f80
    v_lshlrev_b32 v{TID}, 4, v0
    s_lshl_b32 s3, s52, 4
    s_add_u32 s48, s3, s50
    s_mul_i32 s48, s48, {PSTR}
    s_add_u32 s48, s48, {WS_PART}
    s_mul_i32 s44, s3, {PSTR}
    s_add_u32 s44, s44, {WS_PART}
    s_lshl_b32 s49, s51, 10
    s_add_u32 s44, s44, s49
    s_add_u32 s45, s44, {4*PSTR}
    s_add_u32 s46, s44, {8*PSTR}
    s_add_u32 s47, s44, {12*PSTR}
    s_cmp_lt_u32 s51, 2
    s_mov_b32 s99, {QB-2048}
    s_cselect_b32 s99, {48*1024}, s99
    s_add_u32 s99, s99, s49
    v_mul_u32_u24 v{GA}, {PSTR}, v6
    v_lshl_add_u32 v{GA}, v5, 4, v{GA}
    s_cmp_eq_u32 s51, 3
    s_cselect_b32 s3, 0x7fff0000, 0
    v_or_b32 v{GA+1}, s3, v{GA}
    v_lshrrev_b32 v12, 1, v5
    v_and_b32 v13, 1, v5
    v_lshlrev_b32 v13, 4, v13
    v_mov_b32 v14, 0x3f80
    v_lshlrev_b32 v13, v13, v14
    """)
    for r in range(8):
        a(f"v_cmp_eq_u32 vcc, {r}, v12\ns_nop 1\nv_cndmask_b32 v{SEL+r}, 0, v13, vcc")
    a(f"""
    v_lshrrev_b32 v12, 1, v6
    v_lshlrev_b32 v12, 8, v12
    v_lshl_add_u32 v12, v5, 4, v12
    v_and_b32 v13, 1, v6
    v_lshl_add_u32 v12, v13, 3, v12
    s_add_u32 s3, s49, {KVT}
    v_add_u32 v{KA}, s3, v12
    v_cmp_gt_u32 s[100:101], 210, v0
    """.replace("v_cmp_gt_u32 s[100:101], 210, v0", "v_cmp_gt_u32 vcc, 210, v0\ns_mov_b64 s[100:101], vcc"))
    fin.tile_ids(a)
    fin.wo_addr(a, WA, 12, 13, 256, 0)
    def wo(k):
        m0 = "s_mov_b32 m0, s99" if k == 12 else f"s_add_u32 m0, s49, {4096*k if k < 12 else QB+(4*k-50)*1024}"
        return f"{m0}\ns_mov_b32 s98, {(k//5)*128*1280}\nbuffer_load_dwordx4 v{WA[k%5]}, s[36:39], s98 offen lds"
    def reads(buf, ks):
        out = []
        x = [f"ds_read_b128 {vr(buf+4*i,4)}, v{8+ks} offset:{2048*i}" for i in range(4)]
        w = []
        for t, (ad, o) in enumerate([(10, 0), (10, 40), (11, 0), (10, WV-WK), (10, WV-WK+40)]):
            d = buf + 16 + 4 * t
            w += [f"ds_read_b64_tr_b16 {vr(d,2)}, v{ad} offset:{o+ks*5120}", f"ds_read_b64_tr_b16 {vr(d+2,2)}, v{ad} offset:{o+ks*5120+1280}"]
        return x[:1] + w + x[1:]
    def group(buf, fill):
        fill = list(fill)
        for i in range(4):
            for t in range(5):
                d = ACC + 20 * i + 4 * t
                mfma16(a, d, buf + 4 * i, buf + 16 + 4 * t, d)
                if fill: a(fill.pop(0))
        assert not fill
    stamp(a, prof, 1)
    a("s_waitcnt lgkmcnt(0)\ns_barrier")
    stamp(a, prof, 2)
    for r in reads(B0, 0): a(r)
    a("s_branch G_mid\nG_loop:")
    group(B1, reads(B0, 0))
    a("G_mid:\ns_waitcnt lgkmcnt(0)")
    a(f"""
    s_add_u32 s57, s57, 1
    s_cmp_eq_u32 s57, 3
    s_cselect_b32 s57, 0, s57
    s_mov_b32 s59, {SLOT}
    s_cselect_b32 s59, {-2*SLOT}, s59
    s_add_u32 s58, s58, 1
    s_cmp_lt_u32 s58, 10
    """)
    group(B0, reads(B1, 1) + [f"v_add_u32 v{8+i}, s59, v{8+i}" for i in range(4)])
    a("s_waitcnt lgkmcnt(0)\ns_barrier\ns_cbranch_scc1 G_loop")
    if opt("prio", 1): a("s_setprio 2")
    def post(i):
        b = ACC + 20 * i
        pk = PK + 24 * (i >> 1) + 2 * (i & 1)
        cv = lambda o, t: [f"v_cvt_pk_bf16_f32 v{pk+o}, v{b+4*t}, v{b+4*t+1}", f"v_cvt_pk_bf16_f32 v{pk+o+1}, v{b+4*t+2}, v{b+4*t+3}"]
        ph = phi(b, 12, TMP)
        out = ph[:6] + cv(20, 2) + ph[6:14] + ph[14:22] + cv(12, 3) + cv(16, 4) + ph[22:]
        out += [f"v_cndmask_b32 v{pk+20+p}, v{pk+20+p}, v{ONE}, s[94:95]" for p in range(2)]
        out += cv(0, 0) + cv(4, 1) + cv(8, 2) + (["s_barrier"] if i == opt("kb", 1) else []) + (["s_nop 1"] if i & 1 else [])
        if i & 1:
            k = PK + 24 * (i >> 1)
            for n, (x, y) in enumerate([(0, 12), (4, 16), (0, 20), (4, 20), (8, 12), (8, 16), (8, 20)]):
                out.append(f"v_mfma_f32_16x16x32_bf16 {vr(P+4*n,4)}, {vr(k+x,4)}, {vr(k+y,4)}, {vr(P+4*n,4) if i == 3 else 0}")
        return out
    fill = post(0) + post(1)
    for n in range(20):
        i, t = divmod(n, 5)
        d = ACC + 20 * i + 4 * t
        mfma16(a, d, B1 + 4 * i, B1 + 16 + 4 * t, d)
        if n >= 8:
            for _ in range(3): a(fill.pop(0))
    stamp(a, prof, 3)
    for x in fill + post(2) + post(3): a(x)
    a("s_nop 3")
    a(f"""
    ds_write_b128 v{EA}, {vr(P,4)}
    ds_write_b128 v{EA+1}, {vr(P+4,4)}
    s_mov_b64 exec, s[84:85]
    ds_write_b128 v{EA+2}, {vr(P+8,4)}
    s_mov_b64 exec, s[86:87]
    ds_write_b128 v{EA+3}, {vr(P+12,4)}
    s_mov_b64 exec, s[88:89]
    ds_write_b128 v{EA+4}, {vr(P+16,4)}
    s_mov_b64 exec, s[90:91]
    ds_write_b128 v{EA+4}, {vr(P+20,4)}
    s_mov_b64 exec, s[92:93]
    ds_write_b128 v{EA+5}, {vr(P+24,4)}
    s_mov_b64 exec, -1
    s_waitcnt lgkmcnt(0)
    s_barrier
    """)
    stamp(a, prof, 4)
    a(f"""
    ds_read_b128 v[16:19], v{TID}
    ds_read_b128 v[24:27], v{TID} offset:8192
    ds_read_b128 v[20:23], v{TID} offset:4096
    ds_read_b128 v[28:31], v{TID} offset:12288
    s_waitcnt lgkmcnt(2)
    """)
    for r in range(0, 4, 2): a(f"v_pk_add_f32 {vr(16+r,2)}, {vr(16+r,2)}, {vr(24+r,2)}")
    a("s_waitcnt lgkmcnt(0)")
    for r in range(4, 8, 2): a(f"v_pk_add_f32 {vr(16+r,2)}, {vr(16+r,2)}, {vr(24+r,2)}")
    for r in range(4): a(f"v_cvt_pk_bf16_f32 v{32+r}, v{16+2*r}, v{17+2*r}")
    for r in range(4): a(f"v_cndmask_b32 v{32+r}, 0, v{32+r}, s[100:101]")
    L, D = 48, 16
    a(f"buffer_store_dwordx4 v[32:35], v{TID}, s[40:43], s48 offen sc1")
    if opt("prio", 1): a("s_setprio 0")
    n1 = opt("wo1", 13)
    for k in range(n1): a(wo(k))
    for r in range(8): a(f"v_mov_b32 v{D+r}, 0")
    def issue(i):
        for g in range(4):
            a(f"buffer_load_dwordx4 {vr(L+16*i+4*g,4)}, v{GA if g < 2 else GA+1}, s[40:43], s{44+i} offen offset:{256*g} sc1")
    for i in range(4): issue(i)
    stamp(a, prof, 5)
    for k in range(n1, 25): a(wo(k))
    a("s_mov_b32 s56, 15\ns_mov_b32 s58, 0\ns_mov_b64 s[96:97], -1")
    stamp(a, prof, 7)
    a("G_poll:")
    for i in range(4):
        b = L + 16 * i
        a(f"""
        s_bitcmp1_b32 s56, {i}
        s_cbranch_scc0 G_n{i}
        s_waitcnt vmcnt({25-n1+12-4*i})
        v_max3_u32 v2, v{b}, v{b+4}, v{b+8}
        v_max_u32 v2, v2, v{b+12}
        v_cmp_eq_u32 vcc, -1, v2
        s_and_b64 vcc, vcc, s[96:97]
        s_cbranch_scc1 G_n{i}
        s_bitset0_b32 s56, {i}
        """)
        for g in range(4):
            d = D + 4 * (g >> 1)
            mfma16(a, d, SEL + 4 * (g & 1), b + 4 * g, d)
        a(f"G_n{i}:")
    a("s_cmp_eq_u32 s56, 0\ns_cbranch_scc1 G_done")
    for i in range(4):
        a(f"s_bitcmp1_b32 s56, {i}\ns_cbranch_scc0 G_r{i}")
        issue(i)
        a(f"G_r{i}:")
    a(f"""
    s_add_u32 s58, s58, 1
    s_cmp_lt_u32 s58, {fin.POLL_MAX}
    s_cselect_b64 s[96:97], -1, 0
    s_waitcnt vmcnt(0)
    s_branch G_poll
    G_done:
    s_nop 2
    s_mov_b32 s58, {QB}
    s_mov_b32 s59, 59648
    s_nop 1
    """)
    for p in range(2):
        d = D + 4 * p
        a(f"v_cvt_pk_bf16_f32 v{d}, v{d}, v{d+1}\nv_cvt_pk_bf16_f32 v{d+1}, v{d+2}, v{d+3}")
        a(f"ds_write_b64 v{KA}, {vr(d,2)} offset:{512*p}")
    a("s_waitcnt lgkmcnt(0)\ns_barrier")
    stamp(a, prof, 6)
    a("s_branch FIN")
```

```python
from common import *
import fin

RS = 2064
BROW = 24 * RS
UB = 56 * RS
US = 4608
XB = UB + 8 * US
SSM_LDS = XB + 8192
TS = 8192
LOG2E = "0x3fb8aa3b"

def cmul(a, d, x, y, t):
    a(f"v_pk_mul_f32 {vr(t,2)}, {vr(x,2)}, {vr(y,2)} op_sel:[0,0] op_sel_hi:[0,1]")
    a(f"v_pk_fma_f32 {vr(d,2)}, {vr(x,2)}, {vr(y,2)}, {vr(t,2)} op_sel:[1,1,0] op_sel_hi:[1,0,1] neg_lo:[1,0,0]")

def cmul2(a, jobs):
    for d, x, y, t in jobs:
        a(f"v_pk_mul_f32 {vr(t,2)}, {vr(x,2)}, {vr(y,2)} op_sel:[0,0] op_sel_hi:[0,1]")
    for d, x, y, t in jobs:
        a(f"v_pk_fma_f32 {vr(d,2)}, {vr(x,2)}, {vr(y,2)}, {vr(t,2)} op_sel:[1,1,0] op_sel_hi:[1,0,1] neg_lo:[1,0,0]")

def ssm_role(a, prof=False, st=""):
    lg = Q(a, "lgkmcnt", 15); vm = Q(a, "vmcnt", 63)
    R, PRM, X = 12, 28, 32
    a(f"""
    s_lshl_b32 s52, s50, 3
    s_add_u32 s52, s52, s51
    s_lshl_b32 s53, s52, 8
    v_lshl_add_u32 v2, v1, 2, s53
    s_lshl_b32 s54, s52, 1
    s_and_b32 s55, s54, 0xfffffffc
    s_load_dword s56, s[20:21], s55
    s_load_dword s57, s[22:23], s55
    global_load_dword v{PRM}, v2, s[12:13]
    global_load_dword v{PRM+1}, v2, s[14:15]
    global_load_dword v{PRM+2}, v2, s[16:17]
    global_load_dword v{PRM+3}, v2, s[18:19]
    s_and_b32 s58, s50, 7
    s_lshl_b32 s58, s58, 8
    v_lshl_add_u32 v3, v0, 2, s58
    v_and_b32 v3, 2047, v3
    v_mul_u32_u24 v251, 1280, v3
    s_lshl_b32 s59, s50, 4
    """)
    for i in range(4): vm.push("prm")
    if opt("l2pf", 1):
        fin.pf_first(a, 254); vm.push("pf")
    def gather(i):
        a(f"buffer_load_dwordx4 {vr(R+4*i,4)}, v251, s[32:35], s59 offen offset:{1280*i}")
        vm.push("g")
    late = opt("gl", 1)
    if not late:
        for i in range(4): gather(i)
    a(f"""
    v_lshlrev_b32 v3, 1, v3
    v_add_u32 v3, {UB+512}, v3
    v_and_b32 v5, 15, v1
    v_lshrrev_b32 v6, 4, v1
    s_mul_i32 s60, s51, {US}
    s_add_u32 s60, s60, {UB}
    v_mov_b32 v8, 0
    v_mov_b32 v9, 0
    v_mov_b32 v10, 0
    v_mov_b32 v11, 0
    v_lshl_add_u32 v7, v1, 3, s60
    ds_write_b64 v7, v[8:9]
    s_lshl_b32 s61, s51, 10
    s_add_u32 s61, s61, {XB}
    v_lshl_add_u32 v7, v1, 2, s61
    v_mov_b32 v50, 0x3f80
    v_mov_b32 v51, 0x3f800000
    """)
    for h in range(1, 5):
        a(f"""
        v_subrev_u32 v48, {32-h}, v1
        v_subrev_u32 v49, {33-h}, v1
        v_cmp_ge_u32 vcc, {2*h}, v48
        v_cmp_ge_u32 s[62:63], {2*h}, v49
        s_nop 0
        v_cndmask_b32 v48, 0, v50, vcc
        v_cndmask_b32 v49, 0, v51, s[62:63]
        v_or_b32 v{51+h}, v48, v49
        ds_write_b32 v7, v{51+h} offset:{256*(h-1)}
        """)
    a(f"""
    v_lshlrev_b32 v2, 3, v6
    v_sub_u32 v2, v5, v2
    v_add_u32 v2, 24, v2
    v_lshlrev_b32 v2, 2, v2
    v_add_u32 v7, s61, v2
    """)
    for h in range(1, 5):
        o = 64 * (h - 1) + (20 if h == 1 else 16)
        a(f"ds_read2_b32 {vr(X+4*(h-1),2)}, v7 offset0:{o} offset1:{o-2}")
        a(f"ds_read2_b32 {vr(X+4*(h-1)+2,2)}, v7 offset0:{o-4} offset1:{o-6}")
    a(f"""
    v_and_b32 v48, 31, v1
    v_lshrrev_b32 v49, 5, v1
    v_mul_u32_u24 v4, {RS}, v48
    s_lshl_b32 s53, s51, 8
    v_lshl_add_u32 v4, v49, 4, v4
    v_add_u32 v4, s53, v4
    s_waitcnt lgkmcnt(0)
    s_and_b32 s54, s54, 2
    s_lshl_b32 s54, s54, 3
    s_lshr_b32 s56, s56, s54
    s_lshl_b32 s56, s56, 16
    s_lshr_b32 s57, s57, s54
    s_lshl_b32 s57, s57, 16
    v_mov_b32 v60, {LOG2E}
    v_mul_f32 v61, s56, v60
    v_exp_f32 v61, v61
    s_nop 0
    v_cvt_pk_bf16_f32 v61, v61, v61
    v_and_b32 v61, 0xffff0000, v61
    v_mul_f32 v62, v61, v60
    v_mul_f32 v63, 0.15915494, v61
    v_add_f32 v61, v61, v61
    """)
    stamp(a, prof, 1)
    vm.wait("prm")
    OP, KA = 128, 192
    W1, W8, W256, A0 = 64, 66, 68, 70
    tmpi = [0]
    def put(src, rows):
        t = 56 + tmpi[0] % 4; tmpi[0] += 1
        a(f"v_cvt_pk_bf16_f32 v{t}, v{src}, v{src+1}")
        for r in rows: a(f"ds_write_addtid_b32 v{t} offset:{r*RS}")
    for p in range(2):
        for i in range(4):
            a(f"v_lshlrev_b32 v{48+i}, 16, v{PRM+i}" if p == 0 else f"v_and_b32 v{48+i}, 0xffff0000, v{PRM+i}")
        a(f"""
        v_mul_f32 v48, v48, v60
        v_exp_f32 v48, v48
        v_mul_f32 v49, v49, v63
        v_mul_f32 v{A0}, v50, v61
        v_mul_f32 v{A0+1}, v51, -v61
        v_cvt_pk_bf16_f32 v48, v48, v48
        v_and_b32 v48, 0xffff0000, v48
        v_mul_f32 v48, v48, -v62
        v_mul_f32 v50, 0x41000000, v49
        v_mul_f32 v51, 0x43800000, v49
        v_mul_f32 v52, 0x41000000, v48
        v_mul_f32 v53, 0x43800000, v48
        v_fract_f32 v49, v49
        v_fract_f32 v50, v50
        v_fract_f32 v51, v51
        v_exp_f32 v48, v48
        v_exp_f32 v52, v52
        v_exp_f32 v53, v53
        v_cos_f32 v{W1}, v49
        v_sin_f32 v{W1+1}, v49
        v_cos_f32 v{W8}, v50
        v_sin_f32 v{W8+1}, v50
        v_cos_f32 v{W256}, v51
        v_sin_f32 v{W256+1}, v51
        s_mov_b32 m0, s53
        v_mul_f32 v{W1}, v{W1}, v48
        v_mul_f32 v{W1+1}, v{W1+1}, -v48
        v_mul_f32 v{W8}, v{W8}, v52
        v_mul_f32 v{W8+1}, v{W8+1}, v52
        v_mul_f32 v{W256}, v{W256}, v53
        v_mul_f32 v{W256+1}, v{W256+1}, -v53
        """)
        rowA = {0:[0],1:[1],2:[2],3:[3],4:[4,8],5:[5],6:[6],7:[7],8:[12],256:[9],258:[10],260:[11,13],262:[14],264:[15],
                516:[16],520:[17],1032:[18],1544:[19],772:[20],776:[21],1288:[22],1800:[23]}
        reg = {0: A0}; nxt = [72]
        def R_(t):
            reg[t] = nxt[0]; nxt[0] += 2; return reg[t]
        W2, W512, T0, T1, T2 = 118, 120, 122, 124, 126
        cmul2(a, [(R_(1), A0, W1, T0), (W2, W1, W1, T1), (W512, W256, W256, T2)])
        put(A0, rowA[0])
        for t in (2, 4, 6):
            cmul2(a, [(R_(t), reg[t-2], W2, T0), (R_(t+1), reg[t-1], W2, T1), (R_(254+t), reg[t-2], W256, T2)])
            put(reg[t-1], rowA[t-1])
            put(reg[t], rowA[t]); put(reg[254+t], rowA[254+t])
        cmul2(a, [(R_(8), reg[6], W2, T0), (R_(262), reg[6], W256, T1), (R_(516), reg[4], W512, T2)])
        put(reg[7], rowA[7])
        cmul2(a, [(R_(264), reg[8], W256, T0), (R_(520), reg[8], W512, T1), (R_(772), reg[260], W512, T2)])
        for t in (8, 262, 516): put(reg[t], rowA[t])
        cmul2(a, [(R_(776), reg[264], W512, T0), (R_(1032), reg[520], W512, T1), (W2, W8, W8, T2)])
        for t in (264, 520, 772): put(reg[t], rowA[t])
        B3, W32 = 114, 116
        cmul2(a, [(R_(1288), reg[776], W512, T0), (R_(1544), reg[1032], W512, T1), (B3, W2, W8, T2)])
        for t in (776, 1032): put(reg[t], rowA[t])
        cmul2(a, [(R_(1800), reg[1288], W512, T0), (W32, W2, W2, T1)])
        for t in (1288, 1544, 1800): put(reg[t], rowA[t])
        assert nxt[0] <= 114
        if late: gather(2 * p)
        a(f"s_add_u32 m0, s53, {BROW}\nv_mov_b32 v55, 0x3f80")
        if p == 0: a("ds_write_addtid_b32 v55 offset:0")
        cur = [W8, W2, B3, W32]
        buf = [[72, 74, 76, 78], [80, 82, 84, 86]]
        tmp = [88, 90, 92, 94]
        for g in range(8):
            n = 4 if g < 6 else (3 if g == 6 else 0)
            new = buf[g & 1]
            cmul2(a, [(new[i], cur[i], W32, tmp[i]) for i in range(n)])
            for i in range(4 if g < 7 else 3): put(cur[i], [4*g+1+i])
            cur = new
        if late: gather(2 * p + 1)
        for ks in range(8):
            a(f"ds_read_b128 {vr(OP+8*ks,4)}, v4 offset:{32*ks}")
            a(f"ds_read_b128 {vr(OP+8*ks+4,4)}, v4 offset:{BROW+32*ks}")
        for ks in range(8):
            a(f"s_waitcnt lgkmcnt({14-2*ks})")
            mfma32(a, KA, OP+8*ks, OP+8*ks+4, None if (p == 0 and ks == 0) else KA)
    stamp(a, prof, 2)
    a(f"""
    s_lshl_b32 s53, s51, 13
    v_lshl_add_u32 v48, v1, 4, s53
    v_and_b32 v49, 31, v1
    v_lshrrev_b32 v50, 5, v1
    v_lshlrev_b32 v51, 5, v49
    v_lshl_add_u32 v51, v50, 4, v51
    v_add_u32 v51, s53, v51
    v_and_b32 v52, 1, v1
    v_lshlrev_b32 v52, 8, v52
    v_lshl_add_u32 v52, v50, 6, v52
    v_and_b32 v53, 30, v1
    v_lshl_add_u32 v52, v53, 1, v52
    v_add_u32 v52, s53, v52
    v_lshl_add_u32 v53, v1, 1, s53
    v_mov_b32 v54, s53
    s_barrier
    ds_write_b128 v48, v[8:11]
    ds_write_b128 v48, v[8:11] offset:2112
    ds_write_b128 v48, v[8:11] offset:3136
    s_mov_b64 exec, 1
    s_nop 3
    v_add_f32 v{KA}, s57, v{KA}
    v_cvt_pk_bf16_f32 v55, v{KA}, 0
    ds_write_b32 v54, v55 offset:60
    s_mov_b64 exec, -1
    """)
    for i in range(4): a(f"v_cvt_pk_bf16_f32 v{56+i}, v{KA+i+1}, v{KA+i}")
    a("ds_write_b128 v51, v[56:59] offset:64")
    for i, (lo, hi) in enumerate([(5,5),(6,5),(7,6),(7,7)]): a(f"v_cvt_pk_bf16_f32 v{60+i}, v{KA+lo}, v{KA+hi}")
    a(f"""
    ds_write_b128 v51, v[60:63] offset:1088
    v_cvt_pk_bf16_f32 v64, v{KA+8}, v{KA+9}
    v_cvt_pk_bf16_f32 v65, v{KA+10}, v{KA+11}
    ds_write_b32 v52, v64 offset:{2240+64}
    ds_write_b16 v53, v65 offset:{2752+64}
    ds_write_b16_d16_hi v53, v65 offset:{2752+64+128}
    v_and_b32 v66, 0xffff0000, v63
    v_lshrrev_b32 v67, 16, v64
    v_and_b32 v69, 0xffff0000, v64
    v_or_b32 v68, v67, v69
    s_mov_b32 exec_lo, 0
    s_mov_b32 exec_hi, 0x80000000
    ds_write_b32 v54, v63 offset:2112
    ds_write_b32 v54, v63 offset:2116
    ds_write_b32 v54, v66 offset:2120
    ds_write_b32 v54, v67 offset:3144
    ds_write_b32 v54, v68 offset:3148
    ds_write_b32 v54, v69 offset:3152
    s_mov_b64 exec, -1
    s_add_u32 s54, s53, 4
    v_add_u32 v2, s54, v2
    v_add_u32 v4, 1024, v2
    v_add_u32 v7, 2048, v2
    v_add_u32 v8, 3072, v2
    v_lshlrev_b32 v9, 2, v6
    v_sub_u32 v9, v5, v9
    s_add_u32 s54, s53, {2240+52}
    v_lshl_add_u32 v9, v9, 2, s54
    """)
    T, E, ACC, F, BX, PK, OUT = 48, 120, 160, 192, 228, 12, 24
    def rd2(d, addr, o, step):
        a(f"ds_read2_b32 {vr(d,2)}, v{addr} offset0:{o+3*step} offset1:{o+2*step}")
        a(f"ds_read2_b32 {vr(d+2,2)}, v{addr} offset0:{o+step} offset1:{o}")
    Treg = {}
    for n, m in enumerate(list(range(0, 34, 2))):
        Treg[m] = T + 4 * n
        rd2(Treg[m], {0: 2, 1: 4, 2: 7}[m // 16], 16 * (m % 16), 2)
    TFIX = T + 68
    rd2(TFIX, 8, 0, 2)
    EA = {d: E + 4 * (d - 2) for d in (2, 3, 4)}
    EB = {d: E + 12 + 4 * (d - 2) for d in (2, 3, 4)}
    E3 = {d: E + 24 + 4 * (d - 4) for d in (4, 5, 6, 7)}
    for d in (2, 3, 4):
        rd2(EA[d], 9, 16 * (d - 2), 1); rd2(EB[d], 9, 64 + 16 * (d - 2), 1)
    for d in (4, 5, 6, 7): rd2(E3[d], 9, 128 + 16 * (d - 4), 1)
    stamp(a, prof, 3)
    a("s_mov_b32 s62, 0x05040100\ns_mov_b32 s63, 0x07060302")
    a("s_waitcnt vmcnt(0)")
    for c in range(8):
        d, s = c >> 1, 62 + (c & 1)
        t = F + 2 * c
        a(f"v_perm_b32 v{t}, v{R+4+d}, v{R+d}, s{s}\nv_perm_b32 v{t+1}, v{R+12+d}, v{R+8+d}, s{s}")
        a(f"ds_write_b64 v3, {vr(t,2)} offset:{c*US}")
    a(f"""
    v_lshlrev_b32 v2, 5, v5
    v_and_b32 v4, 1, v6
    v_lshl_add_u32 v4, v4, 9, v2
    v_lshrrev_b32 v7, 1, v6
    v_lshl_add_u32 v4, v7, 4, v4
    v_lshl_add_u32 v2, v6, 4, v2
    v_add_u32 v2, s60, v2
    s_lshl_b32 s53, s52, 12
    s_add_u32 s53, s53, {WS_BT}
    s_mul_i32 s44, s64, 5120
    s_mul_i32 s45, s64, {32*1280}
    s_add_u32 s46, s45, {256*1280}
    s_add_u32 s47, s45, {512*1280}
    """)
    fin.tile_ids(a)
    WA = [28, 29, 30, 31, 252]
    fin.wo_addr(a, WA, 7, 8)
    a("s_waitcnt lgkmcnt(0)\ns_barrier")
    stamp(a, prof, 4)
    G = F + 32
    def ldF(j, mu):
        a(f"ds_read_b128 {vr(F+2*mu,4)}, v2 offset:{480+512*j-32*mu}"); lg.push(("F", j, mu))
    def ldG(j):
        a(f"ds_read_b128 {vr(G,4)}, v2 offset:{464+512*j}"); lg.push(("G", j))
    ldF(0, 0); ldG(0)
    for mu in range(2, 16, 2): ldF(0, mu)
    started = set()
    def acc(i, x, y):
        mfma16(a, ACC+4*i, x, y, ACC+4*i if i in started else None); started.add(i)
    def store(i):
        o = OUT + 2 * (i & 1)
        a(f"v_cvt_pk_bf16_f32 v{o}, v{ACC+4*i}, v{ACC+4*i+1}\nv_cvt_pk_bf16_f32 v{o+1}, v{ACC+4*i+2}, v{ACC+4*i+3}")
        if i & 1:
            a(f"s_nop 1\nv_permlane16_swap_b32 v{OUT}, v{OUT+2}\nv_permlane16_swap_b32 v{OUT+1}, v{OUT+3}")
            a(f"buffer_store_dwordx4 {vr(OUT,4)}, v4, s[40:43], s53 offen offset:{512*(i-1)} sc1")
    for j in range(8):
        lg.wait(("F", j, 0))
        if j <= 5:
            mfma16(a, BX, F, X); mfma16(a, BX+4, F, X+4)
            if j <= 3: mfma16(a, BX+16, F, X+8)
            lg.wait(("G", j))
            mfma16(a, BX+8, G, X); mfma16(a, BX+12, G, X+4)
            if j <= 3: mfma16(a, BX+20, G, X+12)
        acc(j, Treg[0], F)
        if j <= 6: acc(j+1, Treg[16], F)
        if j <= 5: acc(j+2, Treg[32], F)
        if j <= 3: acc(j+4, TFIX, F)
        if j < 7: ldF(j+1, 0)
        if j + 1 <= 5: ldG(j+1)
        for mu in range(2, 16, 2):
            lg.wait(("F", j, mu))
            acc(j, Treg[mu], F+2*mu)
            if j <= 6: acc(j+1, Treg[mu+16], F+2*mu)
            if j < 7: ldF(j+1, mu)
            if mu == 2 and j > 0: store(j-1)
            if mu == 4 and j == 6: fin.ready_issue(a, 252, 253)
            if j < 2 and mu >= 6: a(fin.wo_group(WA, 44, 45 + j, 40960 * j)[(mu - 6) // 2])
            if j == 2 and mu == 10:
                a("s_cmp_ge_u32 s64, 4\ns_cbranch_scc1 S_nodma")
                for x in fin.wo_group(WA, 44, 47, 81920): a(x)
                a("S_nodma:")
            if j <= 5 and mu in (4, 6) or j <= 3 and mu == 8:
                k = (mu - 4) // 2
                for r in range(4): a(f"v_cvt_pk_bf16_f32 v{PK+4*k+r}, v{BX+8*k+r}, v{BX+8*k+4+r}")
        for d in (2, 3, 4):
            if j + d <= 7: acc(j+d, PK, EA[d])
        for d in (4, 5, 6, 7):
            if j + d <= 7: acc(j+d, PK+8, E3[d])
        for d in (2, 3, 4):
            if j + d <= 7: acc(j+d, PK+4, EB[d])
    fin.ready_wait(a, 252, 253, 44)
    a("s_nop 4")
    store(7)
    stamp(a, prof, 5)
    a("s_branch FIN_B")
```

```python
import sys
sys.path.insert(0, "work")
from common import *
from gen import kernel_text, kd
import ssm, gemm, fin

NAME = "gated_mix__linear_attn_block__ssm_conv_s4d__prompt_kernel"

def body(prof=False):
    a = Asm()
    if prof: a("s_memrealtime s[66:67]\ns_memtime s[70:71]")
    a("""
    s_load_dwordx16 s[4:19], s[0:1], 0
    s_load_dwordx8 s[20:27], s[0:1], 64
    s_load_dwordx4 s[28:31], s[0:1], 96
    v_lshrrev_b32 v2, 6, v0
    v_and_b32 v1, 63, v0
    s_cmp_ge_u32 s2, 256
    s_cbranch_scc1 K_end
    v_readfirstlane_b32 s51, v2
    s_lshl_b32 s65, s2, 3
    s_mov_b32 s64, s51
    """)
    if opt("cpf", 1):
        a("""
        s_cmp_lg_u32 s51, 0
        s_cbranch_scc1 K_nopf
        s_getpc_b64 s[44:45]
        K_pc:
        s_and_b32 s3, s2, 0xf8
        v_add_u32 v2, s3, v1
        v_lshlrev_b32 v2, 7, v2
        v_min_u32 v2, K_end-K_pc, v2
        s_mov_b64 exec, 0xff
        global_load_dword v255, v2, s[44:45]
        s_mov_b64 exec, -1
        K_nopf:
        """)
    a("""
    s_waitcnt lgkmcnt(0)
    s_add_u32 s65, s65, s51
    """)
    srd(a, 32, 4, 2621440)
    srd(a, 40, 30, WS_SIZE)
    a("""
    s_cmp_ge_u32 s2, 208
    s_cbranch_scc1 K_help
    s_cmp_ge_u32 s2, 128
    s_cbranch_scc1 K_ssm
    """)
    gemm.gemm_role(a, prof)
    a("""
    K_ssm:
    s_sub_u32 s3, s2, 128
    s_and_b32 s50, s3, 7
    s_lshr_b32 s3, s3, 3
    s_mul_i32 s50, s50, 10
    s_add_u32 s50, s50, s3
    """)
    ssm.ssm_role(a, prof)
    a("K_help:")
    fin.tile_ids(a)
    fin.help_role(a, prof)
    fin.final(a, prof)
    a("K_end:\ns_endpgm")
    return a.text()

def build(prof=False, header="", NAME=NAME):
    return (header + "; @launch grid=(256,1,1) block=(512,1,1) lds=163840\n" +
            '.amdgcn_target "amdgcn-amd-amdhsa--gfx950"\n.text\n' + kernel_text(NAME, body(prof)) +
            '.section .rodata,"a"\n' + kd(NAME, 256, 102))

if __name__ == "__main__":
    for kv in sys.argv[3:]: OPT[kv.split("=")[0]] = int(kv.split("=")[1])
    hdr = open("cdna_kernels/" + NAME[:-7] + ".s.ref").read().split("; Override")[0] if len(sys.argv) > 2 else ""
    open(sys.argv[1], "w").write(build(header=hdr))
```

```python
from common import *

POLL_MAX = 1 << 14
TILE_IDS = ["s_and_b32 s62, s2, 7", "s_lshl_b32 s62, s62, 2", "s_lshr_b32 s63, s2, 6", "s_add_u32 s62, s62, s63",
            "s_bfe_u32 s63, s2, 0x30003"]

def tile_ids(a):
    for x in TILE_IDS: a(x)

def wo_addr(a, regs, t0, t1, step=64, vid=1):
    srd(a, 36, 8, 819200)
    a("s_mul_i32 s3, s63, 160")
    for i, r in enumerate(regs):
        a(f"""
        v_add_u32 v{t0}, {step*i}, v{vid}
        v_mul_u32_u24 v{t1}, 6554, v{t0}
        v_lshrrev_b32 v{t1}, 16, v{t1}
        v_mul_u32_u24 v{t1}, {1280-160}, v{t1}
        v_lshl_add_u32 v{t0}, v{t0}, 4, v{t1}
        v_add_u32 v{r}, s3, v{t0}
        """)

def wo_group(regs, sl, sg, dl):
    return [f"s_add_u32 m0, s{sl}, {dl + 1024*i}\ns_nop 0\nbuffer_load_dwordx4 v{r}, s[36:39], s{sg} offen lds" for i, r in enumerate(regs)]

def ready_set(a, va, vd, wave=0, n=48, off=0):
    l = a.label("rds")
    a(f"""
    s_cmp_lg_u32 s64, {wave}
    s_cbranch_scc1 {l}
    v_mov_b32 v{va}, {off}
    v_mov_b32 v{vd}, 1
    s_mov_b64 exec, 1
    global_atomic_add v{vd}, v{va}, v{vd}, s[28:29] sc0 sc1
    s_waitcnt vmcnt(0)
    v_cmp_eq_u32 vcc, {n-1}, v{vd}
    s_cbranch_vccz {l}x
    global_store_dword v{va}, v{vd}, s[28:29] offset:128 sc1
    {l}x:
    s_mov_b64 exec, -1
    {l}:
    """)

def ready_issue(a, va, vd, wave=0):
    l = a.label("rdi")
    a(f"v_mov_b32 v{va}, 0\nv_mov_b32 v{vd}, 1\ns_cmp_lg_u32 s64, {wave}\ns_cbranch_scc1 {l}")
    a(f"global_load_dword v{vd}, v{va}, s[28:29] offset:128 sc1\n{l}:")

def ready_wait(a, va, vd, st, newer=0):
    l = a.label("rdy")
    a(f"""
    s_mov_b32 s{st}, 0
    s_waitcnt vmcnt({newer})
    {l}:
    v_cmp_eq_u32 vcc, 0, v{vd}
    s_cbranch_vccz {l}x
    s_sleep 4
    global_load_dword v{vd}, v{va}, s[28:29] offset:128 sc1
    s_add_u32 s{st}, s{st}, 1
    s_cmp_lt_u32 s{st}, {POLL_MAX}
    s_waitcnt vmcnt(0)
    s_cbranch_scc1 {l}
    {l}x:
    """)

def l2_prefetch(a, sn, vd):
    l = a.label("pf")
    a(f"""
    s_cmp_ge_u32 s{sn}, 108
    s_cbranch_scc1 {l}q
    s_mul_i32 s44, s{sn}, 3641
    s_lshr_b32 s44, s44, 16
    s_mul_i32 s45, s44, 18
    s_sub_u32 s45, s{sn}, s45
    s_lshl_b32 s44, s44, 2
    s_lshr_b32 s44, 0x948631, s44
    s_and_b32 s44, s44, 15
    s_cmp_ge_u32 s45, 8
    s_cbranch_scc1 {l}w
    s_and_b32 s46, s2, 3
    s_lshl_b32 s46, s46, 3
    s_add_u32 s46, s46, s45
    s_mul_i32 s46, s46, {64*1280}
    s_lshl_b32 s44, s44, 7
    s_add_u32 s46, s46, s44
    v_mul_u32_u24 v{vd}, 1280, v1
    buffer_load_dword v{vd}, v{vd}, s[32:35], s46 offen
    s_branch {l}x
    {l}q:
    s_sub_u32 s45, s{sn}, 108
    s_mul_i32 s44, s45, 13108
    s_lshr_b32 s44, s44, 16
    s_mul_i32 s46, s44, 5
    s_sub_u32 s45, s45, s46
    s_branch {l}v
    {l}w:
    s_cmp_ge_u32 s45, 13
    s_cselect_b32 s46, 7, 2
    s_add_u32 s45, s45, s46
    {l}v:
    s_mul_i32 s44, s44, {64*3840}
    s_lshl_b32 s45, s45, 7
    s_add_u32 s44, s44, s45
    s_bfe_u32 s45, s2, 0x10002
    s_mul_i32 s45, s45, 640
    s_add_u32 s44, s44, s45
    v_mul_u32_u24 v{vd}, 3840, v1
    v_add_u32 v{vd}, s44, v{vd}
    global_load_dword v{vd}, v{vd}, s[6:7]
    {l}x:
    """)

def pf_first(a, vd):
    a("s_lshr_b32 s47, s2, 3\ns_lshl_b32 s3, s64, 4\ns_add_u32 s47, s47, s3\ns_sub_u32 s47, s47, 16")
    l2_prefetch(a, 47, vd)

def help_role(a, prof):
    if opt("l2pf", 1):
        pf_first(a, 254)
        a("s_lshr_b32 s47, s2, 3\ns_mul_i32 s3, s64, 6\ns_add_u32 s47, s47, s3\ns_add_u32 s47, s47, 102\ns_cmp_ge_u32 s47, 158\ns_cbranch_scc1 H_gate")
        l2_prefetch(a, 47, 253)
        a("H_gate:")
        if opt("pfw", 0): a("s_waitcnt vmcnt(0)")
    a("""
    s_sub_u32 s50, s2, 208
    s_lshl_b32 s52, s50, 3
    s_add_u32 s52, s52, s64
    s_and_b32 s3, s2, 3
    s_lshl_b32 s3, s3, 1
    s_bfe_u32 s44, s2, 0x10002
    s_add_u32 s3, s3, s44
    s_lshl_b32 s3, s3, 2
    s_lshr_b32 s44, s50, 3
    s_add_u32 s3, s3, s44
    s_lshl_b32 s3, s3, 3
    s_add_u32 s3, s3, s64
    s_lshl_b32 s3, s3, 3
    v_lshrrev_b32 v2, 3, v1
    v_add_u32 v2, s3, v2
    v_mul_u32_u24 v3, 1280, v2
    v_and_b32 v4, 7, v1
    v_lshlrev_b32 v5, 4, v4
    v_add_u32 v3, v3, v5
    v_lshlrev_b32 v2, 2, v2
    """)
    def gstore(v):
        a(f"""
        v_cmp_eq_u32 vcc, 0, v4
        s_mov_b32 s3, {WS_G}
        s_and_saveexec_b64 s[44:45], vcc
        buffer_store_dword v{v}, v2, s[40:43], s3 offen sc1
        s_mov_b64 exec, -1
        """)
    def gate():
        a("s_cmp_ge_u32 s50, 32\ns_cbranch_scc1 H_nogate")
        for i in range(10):
            a(f"global_load_dwordx4 {vr(8+8*i,4)}, v5, s[24:25] offset:{128*i}")
            a(f"buffer_load_dwordx4 {vr(12+8*i,4)}, v3, s[32:35], 0 offen offset:{128*i}")
        a("v_mov_b32 v6, 0\nv_mov_b32 v7, 0")
        for i in range(10):
            a(f"s_waitcnt vmcnt({18-2*i})")
            for r in range(4): a(f"v_dot2c_f32_bf16 v{6+(r&1)}, v{8+8*i+r}, v{12+8*i+r}")
        a("""
        s_nop 2
        v_add_f32 v6, v6, v7
        s_nop 1
        v_add_f32 v6, v6, v6 quad_perm:[1,0,3,2] row_mask:0xf bank_mask:0xf
        s_nop 1
        v_add_f32 v6, v6, v6 quad_perm:[2,3,0,1] row_mask:0xf bank_mask:0xf
        s_nop 1
        v_add_f32 v6, v6, v6 row_half_mirror row_mask:0xf bank_mask:0xf
        v_mul_f32 v6, 0xbfb8aa3b, v6
        v_exp_f32 v6, v6
        s_nop 0
        v_add_f32 v6, 1.0, v6
        v_rcp_f32 v6, v6
        s_nop 0
        v_and_b32 v6, 0x7fffffff, v6
        """)
        gstore(6)
        a("H_nogate:")
    first = opt("gfirst", 0)
    if first: gate()
    a(f"""
    v_mov_b32 v96, -1
    v_mov_b32 v97, -1
    v_mov_b32 v98, -1
    v_mov_b32 v99, -1
    v_lshlrev_b32 v100, 4, v1
    s_lshl_b32 s46, s52, 13
    s_add_u32 s46, s46, {WS_O}
    s_add_u32 s47, s46, 4096
    s_cmp_ge_u32 s50, 32
    s_cbranch_scc1 H_fill
    """)
    if not first: gstore(96)
    a("H_fill:")
    for i in range(8): a(f"buffer_store_dwordx4 v[96:99], v100, s[40:43], s{46+(i>>2)} offen offset:{(i&3)*1024} sc1")
    W = [101, 102, 103, 104, 105]
    wo_addr(a, W, 6, 7)
    stamp(a, prof, 1)
    a("s_waitcnt vmcnt(0)\ns_barrier")
    ready_set(a, 6, 7)
    stamp(a, prof, 2)
    if not first: gate()
    a(f"s_mul_i32 s44, s64, 5120\ns_mul_i32 s45, s64, {32*1280}")
    stamp(a, prof, 3)
    for g in range(3):
        if g == 2: a("s_cmp_ge_u32 s64, 4\ns_cbranch_scc1 H_wait")
        for x in wo_group(W, 44, 45, 40960 * g): a(x)
        a(f"s_add_u32 s45, s45, {256*1280}")
    a("H_wait:\ns_waitcnt vmcnt(0)")
    ready_issue(a, 252, 253)
    ready_wait(a, 252, 253, 44)
    a("s_barrier")
    stamp(a, prof, 7)
    a("FIN_B:\ns_mov_b32 s58, 51200\ns_mov_b32 s59, 102400")

def final(a, prof):
    FR, OF, ACC, BR, BF = 88, 28, 68, 12, 20
    NP = 21
    a(f"""
    FIN:
    s_and_b32 s44, s64, 3
    s_lshr_b32 s45, s64, 2
    s_lshl_b32 s46, s62, 2
    s_add_u32 s46, s46, s44
    s_lshl_b32 s47, s46, 1
    s_add_u32 s47, s47, s45
    s_mul_i32 s47, s47, {4*2560}
    s_add_u32 s47, s47, {WS_O}
    s_add_u32 s48, s47, 2560
    s_add_u32 s49, s47, 5120
    s_add_u32 s50, s47, 7680
    s_mul_i32 s51, s63, 80
    s_lshl_b32 s52, s45, 5
    s_add_u32 s51, s51, s52
    s_lshl_b32 s52, s51, 12
    s_lshl_b32 s53, s46, 5
    s_add_u32 s52, s52, s53
    s_add_u32 s52, s52, {WS_BT}
    s_add_u32 s53, s52, {32*4096}
    s_lshl_b32 s54, s46, 6
    s_add_u32 s54, s54, {WS_G}
    v_lshlrev_b32 v4, 4, v1
    v_lshlrev_b32 v5, 3, v1
    v_lshrrev_b32 v6, 1, v1
    v_lshlrev_b32 v6, 12, v6
    v_and_b32 v7, 1, v1
    v_lshl_add_u32 v6, v7, 4, v6
    v_lshrrev_b32 v7, 5, v1
    v_cmp_gt_u32 vcc, s45, v7
    v_and_b32 v8, 15, v1
    v_lshlrev_b32 v9, 2, v8
    v_mov_b32 v7, 0x7fff0000
    v_cndmask_b32 v7, v7, v6, vcc
    v_mov_b32 v{BF+1}, v9
    v_mov_b32 v{BF}, 0
    """)
    def issueC():
        a(f"buffer_load_dwordx4 {vr(BR,4)}, v6, s[40:43], s52 offen sc1")
        a(f"buffer_load_dwordx4 {vr(BR+4,4)}, v7, s[40:43], s53 offen sc1")
    def issue(c):
        o = OF + 20 * c
        for g in range(2):
            s = 47 + 2 * c + g
            a(f"buffer_load_dwordx2 {vr(o+16+2*g,2)}, v5, s[40:43], s{s} offen offset:2048 sc1")
            a(f"buffer_load_dwordx4 {vr(o+8*g,4)}, v4, s[40:43], s{s} offen sc1")
            a(f"buffer_load_dwordx4 {vr(o+8*g+4,4)}, v4, s[40:43], s{s} offen offset:1024 sc1")
    stamp(a, prof, 8)
    a(f"""
    s_mul_i32 s55, s45, s58
    v_and_b32 v27, 3, v1
    v_lshrrev_b32 v2, 2, v1
    v_mul_u32_u24 v2, 160, v2
    v_add_u32 v2, s55, v2
    v_bfe_u32 v10, v1, 2, 2
    v_mul_u32_u24 v10, 20, v10
    v_lshrrev_b32 v9, 4, v1
    v_add3_u32 v10, v10, v9, 16
    v_mul_u32_u24 v10, 160, v10
    v_add_u32 v10, s55, v10
    v_lshl_add_u32 v3, v27, 3, v2
    v_lshl_add_u32 v11, v27, 3, v10
    v_lshrrev_b32 v0, 1, v27
    v_lshlrev_b32 v0, 3, v0
    v_lshl_add_u32 v0, v27, 4, v0
    v_add_u32 v2, v2, v0
    v_add_u32 v10, v10, v0
    v_xor_b32 v0, 8, v2
    v_xor_b32 v27, 8, v10
    """)
    def rd(c, n, d):
        ks, j = divmod(n, 5)
        out = []
        for half in range(2):
            if ks < 4: ad, o = (2, 0, 2, 0, 3)[j], (80 * (ks >> 1) + 20 * (2 * (ks & 1) + half)) * 160
            else: ad, o = (10, 27, 10, 27, 11)[j], 80 * half * 160
            out.append(f"ds_read_b64_tr_b16 {vr(d+2*half,2)}, v{ad} offset:{c*25600 + o + 64*(j>>1)}")
        return "\n".join(out)
    a(f"""
    s_mov_b32 s97, 0
    s_cmp_ge_u32 s2, 208
    s_cbranch_scc1 F_pre
    s_cmp_ge_u32 s2, 128
    s_cbranch_scc1 F_ssm
    s_cmp_eq_u32 s45, 0
    s_cbranch_scc1 F_pre
    s_barrier
    s_branch F_pre
    F_ssm:
    s_waitcnt vmcnt(0)
    s_barrier
    s_cmp_lg_u32 s64, 1
    s_cbranch_scc1 F_pre
    s_mov_b32 s97, 1
    v_mov_b32 v25, 1
    s_mov_b64 exec, 1
    global_atomic_add v25, v{BF}, v25, s[28:29] offset:64 sc0 sc1
    s_mov_b64 exec, -1
    F_pre:
    buffer_load_dword v26, v{BF+1}, s[40:43], s54 offen sc1
    """)
    def freg(c, n): return FR + 4 * NP * c + 4 * (n % NP)
    for c in range(2):
        for n in range(NP):
            a(rd(c, n, freg(c, n)))
            if c == 0 and n < 20: a(f"v_mov_b32 v{ACC+n}, 0")
        if c == 0:
            a(f"""
            s_cmp_eq_u32 s97, 0
            s_cbranch_scc1 F_pre2
            s_waitcnt vmcnt(0)
            v_readfirstlane_b32 s97, v25
            s_cmp_lg_u32 s97, 79
            s_cbranch_scc1 F_pre2
            s_mov_b64 exec, 1
            global_store_dword v{BF}, v25, s[28:29] offset:192 sc1
            s_mov_b64 exec, -1
            F_pre2:
            """)
    a(f"""
    s_mov_b32 s56, 3
    s_mov_b32 s57, 0
    s_mov_b64 s[60:61], -1
    s_lshl_b32 s55, s64, 11
    s_add_u32 s55, s55, s59
    s_waitcnt vmcnt(0) lgkmcnt(0)
    """)
    stamp(a, prof, 9)
    a(f"""
    F_gw:
    v_cmp_eq_u32 vcc, -1, v26
    s_cbranch_vccz F_gok
    s_sleep 8
    buffer_load_dword v26, v{BF+1}, s[40:43], s54 offen sc1
    s_add_u32 s57, s57, 1
    s_cmp_lt_u32 s57, {POLL_MAX}
    s_waitcnt vmcnt(0)
    s_cbranch_scc1 F_gw
    F_gok:
    s_mov_b32 s57, 0
    s_cmp_ge_u32 s2, 128
    s_cbranch_scc1 F_other
    s_cmp_lg_u32 s45, 0
    s_cbranch_scc1 F_go
    s_barrier
    s_branch F_go
    F_other:
    s_cmp_lg_u32 s64, 0
    s_cbranch_scc1 F_go
    v_mul_u32_u24 v1, 160, v4
    s_mov_b64 exec, 0xff
    F_idle:
    buffer_load_dword v25, v1, s[40:43], s47 offen sc1
    s_add_u32 s57, s57, 1
    s_cmp_ge_u32 s57, {POLL_MAX}
    s_waitcnt vmcnt(0)
    s_cbranch_scc1 F_seen
    v_cmp_{"eq" if opt("pall", 0) else "ne"}_u32 vcc, -1, v25
    s_cbranch_vcc{"z" if opt("pall", 0) else "nz"} F_seen
    s_sleep 2
    s_branch F_idle
    F_seen:
    s_mov_b64 exec, -1
    s_mov_b32 s57, 0
    F_go:
    s_barrier
    """)
    bflag = f"global_load_dword v25, v{BF}, s[28:29] offset:192 sc1"
    a(bflag)
    issue(0); issue(1)
    stamp(a, prof, 10)
    def block(c):
        o = OF + 20 * c
        a(f"""
        s_bitcmp1_b32 s56, {c}
        s_cbranch_scc0 F_n{c}
        s_waitcnt vmcnt({8-6*c})
        v_max3_u32 v1, v{o}, v{o+4}, v{o+8}
        v_max3_u32 v1, v1, v{o+12}, v{o+16}
        v_max_u32 v1, v1, v{o+18}
        v_cmp_eq_u32 vcc, -1, v1
        s_and_b64 vcc, vcc, s[60:61]
        s_cbranch_scc1 F_n{c}
        s_bitset0_b32 s56, {c}
        """)
        for n in range(25):
            ks, j = divmod(n, 5)
            if n == NP: a("s_waitcnt lgkmcnt(0)")
            mfma16(a, ACC + 4 * j, freg(c, n), o + 4 * ks, ACC + 4 * j)
            if 2 <= n < 2 + 25 - NP: a(rd(c, NP + n - 2, freg(c, NP + n - 2)))
        a(f"F_n{c}:")
    a(f"""
    s_waitcnt vmcnt(12)
    v_readfirstlane_b32 s96, v25
    s_cmp_lg_u32 s96, 0
    s_cbranch_scc1 F_bnow
    {bflag}
    {bflag}
    s_branch F_loop
    F_bnow:
    """)
    issueC()
    a("F_loop:")
    block(0); block(1)
    a(f"""
    s_cmp_eq_u32 s56, 0
    s_cbranch_scc1 F_done
    s_bitcmp1_b32 s56, 0
    s_cbranch_scc0 F_r1
    """)
    issue(0)
    a("F_r1:\ns_bitcmp1_b32 s56, 1\ns_cbranch_scc0 F_r2")
    issue(1)
    a(f"""
    F_r2:
    s_add_u32 s57, s57, 1
    s_cmp_lt_u32 s57, {POLL_MAX}
    s_cselect_b64 s[60:61], -1, 0
    s_waitcnt vmcnt(0)
    s_branch F_loop
    F_done:
    """)
    stamp(a, prof, 13)
    a(f"""
    s_cmp_lg_u32 s96, 0
    s_cbranch_scc1 F_bin
    s_mov_b32 s57, 0
    F_bw:
    s_waitcnt vmcnt(0)
    v_cmp_eq_u32 vcc, 0, v25
    s_cbranch_vccz F_bok
    {bflag}
    s_add_u32 s57, s57, 1
    s_cmp_lt_u32 s57, {POLL_MAX}
    s_cbranch_scc1 F_bw
    F_bok:
    """)
    issueC()
    a(f"""
    F_bin:
    v_lshrrev_b32 v0, 1, v9
    v_lshlrev_b32 v0, 7, v0
    v_lshl_add_u32 v0, v9, 8, v0
    v_lshl_add_u32 v0, v8, 3, v0
    v_add_u32 v0, s55, v0
    v_add_u32 v1, s55, v4
    v_xor_b32 v2, 128, v0
    v_add_u32 v3, s55, v5
    s_waitcnt vmcnt(0)
    ds_write_b128 v1, {vr(BR,4)}
    ds_write_b128 v1, {vr(BR+4,4)} offset:1024
    ds_read_b64_tr_b16 {vr(BF,2)}, v0
    ds_read_b64_tr_b16 {vr(BF+2,2)}, v2
    ds_read_b64_tr_b16 {vr(BF+4,2)}, v3 offset:1024
    """)
    stamp(a, prof, 11)
    srd(a, 36, 26, 2621440)
    a(f"""
    s_mul_i32 s55, s44, 5120
    s_add_u32 s55, s55, s59
    s_add_u32 s55, s55, 16384
    v_add_u32 v2, s55, v4
    v_mul_u32_u24 v3, 1280, v8
    v_lshl_add_u32 v10, v9, 3, v3
    v_lshl_add_u32 v3, v9, 4, v3
    s_mul_i32 s46, s46, {16*1280}
    s_lshl_b32 s51, s51, 1
    s_add_u32 s46, s46, s51
    v_cmp_lt_u32 vcc, 1, v9
    s_cmp_eq_u32 s45, 0
    s_cbranch_scc0 F_hi
    """)
    T, P = FR, FR + 16
    def finish(mine, other):
        for j in other: a(f"ds_write_b128 v2, {vr(ACC+4*j,4)} offset:{1024*j}")
        a("s_waitcnt lgkmcnt(0)\ns_barrier")
        for i, j in enumerate(mine): a(f"ds_read_b128 {vr(T+4*i,4)}, v2 offset:{1024*j}")
        for i, j in enumerate(mine):
            for p in range(2):
                b, d = BF + 2 * i + p, ACC + 4 * j + 2 * p
                a(f"v_lshlrev_b32 v{P+4*i+2*p}, 16, v{b}\nv_and_b32 v{P+4*i+2*p+1}, 0xffff0000, v{b}")
                a(f"v_sub_f32 v{d}, v{d}, v{P+4*i+2*p}\nv_sub_f32 v{d+1}, v{d+1}, v{P+4*i+2*p+1}")
        for i, j in enumerate(mine):
            a(f"s_waitcnt lgkmcnt({len(mine)-1-i})")
            for r in range(4): a(f"v_add_f32 v{ACC+4*j+r}, v{ACC+4*j+r}, v{T+4*i+r}")
            for r in range(4): a(f"v_fmac_f32 v{P+4*i+r}, v{ACC+4*j+r}, v26")
            for p in range(2): a(f"v_cvt_pk_bf16_f32 v{BF+2*i+p}, v{P+4*i+2*p}, v{P+4*i+2*p+1}")
            if i == 1:
                for p in range(4): a(f"v_cndmask_b32 v{BR+p}, v{BF+p}, v{BF+(p^2)}, vcc")
                a(f"buffer_store_dwordx4 {vr(BR,4)}, v3, s[36:39], s46 offen")
            if i == 2: a(f"buffer_store_dwordx2 {vr(BF+4,2)}, v10, s[36:39], s46 offen offset:64")
        stamp(a, prof, 12)
        stamp_out(a, prof, 14, 65)
        a("s_endpgm")
    finish([0, 1], [2, 3, 4])
    a("F_hi:")
    finish([2, 3, 4], [0, 1])
```

```python
from common import *
import fin

SLOT = 36880
WK, WV = 16384, 16384 + 10240 + 16
QB = 3 * SLOT
Q2 = QB - 51200
KVT = 51200
PSTR = 4096
LOG2E = "0x3fb8aa3b"
EPS = "0x358637bd"

def qloc(s):
    return QB + s * 10240 if s < 5 else Q2 + (s - 5) * 10240

def phi(r, n, tmp):
    out = [f"v_mul_f32 v{tmp+i}, s60, v{r+i}" for i in range(n)]
    for i in range(n): out += [f"v_exp_f32 v{tmp+i}, v{tmp+i} clamp", f"v_max_f32 v{r+i}, s61, v{r+i}"]
    return out + [f"v_add_f32 v{r+i}, v{r+i}, v{tmp+i}" for i in range(n)]

def gemm_role(a, prof=False, ost="sc1"):
    a(f"""
    s_and_b32 s3, s2, 7
    s_lshr_b32 s54, s2, 3
    s_and_b32 s50, s3, 3
    s_lshl_b32 s50, s50, 2
    s_and_b32 s55, s54, 3
    s_add_u32 s50, s50, s55
    s_lshr_b32 s52, s3, 2
    s_lshl_b32 s52, s52, 2
    s_lshr_b32 s54, s54, 2
    s_add_u32 s52, s52, s54
    s_add_u32 s53, s54, s55
    s_and_b32 s53, s53, 3
    s_mul_i32 s53, s53, 5
    s_lshr_b32 s53, s53, 1
    s_mov_b32 s60, {LOG2E}
    s_mov_b32 s61, {EPS}
    s_cmp_lt_u32 s51, 4
    s_cbranch_scc1 G_kv
    """)
    q_waves(a, prof, ost)
    a("G_kv:")
    kv_waves(a, prof)

def lane_addrs(a):
    a("""
    v_and_b32 v5, 15, v1
    v_lshrrev_b32 v6, 4, v1
    v_and_b32 v7, 3, v1
    v_lshrrev_b32 v2, 1, v5
    v_xor_b32 v2, v2, v6
    v_lshlrev_b32 v2, 4, v2
    v_lshl_add_u32 v2, v5, 7, v2
    v_bfe_u32 v3, v1, 2, 3
    v_lshrrev_b32 v4, 5, v1
    v_lshl_add_u32 v3, v4, 4, v3
    v_mul_u32_u24 v3, 160, v3
    """)

def q_waves(a, prof, ost):
    vm = Q(a, "vmcnt", 63); lg = Q(a, "lgkmcnt", 15)
    XO, WO, XS, ACC, WB = 8, 12, 20, 180, 220
    srd(a, 36, 6, 2457600)
    a(f"""
    s_sub_u32 s51, s51, 4
    s_lshl_b32 s54, s50, 2
    s_add_u32 s54, s54, s51
    s_mul_i32 s54, s54, {32*1280}
    v_lshrrev_b32 v2, 3, v1
    v_mul_u32_u24 v2, 1280, v2
    v_lshrrev_b32 v3, 4, v1
    v_and_b32 v4, 7, v1
    v_xor_b32 v3, v3, v4
    v_lshl_add_u32 v2, v3, 4, v2
    v_add_u32 v{XO}, s54, v2
    v_xor_b32 v2, 64, v2
    s_add_u32 s54, s54, {8*1280}
    v_add_u32 v{XO+1}, s54, v2
    v_add_u32 v{XO+2}, {16*1280}, v{XO}
    v_add_u32 v{XO+3}, {16*1280}, v{XO+1}
    s_lshl_b32 s44, s51, 12
    s_lshl_b32 s46, s53, 7
    """)
    def ldx(slot):
        for i in range(4):
            a(f"s_add_u32 m0, s44, {slot*SLOT + i*1024}\ns_nop 0\nbuffer_load_dwordx4 v{XO+i}, s[32:35], s46 offen lds")
    ldx(0)
    a(f"""
    s_and_b32 s54, s51, 1
    s_lshr_b32 s55, s51, 1
    s_mul_i32 s56, s54, {32*3840}
    s_mul_i32 s57, s52, 160
    s_add_u32 s56, s56, s57
    s_mul_i32 s45, s54, 5120
    s_mul_i32 s57, s55, {WV-WK}
    s_add_u32 s48, s45, s57
    s_add_u32 s48, s48, {WK}
    s_mul_i32 s49, s55, 1280
    s_add_u32 s49, s49, 1280
    s_mul_i32 s47, s53, {64*3840}
    s_add_u32 s47, s47, s49
    """)
    for i in range(5):
        a(f"""
        v_add_u32 v2, {64*i}, v1
        v_mul_u32_u24 v3, 6554, v2
        v_lshrrev_b32 v3, 16, v3
        v_mul_u32_u24 v4, 10, v3
        v_sub_u32 v2, v2, v4
        v_lshrrev_b32 v4, 1, v3
        v_xor_b32 v4, v4, v3
        v_and_b32 v4, 4, v4
        v_mul_u32_u24 v4, 3, v4
        v_xor_b32 v3, v3, v4
        v_mul_u32_u24 v3, 3840, v3
        v_lshl_add_u32 v2, v2, 4, v3
        v_add_u32 v{WO+i}, s56, v2
        s_add_u32 m0, s48, {i*1024}
        s_nop 0
        buffer_load_dwordx4 v{WO+i}, s[36:39], s47 offen lds
        """)
    def adv():
        a(f"""
        s_add_u32 s46, s46, 128
        s_add_u32 s47, s47, {64*3840}
        s_cmp_eq_u32 s46, 1280
        s_cselect_b32 s46, 0, s46
        s_cselect_b32 s47, s49, s47
        """)
    def stage(s):
        adv(); ldx(s % 3)
        for i in range(5):
            a(f"s_add_u32 m0, s48, {(s%3)*SLOT + i*1024}\ns_nop 0\nbuffer_load_dwordx4 v{WO+i}, s[36:39], s47 offen lds")
        for i in range(9): vm.push(("S", s))
    def qpair(n):
        a(f"""
        s_add_u32 s57, s53, s55
        s_add_u32 s57, s57, {2*n}
        s_cmp_ge_u32 s57, 10
        s_cselect_b32 s58, 10, 0
        s_sub_u32 s57, s57, s58
        s_mul_i32 s57, s57, {64*3840}
        s_cmp_eq_u32 s55, 0
        s_mov_b32 s58, {qloc(2*n+1)}
        s_cselect_b32 s58, {qloc(2*n)}, s58
        s_add_u32 s58, s58, s45
        """)
        for i in range(5):
            a(f"s_add_u32 m0, s58, {i*1024}\ns_nop 0\nbuffer_load_dwordx4 v{WO+i}, s[36:39], s57 offen lds")
            vm.push(("Q", n))
    for i in range(9): vm.push(("S", 0))
    stage(1); stage(2)
    lane_addrs(a)
    a(f"""
    v_add_u32 v2, s44, v2
    v_xor_b32 v4, 64, v2
    v_add_u32 v18, {2*SLOT}, v2
    v_add_u32 v19, {2*SLOT}, v4
    v_mul_u32_u24 v17, 40, v7
    v_add3_u32 v17, v17, v3, 32
    v_lshl_add_u32 v3, v7, 3, v3
    """)
    stamp(a, prof, 1)
    for s in range(10):
        vm.wait(("S", s))
        a("s_waitcnt lgkmcnt(0)\ns_barrier")
        if s == 0: stamp(a, prof, 2)
        if 1 <= s <= 7: stage(s + 2)
        if s == 7: qpair(0); qpair(1)
        if s == 8: qpair(2)
        if s == 9:
            qpair(3); qpair(4)
            a("v_mov_b32 v248, 0\nglobal_load_dword v249, v248, s[28:29] offset:128 sc1"); vm.push("R")
        for ks in range(2):
            for i in range(2):
                ad = (2, 4)[ks] if s % 3 < 2 else (18, 19)[ks]
                a(f"ds_read_b128 {vr(XS+16*s+8*ks+4*i,4)}, v{ad} offset:{(s%3%2)*SLOT + i*2048}")
    a(f"v_add_u32 v18, {QB}, v3\nv_add_u32 v19, {QB}, v17\nv_add_u32 v3, {Q2}, v3\nv_add_u32 v17, {Q2}, v17")
    vm.wait(("Q", 0))
    a("s_waitcnt lgkmcnt(0)\ns_barrier")
    stamp(a, prof, 3)
    NB = 7
    BQ, AF, D0, TMP = 20, 52, 84, 148
    T8 = 52
    order = (4, 0, 1, 2, 3)
    seq = [(s, ks, t) for s in range(5) for ks in range(2) for t in range(5)]
    seq += [(s, ks, t) for t in order for s in range(5, 10) for ks in range(2)]
    def rd(n):
        s, ks, t = seq[n]
        if n == 20:
            vm.wait(("Q", 2)); a("s_barrier")
        if n == 50:
            vm.q = []; fin.ready_wait(a, 248, 249, 58); lg.drain(); a("s_barrier")
        ad = ((18, 19), (3, 17))[s >= 5][t == 4]
        o = (s % 5) * 10240 + ks * 5120 + (40 * t if t < 4 else 0)
        d = WB + 4 * (n % NB)
        a(f"ds_read_b64_tr_b16 {vr(d,2)}, v{ad} offset:{o}\nds_read_b64_tr_b16 {vr(d+2,2)}, v{ad} offset:{o+1280}")
        lg.push(None); lg.push(n)
    msk = ["s[44:45]", "s[46:47]", "s[48:49]", "s[56:57]"]
    setup = f"""
    v_mul_u32_u24 v9, 40, v5
    v_add_u32 v9, {KVT}, v9
    v_lshl_add_u32 v8, v6, 3, v9
    v_lshrrev_b32 v11, 2, v5
    v_cmp_eq_u32 vcc, 0, v7
    v_mov_b32 v12, 4
    v_cmp_eq_u32 s[44:45], 0, v6
    v_cndmask_b32 v11, v12, v11, vcc
    v_cmp_eq_u32 s[46:47], 1, v6
    v_mul_u32_u24 v11, 40, v11
    v_cmp_eq_u32 s[48:49], 2, v6
    v_add_u32 v11, {KVT+640}, v11
    v_cmp_eq_u32 s[56:57], 3, v6
    v_lshl_add_u32 v10, v6, 3, v11
    v_lshlrev_b32 v12, 4, v1
    v_lshlrev_b32 v13, 3, v1
    s_lshl_b32 s54, s50, 3
    s_lshl_b32 s55, s51, 1
    s_add_u32 s54, s54, s55
    s_lshl_b32 s54, s54, 3
    s_add_u32 s54, s54, s52
    s_mul_i32 s54, s54, 2560
    s_add_u32 s54, s54, {WS_O}
    s_add_u32 s55, s54, {8*2560}
    """.strip().split("\n") + fin.TILE_IDS + [f"s_mov_b32 s58, {QB}", f"s_mov_b32 s59, 59648"]
    def post(t):
        out = []
        for i in range(2):
            r = ACC + 20 * i + 4 * t
            out += phi(r, 4, T8 + 4 * i)
            b = 14 if t == 4 else BQ + 16 * i + 4 * t
            out += [f"v_cvt_pk_bf16_f32 v{b}, v{r}, v{r+1}", f"v_cvt_pk_bf16_f32 v{b+1}, v{r+2}, v{r+3}"]
            if t == 4:
                for h in range(4): out += [f"v_cndmask_b32 v{BQ+16*i+4*h+2+p}, 0, v{14+p}, {msk[h]}" for p in range(2)]
        return out
    for n in range(NB - 1): rd(n)
    fill = []
    for n, (s, ks, t) in enumerate(seq):
        if n == 51: fill = setup
        if n >= 60 and n % 10 == 1: fill = fill + post(order[n // 10 - 6])
        lg.wait(n)
        for i in range(2):
            d = ACC + 20 * i + 4 * t
            mfma16(a, d, WB + 4 * (n % NB), XS + 16 * s + 8 * ks + 4 * i, None if n < 5 else d)
            if i == 1 and n + NB - 1 < len(seq): rd(n + NB - 1)
            for _ in range(2):
                if fill: a(fill.pop(0))
    stamp(a, prof, 4)
    a("s_nop 7")
    for x in fill + post(order[4]): a(x)
    stamp(a, prof, 5)
    a("s_barrier")
    stamp(a, prof, 6)
    for h in range(4):
        f = AF + 8 * h
        a(f"""
        ds_read_b64 {vr(f+4,2)}, v10 offset:{840*h}
        ds_read_b64 {vr(f+6,2)}, v11 offset:{840*h+32}
        ds_read_b64 {vr(f,2)}, v8 offset:{840*h}
        ds_read_b64 {vr(f+2,2)}, v9 offset:{840*h+32}
        """)
    for h in range(4):
        a(f"s_waitcnt lgkmcnt({12-4*h})")
        for i in range(2): mfma16(a, D0 + 32*i + 8*h + 4, AF + 8*h + 4, BQ + 16*i + 4*h)
        for i in range(2): mfma16(a, D0 + 32*i + 8*h, AF + 8*h, BQ + 16*i + 4*h)
    a("s_nop 1")
    for i in range(2):
        for h in range(4):
            d = D0 + 32*i + 8*h
            a(f"v_add_f32 v{d+5}, s61, v{d+5}")
        for h in range(4):
            d = D0 + 32*i + 8*h
            a(f"v_rcp_f32 v{d+5}, v{d+5}")
        o = TMP + 12 * i
        for h in range(4):
            d = D0 + 32*i + 8*h
            for r in range(5): a(f"v_mul_f32 v{d+r}, v{d+r}, v{d+5}")
            a(f"v_cvt_pk_bf16_f32 v{o+2*h}, v{d}, v{d+1}\nv_cvt_pk_bf16_f32 v{o+2*h+1}, v{d+2}, v{d+3}")
            if h & 1:
                a(f"v_cvt_pk_bf16_f32 v{o+8+(h>>1)}, v{d-8+4}, v{d+4}")
                a(f"buffer_store_dwordx4 {vr(o+2*h-2,4)}, v12, s[40:43], s{54+i} offen offset:{(h>>1)*1024} {ost}")
        a(f"buffer_store_dwordx2 {vr(o+8,2)}, v13, s[40:43], s{54+i} offen offset:2048 {ost}")
    stamp(a, prof, 7)
    a("s_branch FIN")

def kv_waves(a, prof):
    ACC, B0, B1 = 16, 96, 132
    lane_addrs(a)
    a(f"""
    s_and_b32 s54, s51, 1
    s_lshr_b32 s55, s51, 1
    s_lshl_b32 s56, s54, 13
    v_add_u32 v8, s56, v2
    v_xor_b32 v9, 64, v8
    s_mul_i32 s56, s55, 80
    s_add_u32 s56, s56, {WK}
    v_lshl_add_u32 v10, v7, 3, v3
    v_add_u32 v10, s56, v10
    v_lshrrev_b32 v4, 1, v7
    v_cmp_eq_u32 vcc, s55, v4
    v_and_b32 v4, 1, v7
    v_mul_u32_u24 v4, 40, v4
    v_mov_b32 v11, {WV-WK+32}
    v_cndmask_b32 v11, v11, 32, vcc
    v_add3_u32 v11, v11, v4, v3
    v_add_u32 v11, s56, v11
    s_mov_b32 s57, 0
    s_mov_b32 s58, 0
    """)
    for r in range(80): a(f"v_mov_b32 v{ACC+r}, 0")
    PK, P, TMP, EA, ONE, TID, GA, SEL, KA, RA = 168, 96, 216, 228, 235, 241, 242, 244, 252, 253
    WA = [236, 237, 238, 239, 240]
    a(f"""
    s_mul_i32 s3, s55, 210
    v_mul_u32_u24 v12, 5, v5
    v_add_u32 v12, s3, v12
    v_lshrrev_b32 v13, 3, v5
    v_cmp_eq_u32 s[94:95], s55, v13
    v_and_b32 v14, 1, v6
    v_mul_u32_u24 v14, 105, v14
    v_cndmask_b32 v13, v7, 4, s[94:95]
    v_mul_u32_u24 v13, 5, v13
    v_add_u32 v13, s3, v13
    v_add_u32 v{EA}, v12, v6
    v_add_u32 v{EA+1}, 105, v{EA}
    v_add_u32 v{EA+2}, v13, v6
    v_add_u32 v{EA+2}, 80, v{EA+2}
    v_add_u32 v{EA+3}, 105, v{EA+2}
    v_add3_u32 v{EA+4}, v12, v14, 4
    v_add3_u32 v{EA+5}, v13, v14, 4
    v_add_u32 v{EA+5}, 80, v{EA+5}
    s_lshl_b32 s3, s54, 13
    """)
    for i in range(6):
        a(f"""
        v_and_b32 v12, 1, v{EA+i}
        v_lshrrev_b32 v{EA+i}, 1, v{EA+i}
        v_lshl_add_u32 v12, v12, 12, s3
        v_lshl_add_u32 v{EA+i}, v{EA+i}, 4, v12
        """)
    def rep(m16, qs): return sum(m16 << (16 * q) for q in qs)
    def colmask(h): return (0xf << (4 * (h ^ 2))) | (1 << (4 * h))
    masks = []
    for hp in range(2):
        ha, hb = 2 * hp, 2 * hp + 1
        masks.append([rep(colmask(ha), range(4)), rep(colmask(hb), range(4)), rep(0xffff, [ha]), rep(0xffff, [hb]),
                      rep(colmask(ha), [ha]) | rep(colmask(hb), [hb])])
    a("s_cmp_eq_u32 s55, 0")
    for n in range(5):
        for half in range(2):
            c0, c1 = (masks[0][n] >> (32 * half)) & 0xffffffff, (masks[1][n] >> (32 * half)) & 0xffffffff
            a(f"s_mov_b32 s{84+2*n+half}, {hex(c1)}\ns_cselect_b32 s{84+2*n+half}, {hex(c0)}, s{84+2*n+half}")
    a(f"""
    v_mov_b32 v{ONE}, 0x3f803f80
    v_lshlrev_b32 v{TID}, 4, v0
    s_lshl_b32 s3, s52, 4
    s_add_u32 s48, s3, s50
    s_mul_i32 s48, s48, {PSTR}
    s_add_u32 s48, s48, {WS_PART}
    s_mul_i32 s44, s3, {PSTR}
    s_add_u32 s44, s44, {WS_PART}
    s_lshl_b32 s49, s51, 10
    s_add_u32 s44, s44, s49
    s_add_u32 s45, s44, {4*PSTR}
    s_add_u32 s46, s44, {8*PSTR}
    s_add_u32 s47, s44, {12*PSTR}
    s_cmp_lt_u32 s51, 2
    s_mov_b32 s99, {QB-2048}
    s_cselect_b32 s99, {48*1024}, s99
    s_add_u32 s99, s99, s49
    v_mul_u32_u24 v{GA}, {PSTR}, v6
    v_lshl_add_u32 v{GA}, v5, 4, v{GA}
    s_cmp_eq_u32 s51, 3
    s_cselect_b32 s3, 0x7fff0000, 0
    v_or_b32 v{GA+1}, s3, v{GA}
    v_lshrrev_b32 v12, 1, v5
    v_and_b32 v13, 1, v5
    v_lshlrev_b32 v13, 4, v13
    v_mov_b32 v14, 0x3f80
    v_lshlrev_b32 v13, v13, v14
    """)
    for r in range(8):
        a(f"v_cmp_eq_u32 vcc, {r}, v12\ns_nop 1\nv_cndmask_b32 v{SEL+r}, 0, v13, vcc")
    a(f"""
    v_lshrrev_b32 v12, 1, v6
    v_lshlrev_b32 v12, 8, v12
    v_lshl_add_u32 v12, v5, 4, v12
    v_and_b32 v13, 1, v6
    v_lshl_add_u32 v12, v13, 3, v12
    s_add_u32 s3, s49, {KVT}
    v_add_u32 v{KA}, s3, v12
    v_cmp_gt_u32 s[100:101], 210, v0
    """.replace("v_cmp_gt_u32 s[100:101], 210, v0", "v_cmp_gt_u32 vcc, 210, v0\ns_mov_b64 s[100:101], vcc"))
    fin.tile_ids(a)
    fin.wo_addr(a, WA, 12, 13, 256, 0)
    def wo(k):
        m0 = "s_mov_b32 m0, s99" if k == 12 else f"s_add_u32 m0, s49, {4096*k if k < 12 else QB+(4*k-50)*1024}"
        return f"{m0}\ns_mov_b32 s98, {(k//5)*128*1280}\nbuffer_load_dwordx4 v{WA[k%5]}, s[36:39], s98 offen lds"
    def reads(buf, ks):
        out = []
        x = [f"ds_read_b128 {vr(buf+4*i,4)}, v{8+ks} offset:{2048*i}" for i in range(4)]
        w = []
        for t, (ad, o) in enumerate([(10, 0), (10, 40), (11, 0), (10, WV-WK), (10, WV-WK+40)]):
            d = buf + 16 + 4 * t
            w += [f"ds_read_b64_tr_b16 {vr(d,2)}, v{ad} offset:{o+ks*5120}", f"ds_read_b64_tr_b16 {vr(d+2,2)}, v{ad} offset:{o+ks*5120+1280}"]
        return x[:1] + w + x[1:]
    def group(buf, fill):
        fill = list(fill)
        for i in range(4):
            for t in range(5):
                d = ACC + 20 * i + 4 * t
                mfma16(a, d, buf + 4 * i, buf + 16 + 4 * t, d)
                if fill: a(fill.pop(0))
        assert not fill
    stamp(a, prof, 1)
    a("s_waitcnt lgkmcnt(0)\ns_barrier")
    stamp(a, prof, 2)
    for r in reads(B0, 0): a(r)
    a("s_branch G_mid\nG_loop:")
    group(B1, reads(B0, 0))
    a("G_mid:\ns_waitcnt lgkmcnt(0)")
    a(f"""
    s_add_u32 s57, s57, 1
    s_cmp_eq_u32 s57, 3
    s_cselect_b32 s57, 0, s57
    s_mov_b32 s59, {SLOT}
    s_cselect_b32 s59, {-2*SLOT}, s59
    s_add_u32 s58, s58, 1
    s_cmp_lt_u32 s58, 10
    """)
    group(B0, reads(B1, 1) + [f"v_add_u32 v{8+i}, s59, v{8+i}" for i in range(4)])
    a("s_waitcnt lgkmcnt(0)\ns_barrier\ns_cbranch_scc1 G_loop")
    if opt("prio", 1): a("s_setprio 2")
    def post(i):
        b = ACC + 20 * i
        pk = PK + 24 * (i >> 1) + 2 * (i & 1)
        cv = lambda o, t: [f"v_cvt_pk_bf16_f32 v{pk+o}, v{b+4*t}, v{b+4*t+1}", f"v_cvt_pk_bf16_f32 v{pk+o+1}, v{b+4*t+2}, v{b+4*t+3}"]
        ph = phi(b, 12, TMP)
        out = ph[:12] + cv(20, 2) + ph[12:28] + cv(12, 3) + cv(16, 4) + ph[28:]
        out += [f"v_cndmask_b32 v{pk+20+p}, v{pk+20+p}, v{ONE}, s[94:95]" for p in range(2)]
        out += cv(0, 0) + cv(4, 1) + cv(8, 2) + (["s_barrier"] if i == opt("kb", 1) else []) + (["s_nop 1"] if i & 1 else [])
        if i & 1:
            k = PK + 24 * (i >> 1)
            for n, (x, y) in enumerate([(0, 12), (4, 16), (0, 20), (4, 20), (8, 12), (8, 16), (8, 20)]):
                out.append(f"v_mfma_f32_16x16x32_bf16 {vr(P+4*n,4)}, {vr(k+x,4)}, {vr(k+y,4)}, {vr(P+4*n,4) if i == 3 else 0}")
        return out
    fill = post(0) + post(1)
    for n in range(20):
        i, t = divmod(n, 5)
        d = ACC + 20 * i + 4 * t
        mfma16(a, d, B1 + 4 * i, B1 + 16 + 4 * t, d)
        if n >= 8:
            for _ in range(opt("kf", 2)): a(fill.pop(0))
    stamp(a, prof, 3)
    for x in fill + post(2) + post(3): a(x)
    a("s_nop 3")
    a(f"""
    ds_write_b128 v{EA}, {vr(P,4)}
    ds_write_b128 v{EA+1}, {vr(P+4,4)}
    s_mov_b64 exec, s[84:85]
    ds_write_b128 v{EA+2}, {vr(P+8,4)}
    s_mov_b64 exec, s[86:87]
    ds_write_b128 v{EA+3}, {vr(P+12,4)}
    s_mov_b64 exec, s[88:89]
    ds_write_b128 v{EA+4}, {vr(P+16,4)}
    s_mov_b64 exec, s[90:91]
    ds_write_b128 v{EA+4}, {vr(P+20,4)}
    s_mov_b64 exec, s[92:93]
    ds_write_b128 v{EA+5}, {vr(P+24,4)}
    s_mov_b64 exec, -1
    s_waitcnt lgkmcnt(0)
    s_barrier
    """)
    stamp(a, prof, 4)
    a(f"""
    ds_read_b128 v[16:19], v{TID}
    ds_read_b128 v[24:27], v{TID} offset:8192
    ds_read_b128 v[20:23], v{TID} offset:4096
    ds_read_b128 v[28:31], v{TID} offset:12288
    s_waitcnt lgkmcnt(2)
    """)
    for r in range(4): a(f"v_add_f32 v{16+r}, v{16+r}, v{24+r}")
    a("s_waitcnt lgkmcnt(0)")
    for r in range(4, 8): a(f"v_add_f32 v{16+r}, v{16+r}, v{24+r}")
    for r in range(4): a(f"v_cvt_pk_bf16_f32 v{32+r}, v{16+2*r}, v{17+2*r}")
    for r in range(4): a(f"v_cndmask_b32 v{32+r}, 0, v{32+r}, s[100:101]")
    L, D = 48, 16
    a(f"buffer_store_dwordx4 v[32:35], v{TID}, s[40:43], s48 offen sc1")
    if opt("prio", 1): a("s_setprio 0")
    n1 = opt("wo1", 13)
    for k in range(n1): a(wo(k))
    for r in range(8): a(f"v_mov_b32 v{D+r}, 0")
    def issue(i):
        for g in range(4):
            a(f"buffer_load_dwordx4 {vr(L+16*i+4*g,4)}, v{GA if g < 2 else GA+1}, s[40:43], s{44+i} offen offset:{256*g} sc1")
    for i in range(4): issue(i)
    stamp(a, prof, 5)
    for k in range(n1, 25): a(wo(k))
    a("s_mov_b32 s56, 15\ns_mov_b32 s58, 0\ns_mov_b64 s[96:97], -1")
    stamp(a, prof, 7)
    a("G_poll:")
    for i in range(4):
        b = L + 16 * i
        a(f"""
        s_bitcmp1_b32 s56, {i}
        s_cbranch_scc0 G_n{i}
        s_waitcnt vmcnt({25-n1+12-4*i})
        v_max3_u32 v2, v{b}, v{b+4}, v{b+8}
        v_max_u32 v2, v2, v{b+12}
        v_cmp_eq_u32 vcc, -1, v2
        s_and_b64 vcc, vcc, s[96:97]
        s_cbranch_scc1 G_n{i}
        s_bitset0_b32 s56, {i}
        """)
        for g in range(4):
            d = D + 4 * (g >> 1)
            mfma16(a, d, SEL + 4 * (g & 1), b + 4 * g, d)
        a(f"G_n{i}:")
    a("s_cmp_eq_u32 s56, 0\ns_cbranch_scc1 G_done")
    for i in range(4):
        a(f"s_bitcmp1_b32 s56, {i}\ns_cbranch_scc0 G_r{i}")
        issue(i)
        a(f"G_r{i}:")
    a(f"""
    s_add_u32 s58, s58, 1
    s_cmp_lt_u32 s58, {fin.POLL_MAX}
    s_cselect_b64 s[96:97], -1, 0
    s_waitcnt vmcnt(0)
    s_branch G_poll
    G_done:
    s_nop 2
    s_mov_b32 s58, {QB}
    s_mov_b32 s59, 59648
    s_nop 1
    """)
    for p in range(2):
        d = D + 4 * p
        a(f"v_cvt_pk_bf16_f32 v{d}, v{d}, v{d+1}\nv_cvt_pk_bf16_f32 v{d+1}, v{d+2}, v{d+3}")
        a(f"ds_write_b64 v{KA}, {vr(d,2)} offset:{512*p}")
    a("s_waitcnt lgkmcnt(0)\ns_barrier")
    stamp(a, prof, 6)
    a("s_branch FIN")
```

```python
from common import *
import fin

RS = 2064
BROW = 24 * RS
XB = 56 * RS
US = 4608
UB = 163840 - 8 * US
TB, TS = 102400, 3072
EO, FO = 2176, 2880
LOG2E = "0x3fb8aa3b"

def cmul(a, d, x, y, t):
    a(f"v_pk_mul_f32 {vr(t,2)}, {vr(x,2)}, {vr(y,2)} op_sel:[0,0] op_sel_hi:[0,1]")
    a(f"v_pk_fma_f32 {vr(d,2)}, {vr(x,2)}, {vr(y,2)}, {vr(t,2)} op_sel:[1,1,0] op_sel_hi:[1,0,1] neg_lo:[1,0,0]")

def cmul2(a, jobs):
    for d, x, y, t in jobs:
        a(f"v_pk_mul_f32 {vr(t,2)}, {vr(x,2)}, {vr(y,2)} op_sel:[0,0] op_sel_hi:[0,1]")
    for d, x, y, t in jobs:
        a(f"v_pk_fma_f32 {vr(d,2)}, {vr(x,2)}, {vr(y,2)}, {vr(t,2)} op_sel:[1,1,0] op_sel_hi:[1,0,1] neg_lo:[1,0,0]")

def ssm_role(a, prof=False, st=""):
    lg = Q(a, "lgkmcnt", 15); vm = Q(a, "vmcnt", 63)
    R, PRM, X = 12, 28, 32
    a(f"""
    s_lshl_b32 s52, s50, 3
    s_add_u32 s52, s52, s51
    s_lshl_b32 s53, s52, 8
    v_lshl_add_u32 v2, v1, 2, s53
    s_lshl_b32 s54, s52, 1
    s_and_b32 s55, s54, 0xfffffffc
    s_load_dword s56, s[20:21], s55
    s_load_dword s57, s[22:23], s55
    global_load_dword v{PRM}, v2, s[12:13]
    global_load_dword v{PRM+1}, v2, s[14:15]
    global_load_dword v{PRM+2}, v2, s[16:17]
    global_load_dword v{PRM+3}, v2, s[18:19]
    s_and_b32 s58, s50, 7
    s_lshl_b32 s58, s58, 8
    v_lshl_add_u32 v3, v0, 2, s58
    v_and_b32 v3, 2047, v3
    v_mul_u32_u24 v251, 1280, v3
    s_lshl_b32 s59, s50, 4
    """)
    for i in range(4): vm.push("prm")
    if opt("l2pf", 1):
        fin.pf_first(a, 254); vm.push("pf")
    def gather(i):
        a(f"buffer_load_dwordx4 {vr(R+4*i,4)}, v251, s[32:35], s59 offen offset:{1280*i}")
        vm.push("g")
    late = opt("gl", 1)
    if not late:
        for i in range(4): gather(i)
    a(f"""
    v_lshlrev_b32 v3, 1, v3
    v_add_u32 v3, {UB+512}, v3
    v_and_b32 v5, 15, v1
    v_lshrrev_b32 v6, 4, v1
    s_mul_i32 s60, s51, {US}
    s_add_u32 s60, s60, {UB}
    v_mov_b32 v8, 0
    v_mov_b32 v9, 0
    v_mov_b32 v10, 0
    v_mov_b32 v11, 0
    v_lshl_add_u32 v7, v1, 3, s60
    ds_write_b64 v7, v[8:9]
    s_lshl_b32 s61, s51, 10
    s_add_u32 s61, s61, {XB}
    v_lshl_add_u32 v7, v1, 2, s61
    v_mov_b32 v50, 0x3f80
    v_mov_b32 v51, 0x3f800000
    """)
    for h in range(1, 5):
        a(f"""
        v_subrev_u32 v48, {32-h}, v1
        v_subrev_u32 v49, {33-h}, v1
        v_cmp_ge_u32 vcc, {2*h}, v48
        v_cmp_ge_u32 s[62:63], {2*h}, v49
        s_nop 0
        v_cndmask_b32 v48, 0, v50, vcc
        v_cndmask_b32 v49, 0, v51, s[62:63]
        v_or_b32 v{51+h}, v48, v49
        ds_write_b32 v7, v{51+h} offset:{256*(h-1)}
        """)
    a(f"""
    v_lshlrev_b32 v2, 3, v6
    v_sub_u32 v2, v5, v2
    v_add_u32 v2, 24, v2
    v_lshlrev_b32 v2, 2, v2
    v_add_u32 v7, s61, v2
    """)
    for h in range(1, 5):
        o = 64 * (h - 1) + (20 if h == 1 else 16)
        a(f"ds_read2_b32 {vr(X+4*(h-1),2)}, v7 offset0:{o} offset1:{o-2}")
        a(f"ds_read2_b32 {vr(X+4*(h-1)+2,2)}, v7 offset0:{o-4} offset1:{o-6}")
    a(f"""
    v_and_b32 v48, 31, v1
    v_lshrrev_b32 v49, 5, v1
    v_mul_u32_u24 v4, {RS}, v48
    s_lshl_b32 s53, s51, 8
    v_lshl_add_u32 v4, v49, 4, v4
    v_add_u32 v4, s53, v4
    s_waitcnt lgkmcnt(0)
    s_and_b32 s54, s54, 2
    s_lshl_b32 s54, s54, 3
    s_lshr_b32 s56, s56, s54
    s_lshl_b32 s56, s56, 16
    s_lshr_b32 s57, s57, s54
    s_lshl_b32 s57, s57, 16
    v_mov_b32 v60, {LOG2E}
    v_mul_f32 v61, s56, v60
    v_exp_f32 v61, v61
    s_nop 0
    v_cvt_pk_bf16_f32 v61, v61, v61
    v_and_b32 v61, 0xffff0000, v61
    v_mul_f32 v62, v61, v60
    v_mul_f32 v63, 0.15915494, v61
    v_add_f32 v61, v61, v61
    """)
    stamp(a, prof, 1)
    vm.wait("prm")
    OP, KA = 128, 192
    W1, W8, W256, A0 = 64, 66, 68, 70
    tmpi = [0]
    def put(src, rows):
        t = 56 + tmpi[0] % 4; tmpi[0] += 1
        a(f"v_cvt_pk_bf16_f32 v{t}, v{src}, v{src+1}")
        for r in rows: a(f"ds_write_addtid_b32 v{t} offset:{r*RS}")
    for p in range(2):
        for i in range(4):
            a(f"v_lshlrev_b32 v{48+i}, 16, v{PRM+i}" if p == 0 else f"v_and_b32 v{48+i}, 0xffff0000, v{PRM+i}")
        a(f"""
        v_mul_f32 v48, v48, v60
        v_exp_f32 v48, v48
        v_mul_f32 v49, v49, v63
        v_mul_f32 v{A0}, v50, v61
        v_mul_f32 v{A0+1}, v51, -v61
        v_cvt_pk_bf16_f32 v48, v48, v48
        v_and_b32 v48, 0xffff0000, v48
        v_mul_f32 v48, v48, -v62
        v_mul_f32 v50, 0x41000000, v49
        v_mul_f32 v51, 0x43800000, v49
        v_mul_f32 v52, 0x41000000, v48
        v_mul_f32 v53, 0x43800000, v48
        v_fract_f32 v49, v49
        v_fract_f32 v50, v50
        v_fract_f32 v51, v51
        v_exp_f32 v48, v48
        v_exp_f32 v52, v52
        v_exp_f32 v53, v53
        v_cos_f32 v{W1}, v49
        v_sin_f32 v{W1+1}, v49
        v_cos_f32 v{W8}, v50
        v_sin_f32 v{W8+1}, v50
        v_cos_f32 v{W256}, v51
        v_sin_f32 v{W256+1}, v51
        s_mov_b32 m0, s53
        v_mul_f32 v{W1}, v{W1}, v48
        v_mul_f32 v{W1+1}, v{W1+1}, -v48
        v_mul_f32 v{W8}, v{W8}, v52
        v_mul_f32 v{W8+1}, v{W8+1}, v52
        v_mul_f32 v{W256}, v{W256}, v53
        v_mul_f32 v{W256+1}, v{W256+1}, -v53
        """)
        rowA = {0:[0],1:[1],2:[2],3:[3],4:[4,8],5:[5],6:[6],7:[7],8:[12],256:[9],258:[10],260:[11,13],262:[14],264:[15],
                516:[16],520:[17],1032:[18],1544:[19],772:[20],776:[21],1288:[22],1800:[23]}
        reg = {0: A0}; nxt = [72]
        def R_(t):
            reg[t] = nxt[0]; nxt[0] += 2; return reg[t]
        W2, W512, T0, T1, T2 = 118, 120, 122, 124, 126
        cmul2(a, [(R_(1), A0, W1, T0), (W2, W1, W1, T1), (W512, W256, W256, T2)])
        put(A0, rowA[0])
        for t in (2, 4, 6):
            cmul2(a, [(R_(t), reg[t-2], W2, T0), (R_(t+1), reg[t-1], W2, T1), (R_(254+t), reg[t-2], W256, T2)])
            put(reg[t-1], rowA[t-1])
            put(reg[t], rowA[t]); put(reg[254+t], rowA[254+t])
        cmul2(a, [(R_(8), reg[6], W2, T0), (R_(262), reg[6], W256, T1), (R_(516), reg[4], W512, T2)])
        put(reg[7], rowA[7])
        cmul2(a, [(R_(264), reg[8], W256, T0), (R_(520), reg[8], W512, T1), (R_(772), reg[260], W512, T2)])
        for t in (8, 262, 516): put(reg[t], rowA[t])
        cmul2(a, [(R_(776), reg[264], W512, T0), (R_(1032), reg[520], W512, T1), (W2, W8, W8, T2)])
        for t in (264, 520, 772): put(reg[t], rowA[t])
        B3, W32 = 114, 116
        cmul2(a, [(R_(1288), reg[776], W512, T0), (R_(1544), reg[1032], W512, T1), (B3, W2, W8, T2)])
        for t in (776, 1032): put(reg[t], rowA[t])
        cmul2(a, [(R_(1800), reg[1288], W512, T0), (W32, W2, W2, T1)])
        for t in (1288, 1544, 1800): put(reg[t], rowA[t])
        assert nxt[0] <= 114
        if late: gather(2 * p)
        a(f"s_add_u32 m0, s53, {BROW}\nv_mov_b32 v55, 0x3f80")
        if p == 0: a("ds_write_addtid_b32 v55 offset:0")
        cur = [W8, W2, B3, W32]
        buf = [[72, 74, 76, 78], [80, 82, 84, 86]]
        tmp = [88, 90, 92, 94]
        for g in range(8):
            n = 4 if g < 6 else (3 if g == 6 else 0)
            new = buf[g & 1]
            cmul2(a, [(new[i], cur[i], W32, tmp[i]) for i in range(n)])
            for i in range(4 if g < 7 else 3): put(cur[i], [4*g+1+i])
            cur = new
        if late: gather(2 * p + 1)
        for ks in range(8):
            a(f"ds_read_b128 {vr(OP+8*ks,4)}, v4 offset:{32*ks}")
            a(f"ds_read_b128 {vr(OP+8*ks+4,4)}, v4 offset:{BROW+32*ks}")
        for ks in range(8):
            a(f"s_waitcnt lgkmcnt({14-2*ks})")
            mfma32(a, KA, OP+8*ks, OP+8*ks+4, None if (p == 0 and ks == 0) else KA)
    stamp(a, prof, 2)
    a(f"""
    s_mov_b32 s46, 0x05040100
    s_mov_b32 s47, 0x07060302
    s_mul_i32 s53, s51, {TS}
    s_add_u32 s53, s53, {TB}
    v_lshl_add_u32 v48, v1, 4, s53
    v_and_b32 v49, 31, v1
    v_lshrrev_b32 v50, 5, v1
    v_lshlrev_b32 v51, 5, v49
    v_lshl_add_u32 v51, v50, 4, v51
    v_add_u32 v51, s53, v51
    v_and_b32 v52, 1, v1
    v_mul_u32_u24 v52, 192, v52
    v_lshl_add_u32 v52, v50, 6, v52
    v_and_b32 v53, 30, v1
    v_lshl_add_u32 v52, v53, 1, v52
    v_add_u32 v52, s53, v52
    v_lshl_add_u32 v53, v1, 1, s53
    v_mov_b32 v54, s53
    s_add_u32 s54, s53, 4
    v_add_u32 v2, s54, v2
    v_add_u32 v4, 1024, v2
    v_add_u32 v7, 2048, v2
    v_lshlrev_b32 v253, 2, v6
    v_sub_u32 v253, v5, v253
    s_add_u32 s54, s53, {EO+52}
    v_lshl_add_u32 v253, v253, 2, s54
    s_waitcnt vmcnt(0)
    """)
    for c in range(8):
        d, sel = c >> 1, 46 + (c & 1)
        t = 72 + 2 * c
        a(f"v_perm_b32 v{t}, v{R+4+d}, v{R+d}, s{sel}\nv_perm_b32 v{t+1}, v{R+12+d}, v{R+8+d}, s{sel}")
        a(f"ds_write_b64 v3, {vr(t,2)} offset:{c*US}")
    a(f"""
    v_lshlrev_b32 v3, 5, v5
    v_and_b32 v254, 1, v6
    v_lshl_add_u32 v254, v254, 9, v3
    v_lshrrev_b32 v12, 1, v6
    v_lshl_add_u32 v254, v12, 4, v254
    v_lshl_add_u32 v3, v6, 4, v3
    v_add_u32 v3, s60, v3
    s_lshl_b32 s53, s52, 12
    s_add_u32 s53, s53, {WS_BT}
    s_mul_i32 s44, s64, 5120
    s_mul_i32 s45, s64, {32*1280}
    s_add_u32 s46, s45, {256*1280}
    s_add_u32 s47, s45, {512*1280}
    """)
    fin.tile_ids(a)
    WA = [28, 29, 30, 31, 252]
    fin.wo_addr(a, WA, 12, 13)
    a(f"""
    s_mov_b64 exec, 1
    v_add_f32 v{KA}, s57, v{KA}
    s_mov_b64 exec, -1
    v_cvt_pk_bf16_f32 v55, v{KA}, 0
    """)
    for i in range(4): a(f"v_cvt_pk_bf16_f32 v{56+i}, v{KA+i+1}, v{KA+i}")
    for i, (lo, hi) in enumerate([(5,5),(6,5),(7,6),(7,7)]): a(f"v_cvt_pk_bf16_f32 v{60+i}, v{KA+lo}, v{KA+hi}")
    a(f"""
    v_cvt_pk_bf16_f32 v64, v{KA+8}, v{KA+9}
    v_cvt_pk_bf16_f32 v65, v{KA+10}, v{KA+11}
    v_and_b32 v66, 0xffff0000, v63
    v_lshrrev_b32 v67, 16, v64
    v_and_b32 v69, 0xffff0000, v64
    v_or_b32 v68, v67, v69
    s_waitcnt lgkmcnt(0)
    """)
    stamp(a, prof, 3)
    a(f"""
    s_barrier
    ds_write_b128 v48, v[8:11]
    ds_write_b128 v48, v[8:11] offset:2048
    ds_write_b128 v51, v[56:59] offset:64
    ds_write_b128 v51, v[60:63] offset:1088
    s_mov_b64 exec, 1
    ds_write_b32 v54, v55 offset:60
    s_mov_b64 exec, -1
    """)
    T, E, ACC, F, BX, OUT = 72, 120, 160, 192, 228, 24
    G, PK = [224, 104], [12, 108]
    T32, TFIX = 96, 100
    def treg(m): return T + 8 * ((m % 16) // 2 % 3) + (4 if m >= 16 else 0)
    def rd2(d, addr, o, step, tag):
        return [(f"ds_read2_b32 {vr(d,2)}, v{addr} offset0:{o+3*step} offset1:{o+2*step}", None),
                (f"ds_read2_b32 {vr(d+2,2)}, v{addr} offset0:{o+step} offset1:{o}", tag)]
    def ld(x): a(x[0]); lg.push(x[1])
    def rdT(mu): return rd2(treg(mu), 2, 16 * mu, 2, None) + rd2(treg(mu + 16), 4, 16 * mu, 2, ("T", mu))
    nearq = [(mu, j) for mu in range(0, 16, 2) for j in range(8)] + [(0, j) for j in range(6)]
    def ldF(n):
        mu, j = nearq[n]
        ld((f"ds_read_b128 {vr(F+4*(n%8),4)}, v3 offset:{480+512*j-32*mu}", ("F", n)))
    def ldG(j): ld((f"ds_read_b128 {vr(G[j&1],4)}, v3 offset:{464+512*j}", ("G", j)))
    for i in range(5): lg.push(None)
    for x in rdT(0): ld(x)
    for n in range(3): ldF(n)
    a(f"""
    ds_write_b32 v52, v64 offset:{EO+64}
    ds_write_b16 v53, v65 offset:{EO+384+64}
    ds_write_b16_d16_hi v53, v65 offset:{EO+384+64+128}
    s_mov_b32 exec_lo, 0
    s_mov_b32 exec_hi, 0x80000000
    ds_write2_b32 v54, v63, v63 offset0:0 offset1:1
    ds_write2_b32 v54, v66, v67 offset0:2 offset1:{(FO+72-2112)//4}
    ds_write2_b32 v54, v68, v69 offset0:{(FO+76-2112)//4} offset1:{(FO+80-2112)//4}
    s_mov_b64 exec, -1
    """.replace("s_mov_b32 exec_lo, 0", "v_add_u32 v54, 2112, v54\ns_mov_b32 exec_lo, 0"))
    for i in range(6): lg.push(None)
    for n in range(3, 7): ldF(n)
    stamp(a, prof, 4)
    if prof: lg.q = []
    EA = {d: E + 4 * (d - 2) for d in (2, 3, 4)}
    EB = {d: E + 12 + 4 * (d - 2) for d in (2, 3, 4)}
    E3 = {d: E + 24 + 4 * (d - 4) for d in (4, 5, 6, 7)}
    far = rd2(T32, 7, 0, 2, "E") + rd2(TFIX, 7, (FO - 2048) // 4, 2, "E")
    for d in (2, 3, 4): far += rd2(EA[d], 253, 16 * (d - 2), 1, "E") + rd2(EB[d], 253, 48 + 16 * (d - 2), 1, "E")
    for d in (4, 5, 6, 7): far += rd2(E3[d], 253, 96 + 16 * (d - 4), 1, "E")
    last = {}
    def mf(d, x, y, c):
        mfma16(a, d, x, y, c); last[d] = len(a.lines)
    def need(*ds):
        n = 8 - min(sum(1 for l in a.lines[last[d]:] if l.strip()) for d in ds)
        if n > 0: a(f"s_nop {n-1}")
    started = set()
    def acc(i, x, y):
        mf(ACC+4*i, x, y, ACC+4*i if i in started else None); started.add(i)
    def store(i):
        o = OUT + 2 * (i & 1)
        need(ACC + 4 * i)
        a(f"v_cvt_pk_bf16_f32 v{o}, v{ACC+4*i}, v{ACC+4*i+1}\nv_cvt_pk_bf16_f32 v{o+1}, v{ACC+4*i+2}, v{ACC+4*i+3}")
        if i & 1:
            a(f"s_nop 1\nv_permlane16_swap_b32 v{OUT}, v{OUT+2}\nv_permlane16_swap_b32 v{OUT+1}, v{OUT+3}")
            a(f"buffer_store_dwordx4 {vr(OUT,4)}, v254, s[40:43], s53 offen offset:{512*(i-1)} sc1")
    dma = fin.wo_group(WA, 44, 45, 0) + fin.wo_group(WA, 44, 46, 40960)
    tq = []
    for n in range(64):
        mu, j = nearq[n]
        if j == 0:
            lg.wait(("T", mu), ("F", n))
            tq = (rdT(mu + 2) if mu < 14 else []) + far[:4]; far = far[4:]
        else: lg.wait(("F", n))
        f = F + 4 * (n % 8)
        acc(j, treg(mu), f)
        if tq: ld(tq.pop(0))
        if j <= 6: acc(j + 1, treg(mu + 16), f)
        if n + 7 < len(nearq): ldF(n + 7)
        if n >= opt("sd", 8) and n % 4 == 1 and dma: a(dma.pop(0))
        if n == opt("sd", 8) + 44:
            a("s_cmp_ge_u32 s64, 4\ns_cbranch_scc1 S_nodma")
            for x in fin.wo_group(WA, 44, 47, 81920): a(x)
            a("S_nodma:")
        if n in (58, 60): ldG((n - 58) // 2)
    assert not far and not dma
    fin.ready_issue(a, 8, 9)
    stamp(a, prof, 6)
    if prof: lg.q = []
    def box(j):
        f = F + 4 * ((64 + j) % 8); g = G[j & 1]
        lg.wait(("F", 64 + j), ("G", j), "E")
        mf(BX, f, X, None); mf(BX+4, f, X+4, None); mf(BX+8, g, X, None); mf(BX+12, g, X+4, None)
        if j <= 3: mf(BX+16, f, X+8, None); mf(BX+20, g, X+12, None)
        if j + 2 <= 5: ldG(j + 2)
        acc(j + 2, T32, f)
        if j <= 3: acc(j + 4, TFIX, f)
    def pack(j):
        out = []
        for k in range(3 if j <= 3 else 2):
            for r in range(4): out.append(((BX+8*k, BX+8*k+4), f"v_cvt_pk_bf16_f32 v{PK[j&1]+4*k+r}, v{BX+8*k+r}, v{BX+8*k+4+r}"))
        return out
    box(0)
    store(0); store(1)
    for dep, x in pack(0): need(*dep); a(x)
    for j in range(6):
        pk = []
        if j < 5: box(j + 1); pk = pack(j + 1)
        else: a("s_nop 1")
        p = PK[j & 1]
        ops = [(j+d, p, EA[d]) for d in (2, 3, 4)] + [(j+d, p+4, EB[d]) for d in (2, 3, 4)] + [(j+d, p+8, E3[d]) for d in (4, 5, 6, 7)]
        ops = [o for o in ops if o[0] <= 7]
        ops.sort(key=lambda o: o[0] != j + 2)
        for i, o in enumerate(ops):
            acc(*o)
            for _ in range(2):
                if pk and i >= 1:
                    dep, x = pk.pop(0); need(*dep); a(x)
        for dep, x in pk: need(*dep); a(x)
        if j == 1: fin.ready_wait(a, 8, 9, 44)
        store(j + 2)
    stamp(a, prof, 5)
    a("s_branch FIN_B")
```

```python
from common import *

POLL_MAX = 1 << 14
TILE_IDS = ["s_and_b32 s62, s2, 7", "s_lshl_b32 s62, s62, 2", "s_lshr_b32 s63, s2, 6", "s_add_u32 s62, s62, s63",
            "s_bfe_u32 s63, s2, 0x30003"]

def tile_ids(a):
    for x in TILE_IDS: a(x)

def wo_addr(a, regs, t0, t1, step=64, vid=1, sd=36):
    srd(a, sd, 8, 819200)
    a("s_mul_i32 s3, s63, 160")
    for i, r in enumerate(regs):
        a(f"""
        v_add_u32 v{t0}, {step*i}, v{vid}
        v_mul_u32_u24 v{t1}, 6554, v{t0}
        v_lshrrev_b32 v{t1}, 16, v{t1}
        v_mul_u32_u24 v{t1}, {1280-160}, v{t1}
        v_lshl_add_u32 v{t0}, v{t0}, 4, v{t1}
        v_add_u32 v{r}, s3, v{t0}
        """)

def wo_group(regs, sl, sg, dl):
    return [f"s_add_u32 m0, s{sl}, {dl + 1024*i}\ns_nop 0\nbuffer_load_dwordx4 v{r}, s[36:39], s{sg} offen lds" for i, r in enumerate(regs)]

def ready_set(a, va, vd, wave=0, n=48, off=0):
    l = a.label("rds")
    a(f"""
    s_cmp_lg_u32 s64, {wave}
    s_cbranch_scc1 {l}
    v_mov_b32 v{va}, {off}
    v_mov_b32 v{vd}, 1
    s_mov_b64 exec, 1
    global_atomic_add v{vd}, v{va}, v{vd}, s[28:29] sc0 sc1
    s_waitcnt vmcnt(0)
    v_cmp_eq_u32 vcc, {n-1}, v{vd}
    s_cbranch_vccz {l}x
    global_store_dword v{va}, v{vd}, s[28:29] offset:128 sc1
    {l}x:
    s_mov_b64 exec, -1
    {l}:
    """)

def ready_issue(a, va, vd, wave=0):
    l = a.label("rdi")
    a(f"v_mov_b32 v{va}, 0\nv_mov_b32 v{vd}, 1\ns_cmp_lg_u32 s64, {wave}\ns_cbranch_scc1 {l}")
    a(f"global_load_dword v{vd}, v{va}, s[28:29] offset:128 sc1\n{l}:")

def ready_wait(a, va, vd, st, newer=0):
    l = a.label("rdy")
    a(f"""
    s_mov_b32 s{st}, 0
    s_waitcnt vmcnt({newer})
    {l}:
    v_cmp_eq_u32 vcc, 0, v{vd}
    s_cbranch_vccz {l}x
    s_sleep 4
    global_load_dword v{vd}, v{va}, s[28:29] offset:128 sc1
    s_add_u32 s{st}, s{st}, 1
    s_cmp_lt_u32 s{st}, {POLL_MAX}
    s_waitcnt vmcnt(0)
    s_cbranch_scc1 {l}
    {l}x:
    """)

def l2_prefetch(a, sn, vd):
    l = a.label("pf")
    a(f"""
    s_cmp_ge_u32 s{sn}, 108
    s_cbranch_scc1 {l}q
    s_mul_i32 s44, s{sn}, 3641
    s_lshr_b32 s44, s44, 16
    s_mul_i32 s45, s44, 18
    s_sub_u32 s45, s{sn}, s45
    s_lshl_b32 s44, s44, 2
    s_lshr_b32 s44, 0x948631, s44
    s_and_b32 s44, s44, 15
    s_cmp_ge_u32 s45, 8
    s_cbranch_scc1 {l}w
    s_and_b32 s46, s2, 3
    s_lshl_b32 s46, s46, 3
    s_add_u32 s46, s46, s45
    s_mul_i32 s46, s46, {64*1280}
    s_lshl_b32 s44, s44, 7
    s_add_u32 s46, s46, s44
    v_mul_u32_u24 v{vd}, 1280, v1
    buffer_load_dword v{vd}, v{vd}, s[32:35], s46 offen
    s_branch {l}x
    {l}q:
    s_sub_u32 s45, s{sn}, 108
    s_mul_i32 s44, s45, 13108
    s_lshr_b32 s44, s44, 16
    s_mul_i32 s46, s44, 5
    s_sub_u32 s45, s45, s46
    s_branch {l}v
    {l}w:
    s_cmp_ge_u32 s45, 13
    s_cselect_b32 s46, 7, 2
    s_add_u32 s45, s45, s46
    {l}v:
    s_mul_i32 s44, s44, {64*3840}
    s_lshl_b32 s45, s45, 7
    s_add_u32 s44, s44, s45
    s_bfe_u32 s45, s2, 0x10002
    s_mul_i32 s45, s45, 640
    s_add_u32 s44, s44, s45
    v_mul_u32_u24 v{vd}, 3840, v1
    v_add_u32 v{vd}, s44, v{vd}
    global_load_dword v{vd}, v{vd}, s[6:7]
    {l}x:
    """)

def pf_first(a, vd):
    a("s_lshr_b32 s47, s2, 3\ns_lshl_b32 s3, s64, 4\ns_add_u32 s47, s47, s3\ns_sub_u32 s47, s47, 16")
    l2_prefetch(a, 47, vd)

def help_role(a, prof):
    if opt("l2pf", 1):
        pf_first(a, 254)
        a("s_lshr_b32 s47, s2, 3\ns_mul_i32 s3, s64, 6\ns_add_u32 s47, s47, s3\ns_add_u32 s47, s47, 102\ns_cmp_ge_u32 s47, 158\ns_cbranch_scc1 H_gate")
        l2_prefetch(a, 47, 253)
        a("H_gate:")
        if opt("pfw", 0): a("s_waitcnt vmcnt(0)")
    a("""
    s_sub_u32 s50, s2, 208
    s_lshl_b32 s52, s50, 3
    s_add_u32 s52, s52, s64
    s_and_b32 s3, s2, 3
    s_lshl_b32 s3, s3, 1
    s_bfe_u32 s44, s2, 0x10002
    s_add_u32 s3, s3, s44
    s_lshl_b32 s3, s3, 2
    s_lshr_b32 s44, s50, 3
    s_add_u32 s3, s3, s44
    s_lshl_b32 s3, s3, 3
    s_add_u32 s3, s3, s64
    s_lshl_b32 s3, s3, 3
    v_lshrrev_b32 v2, 3, v1
    v_add_u32 v2, s3, v2
    v_mul_u32_u24 v3, 1280, v2
    v_and_b32 v4, 7, v1
    v_lshlrev_b32 v5, 4, v4
    v_add_u32 v3, v3, v5
    v_lshlrev_b32 v2, 2, v2
    """)
    def gstore(v):
        a(f"""
        v_cmp_eq_u32 vcc, 0, v4
        s_mov_b32 s3, {WS_G}
        s_and_saveexec_b64 s[44:45], vcc
        buffer_store_dword v{v}, v2, s[40:43], s3 offen sc1
        s_mov_b64 exec, -1
        """)
    def gate():
        a("s_cmp_ge_u32 s50, 32\ns_cbranch_scc1 H_nogate")
        for i in range(10):
            a(f"global_load_dwordx4 {vr(8+8*i,4)}, v5, s[24:25] offset:{128*i}")
            a(f"buffer_load_dwordx4 {vr(12+8*i,4)}, v3, s[32:35], 0 offen offset:{128*i}")
        a("v_mov_b32 v6, 0\nv_mov_b32 v7, 0")
        for i in range(10):
            a(f"s_waitcnt vmcnt({18-2*i})")
            for r in range(4): a(f"v_dot2c_f32_bf16 v{6+(r&1)}, v{8+8*i+r}, v{12+8*i+r}")
        a("""
        s_nop 2
        v_add_f32 v6, v6, v7
        s_nop 1
        v_add_f32 v6, v6, v6 quad_perm:[1,0,3,2] row_mask:0xf bank_mask:0xf
        s_nop 1
        v_add_f32 v6, v6, v6 quad_perm:[2,3,0,1] row_mask:0xf bank_mask:0xf
        s_nop 1
        v_add_f32 v6, v6, v6 row_half_mirror row_mask:0xf bank_mask:0xf
        v_mul_f32 v6, 0xbfb8aa3b, v6
        v_exp_f32 v6, v6
        s_nop 0
        v_add_f32 v6, 1.0, v6
        v_rcp_f32 v6, v6
        s_nop 0
        v_and_b32 v6, 0x7fffffff, v6
        """)
        gstore(6)
        a("H_nogate:")
    first = opt("gfirst", 0)
    if first: gate()
    a(f"""
    v_mov_b32 v96, -1
    v_mov_b32 v97, -1
    v_mov_b32 v98, -1
    v_mov_b32 v99, -1
    v_lshlrev_b32 v100, 4, v1
    s_add_u32 s46, s50, 1
    s_and_b32 s46, s46, 7
    s_mul_i32 s46, s46, 5
    s_lshr_b32 s47, s50, 3
    s_add_u32 s46, s46, s47
    s_cmp_ge_u32 s50, 40
    s_cselect_b32 s46, s50, s46
    s_lshl_b32 s46, s46, 3
    s_add_u32 s46, s46, s64
    s_lshl_b32 s46, s46, 13
    s_add_u32 s46, s46, {WS_O}
    s_add_u32 s47, s46, 4096
    s_cmp_ge_u32 s50, 32
    s_cbranch_scc1 H_flag
    """)
    if not first: gstore(96)
    a(f"""
    s_branch H_fill
    H_flag:
    s_lshl_b32 s3, s52, 7
    s_add_u32 s3, s3, {WS_FLAG - 256*128}
    v_lshlrev_b32 v6, 14, v1
    s_mov_b64 exec, 3
    buffer_store_dword v96, v6, s[40:43], s3 offen sc1
    s_mov_b64 exec, -1
    H_fill:
    """)
    for i in range(8): a(f"buffer_store_dwordx4 v[96:99], v100, s[40:43], s{46+(i>>2)} offen offset:{(i&3)*1024} sc1")
    W = [101, 102, 103, 104, 105]
    wo_addr(a, W, 6, 7)
    stamp(a, prof, 1)
    a("s_waitcnt vmcnt(0)\ns_barrier")
    ready_set(a, 6, 7)
    stamp(a, prof, 2)
    if not first: gate()
    a(f"s_mul_i32 s44, s64, 5120\ns_mul_i32 s45, s64, {32*1280}")
    stamp(a, prof, 3)
    for g in range(3):
        if g == 2: a("s_cmp_ge_u32 s64, 4\ns_cbranch_scc1 H_wait")
        for x in wo_group(W, 44, 45, 40960 * g): a(x)
        a(f"s_add_u32 s45, s45, {256*1280}")
    a("H_wait:\ns_waitcnt vmcnt(0)")
    ready_issue(a, 252, 253)
    ready_wait(a, 252, 253, 44)
    a("s_barrier")
    stamp(a, prof, 7)
    a("FIN_B:\ns_mov_b32 s58, 51200\ns_mov_b32 s59, 102400")

def final(a, prof):
    FR, OF, ACC, BR, BF = 88, 28, 68, 12, 20
    NP = 21
    a(f"""
    FIN:
    s_and_b32 s44, s64, 3
    s_lshr_b32 s45, s64, 2
    s_lshl_b32 s46, s62, 2
    s_add_u32 s46, s46, s44
    s_lshl_b32 s47, s46, 1
    s_add_u32 s47, s47, s45
    s_mul_i32 s47, s47, {4*2560}
    s_add_u32 s47, s47, {WS_O}
    s_add_u32 s48, s47, 2560
    s_add_u32 s49, s47, 5120
    s_add_u32 s50, s47, 7680
    s_mul_i32 s51, s63, 80
    s_lshl_b32 s52, s51, 12
    s_lshl_b32 s53, s46, 5
    s_add_u32 s52, s52, s53
    s_add_u32 s52, s52, {WS_BT}
    s_add_u32 s53, s52, {32*4096}
    s_lshl_b32 s54, s46, 6
    s_add_u32 s54, s54, {WS_G}
    v_lshlrev_b32 v4, 4, v1
    v_lshlrev_b32 v5, 3, v1
    v_lshrrev_b32 v6, 1, v1
    v_lshlrev_b32 v6, 12, v6
    v_and_b32 v7, 1, v1
    v_lshl_add_u32 v6, v7, 4, v6
    v_cmp_gt_u32 vcc, 10, v1
    v_and_b32 v8, 15, v1
    v_lshlrev_b32 v{BF+1}, 2, v8
    s_mul_i32 s99, s63, 1280
    s_add_u32 s99, s99, {WS_FLAG}
    v_lshl_add_u32 v7, v1, 7, s99
    s_lshr_b32 s99, s62, 1
    s_lshl_b32 s99, s99, 10
    s_add_u32 s99, s99, {WS_FLAG+16384}
    v_lshl_add_u32 v{BF}, v8, 7, s99
    v_cndmask_b32 v{BF}, v{BF}, v7, vcc
    s_add_u32 s98, s52, {64*4096}
    v_mov_b32 v7, 0
    """)
    def issueC():
        for i, sr in enumerate((52, 53, 98)):
            a(f"s_add_u32 m0, s55, {1024*i}\n" + ("s_mov_b32 exec_hi, 0" if i == 2 else "s_nop 0"))
            a(f"buffer_load_dwordx4 v6, s[40:43], s{sr} offen {'' if opt('bp', 1) else 'sc1'} lds")
        a("s_mov_b32 exec_hi, -1")
    def issue(c, sc="sc1"):
        o = OF + 20 * c
        for g in range(2):
            s = 47 + 2 * c + g
            a(f"buffer_load_dwordx2 {vr(o+16+2*g,2)}, v5, s[40:43], s{s} offen offset:2048 {sc}")
            a(f"buffer_load_dwordx4 {vr(o+8*g,4)}, v4, s[40:43], s{s} offen {sc}")
            a(f"buffer_load_dwordx4 {vr(o+8*g+4,4)}, v4, s[40:43], s{s} offen offset:1024 {sc}")
    stamp(a, prof, 8)
    a(f"""
    s_mul_i32 s55, s45, s58
    v_and_b32 v27, 3, v1
    v_lshrrev_b32 v2, 2, v1
    v_mul_u32_u24 v2, 160, v2
    v_add_u32 v2, s55, v2
    v_bfe_u32 v10, v1, 2, 2
    v_mul_u32_u24 v10, 20, v10
    v_lshrrev_b32 v9, 4, v1
    v_add3_u32 v10, v10, v9, 16
    v_mul_u32_u24 v10, 160, v10
    v_add_u32 v10, s55, v10
    v_lshl_add_u32 v3, v27, 3, v2
    v_lshl_add_u32 v11, v27, 3, v10
    v_lshrrev_b32 v0, 1, v27
    v_lshlrev_b32 v0, 3, v0
    v_lshl_add_u32 v0, v27, 4, v0
    v_add_u32 v2, v2, v0
    v_add_u32 v10, v10, v0
    v_xor_b32 v0, 8, v2
    v_xor_b32 v27, 8, v10
    """)
    def rd(c, n, d):
        ks, j = divmod(n, 5)
        out = []
        for half in range(2):
            if ks < 4: ad, o = (2, 0, 2, 0, 3)[j], (80 * (ks >> 1) + 20 * (2 * (ks & 1) + half)) * 160
            else: ad, o = (10, 27, 10, 27, 11)[j], 80 * half * 160
            out.append(f"ds_read_b64_tr_b16 {vr(d+2*half,2)}, v{ad} offset:{c*25600 + o + 64*(j>>1)}")
        return "\n".join(out)
    a(f"""
    s_cmp_ge_u32 s2, 208
    s_cbranch_scc1 F_pre
    s_cmp_ge_u32 s2, 128
    s_cbranch_scc1 F_ssm
    s_cmp_eq_u32 s45, 0
    s_cbranch_scc1 F_pre
    s_barrier
    s_branch F_pre
    F_ssm:
    s_waitcnt vmcnt(0)
    s_barrier
    s_cmp_lg_u32 s64, 4
    s_cbranch_scc1 F_pre
    s_mov_b64 exec, 1
    buffer_store_dword v7, v7, s[40:43], s97 offen sc1
    s_mov_b64 exec, -1
    F_pre:
    buffer_load_dword v26, v{BF+1}, s[40:43], s54 offen sc1
    """)
    def freg(c, n): return FR + 4 * NP * c + 4 * (n % NP)
    for c in range(2):
        for n in range(NP):
            a(rd(c, n, freg(c, n)))
            if c == 0 and n < 20: a(f"v_mov_b32 v{ACC+n}, 0")
    a(f"""
    s_mov_b32 s56, 3
    s_mov_b32 s57, 0
    s_mov_b64 s[60:61], -1
    s_mul_i32 s55, s44, {3072+5120}
    s_add_u32 s55, s55, s59
    v_lshrrev_b32 v12, 1, v9
    v_lshlrev_b32 v12, 7, v12
    v_lshl_add_u32 v12, v9, 8, v12
    v_lshl_add_u32 v12, v8, 3, v12
    v_add_u32 v12, s55, v12
    v_xor_b32 v13, 128, v12
    v_add_u32 v14, s55, v5
    v_add_u32 v15, s55, v4
    v_mul_u32_u24 v16, 1280, v8
    v_lshl_add_u32 v17, v9, 3, v16
    v_lshl_add_u32 v16, v9, 4, v16
    s_mul_i32 s46, s46, {16*1280}
    s_lshl_b32 s51, s51, 1
    s_add_u32 s46, s46, s51
    s_waitcnt lgkmcnt(0)
    """)
    srd(a, 36, 26, 2621440)
    stamp(a, prof, 9)
    bflag = f"buffer_load_dword v25, v{BF}, s[40:43], 0 offen sc1"
    a(f"""
    s_mov_b32 s96, 0
    s_cmp_lg_u32 s45, 0
    s_cbranch_scc1 F_go
    s_mov_b32 s99, 0xff0000
    s_cmp_ge_u32 s2, 128
    s_cbranch_scc1 F_idle
    s_waitcnt vmcnt(0)
    s_barrier
    {"s_mov_b32 s99, 0" if opt("gb", 0) else ""}
    F_idle:
    s_or_b32 exec_lo, s99, 0x3ff
    s_mov_b32 exec_hi, 0
    {bflag}
    s_add_u32 s57, s57, 1
    s_waitcnt vmcnt(0)
    v_cmp_eq_u32 vcc, -1, v25
    s_mov_b64 exec, -1
    s_and_b32 s3, vcc_lo, 0x3ff
    s_or_b32 s3, s3, s96
    s_cbranch_scc1 F_nob
    s_mov_b32 s96, 1
    """)
    issueC()
    a(f"""
    F_nob:
    s_and_b32 s3, vcc_lo, s99
    s_cbranch_scc0 F_seen
    s_sleep {opt("fs", 0)}
    s_cmp_lt_u32 s57, {POLL_MAX}
    s_cbranch_scc1 F_idle
    F_seen:
    s_mov_b32 s57, 0
    F_go:
    s_barrier
    """)
    def run(h):
        t = "FH" if h else "FL"
        for c in range(2): issue(c, ("sc1", "", "sc0", "nt")[opt("op", 0)])
        stamp(a, prof, 10)
        a(f"{t}_loop:")
        for c in range(2):
            o = OF + 20 * c
            a(f"""
            s_bitcmp1_b32 s56, {c}
            s_cbranch_scc0 {t}_n{c}
            s_waitcnt vmcnt({6-6*c})
            v_max3_u32 v1, v{o}, v{o+4}, v{o+8}
            v_max3_u32 v1, v1, v{o+12}, v{o+16}
            v_max_u32 v1, v1, v{o+18}
            v_cmp_eq_u32 vcc, -1, v1
            s_and_b64 vcc, vcc, s[60:61]
            s_cbranch_scc1 {t}_n{c}
            s_bitset0_b32 s56, {c}
            """)
            for n in range(25):
                ks, j = divmod(n, 5)
                if n == NP: a("s_waitcnt lgkmcnt(0)")
                mfma16(a, ACC + 4 * j, freg(c, n), o + 4 * ks, ACC + 4 * j)
                if 2 <= n < 2 + 25 - NP: a(rd(c, NP + n - 2, freg(c, NP + n - 2)))
            a(f"{t}_n{c}:")
        a(f"""
        s_cmp_eq_u32 s56, 0
        s_cbranch_scc1 {t}_done
        s_bitcmp1_b32 s56, 0
        s_cbranch_scc0 {t}_r1
        """)
        issue(0)
        a(f"{t}_r1:\ns_bitcmp1_b32 s56, 1\ns_cbranch_scc0 {t}_r2")
        issue(1)
        a(f"""
        {t}_r2:
        s_add_u32 s57, s57, 1
        s_cmp_lt_u32 s57, {POLL_MAX}
        s_cselect_b64 s[60:61], -1, 0
        s_waitcnt vmcnt(0)
        s_branch {t}_loop
        {t}_done:
        """)
        stamp(a, prof, 13)
    def end():
        stamp(a, prof, 12)
        stamp_out(a, prof, 14, 65)
        a("s_endpgm")
    B, P = OF, OF + 12
    run(0)
    a(f"""
    v_cmp_eq_u32 vcc, -1, v26
    s_cbranch_vccnz F_gw
    F_gok:
    s_cmp_lg_u32 s45, 0
    s_cbranch_scc1 F_hi
    s_cmp_lg_u32 s96, 0
    s_cbranch_scc1 F_bin
    s_mov_b32 s57, 0
    s_mov_b64 exec, 0x3ff
    F_bw:
    {bflag}
    s_add_u32 s57, s57, 1
    s_cmp_lt_u32 s57, {POLL_MAX}
    s_waitcnt vmcnt(0)
    s_cbranch_scc0 F_bok
    v_cmp_eq_u32 vcc, -1, v25
    s_cbranch_vccnz F_bw
    F_bok:
    s_mov_b64 exec, -1
    """)
    issueC()
    a(f"""
    F_bin:
    s_waitcnt vmcnt(0)
    ds_read_b64_tr_b16 v[16:17], v12
    ds_read_b64_tr_b16 v[18:19], v13
    ds_read_b64_tr_b16 v[20:21], v12 offset:1024
    ds_read_b64_tr_b16 v[22:23], v13 offset:1024
    ds_read_b64_tr_b16 v[24:25], v14 offset:2048
    """)
    stamp(a, prof, 11)
    for j in range(5):
        a("s_waitcnt lgkmcnt(4)")
        d = ACC + 4 * j
        for p in range(2):
            a(f"v_lshlrev_b32 v{P+4*j+2*p}, 16, v{16+2*j+p}\nv_and_b32 v{P+4*j+2*p+1}, 0xffff0000, v{16+2*j+p}")
        for r in range(4): a(f"v_sub_f32 v{d+r}, v{d+r}, v{P+4*j+r}")
        for r in range(4): a(f"v_fmac_f32 v{P+4*j+r}, v{d+r}, v26")
        a(f"ds_write_b128 v15, {vr(P+4*j,4)} offset:{3072+1024*j}")
    a("s_waitcnt lgkmcnt(0)\ns_barrier")
    end()
    a("F_hi:")
    a("v_cmp_lt_u32 vcc, 1, v9\ns_barrier")
    stamp(a, prof, 11)
    for j in range(5): a(f"ds_read_b128 {vr(FR+4*j,4)}, v15 offset:{3072+1024*j}")
    for j in range(5):
        a(f"s_waitcnt lgkmcnt({4-j})")
        for r in range(4): a(f"v_fmac_f32 v{FR+4*j+r}, v{ACC+4*j+r}, v26")
        for p in range(2): a(f"v_cvt_pk_bf16_f32 v{B+2*j+p}, v{FR+4*j+2*p}, v{FR+4*j+2*p+1}")
        if j & 1:
            for p in range(4): a(f"v_cndmask_b32 v{P+2*j-2+p}, v{B+2*j-2+p}, v{B+2*j-2+(p^2)}, vcc")
            a(f"buffer_store_dwordx4 {vr(P+2*j-2,4)}, v16, s[36:39], s46 offen offset:{32*(j-1)}")
    a(f"buffer_store_dwordx2 {vr(B+8,2)}, v17, s[36:39], s46 offen offset:128")
    end()
    a(f"""
    F_gw:
    s_sleep 8
    buffer_load_dword v26, v{BF+1}, s[40:43], s54 offen sc1
    s_add_u32 s57, s57, 1
    s_cmp_ge_u32 s57, {POLL_MAX}
    s_waitcnt vmcnt(0)
    s_cbranch_scc1 F_gok
    v_cmp_eq_u32 vcc, -1, v26
    s_cbranch_vccnz F_gw
    s_branch F_gok
    """)
```

```python
from common import *
import fin

SLOT = 36880
WK, WV = 16384, 16384 + 10240 + 16
QB = 3 * SLOT
Q2 = QB - 51200
KVT = 51200
KV32, KS = 45056, 3584
PSTR = 4096
LOG2E = "0x3fb8aa3b"
EPS = "0x358637bd"

def qloc(s):
    return QB + s * 10240 if s < 5 else Q2 + (s - 5) * 10240

def phi(r, n, tmp):
    out = [f"v_mul_f32 v{tmp+i}, s60, v{r+i}" for i in range(n)]
    for i in range(n): out += [f"v_exp_f32 v{tmp+i}, v{tmp+i} clamp", f"v_max_f32 v{r+i}, s61, v{r+i}"]
    return out + [f"v_add_f32 v{r+i}, v{r+i}, v{tmp+i}" for i in range(n)]

def gemm_role(a, prof=False, ost="sc1"):
    a(f"""
    s_and_b32 s3, s2, 7
    s_lshr_b32 s54, s2, 3
    s_and_b32 s50, s3, 3
    s_lshl_b32 s50, s50, 2
    s_and_b32 s55, s54, 3
    s_add_u32 s50, s50, s55
    s_lshr_b32 s52, s3, 2
    s_lshl_b32 s52, s52, 2
    s_lshr_b32 s54, s54, 2
    s_add_u32 s52, s52, s54
    s_add_u32 s53, s54, s55
    s_and_b32 s53, s53, 3
    s_mul_i32 s53, s53, 5
    s_lshr_b32 s53, s53, 1
    s_mov_b32 s60, {LOG2E}
    s_mov_b32 s61, {EPS}
    s_cmp_lt_u32 s51, 4
    s_cbranch_scc1 G_kv
    """)
    q_waves(a, prof, ost)
    a("G_kv:")
    kv_waves(a, prof)

def lane_addrs(a):
    a("""
    v_and_b32 v5, 15, v1
    v_lshrrev_b32 v6, 4, v1
    v_and_b32 v7, 3, v1
    v_lshrrev_b32 v2, 1, v5
    v_xor_b32 v2, v2, v6
    v_lshlrev_b32 v2, 4, v2
    v_lshl_add_u32 v2, v5, 7, v2
    v_bfe_u32 v3, v1, 2, 3
    v_lshrrev_b32 v4, 5, v1
    v_lshl_add_u32 v3, v4, 4, v3
    v_mul_u32_u24 v3, 160, v3
    """)

def q_waves(a, prof, ost):
    vm = Q(a, "vmcnt", 63); lg = Q(a, "lgkmcnt", 15)
    XO, WO, XS, ACC, WB = 8, 12, 20, 180, 220
    srd(a, 36, 6, 2457600)
    a(f"""
    s_sub_u32 s51, s51, 4
    s_lshl_b32 s54, s50, 2
    s_add_u32 s54, s54, s51
    s_mul_i32 s54, s54, {32*1280}
    v_lshrrev_b32 v2, 3, v1
    v_mul_u32_u24 v2, 1280, v2
    v_lshrrev_b32 v3, 4, v1
    v_and_b32 v4, 7, v1
    v_xor_b32 v3, v3, v4
    v_lshl_add_u32 v2, v3, 4, v2
    v_add_u32 v{XO}, s54, v2
    v_xor_b32 v2, 64, v2
    s_add_u32 s54, s54, {8*1280}
    v_add_u32 v{XO+1}, s54, v2
    v_add_u32 v{XO+2}, {16*1280}, v{XO}
    v_add_u32 v{XO+3}, {16*1280}, v{XO+1}
    s_lshl_b32 s44, s51, 12
    s_lshl_b32 s46, s53, 7
    """)
    def ldx(slot):
        for i in range(4):
            a(f"s_add_u32 m0, s44, {slot*SLOT + i*1024}\ns_nop 0\nbuffer_load_dwordx4 v{XO+i}, s[32:35], s46 offen lds")
    ldx(0)
    a(f"""
    s_and_b32 s54, s51, 1
    s_lshr_b32 s55, s51, 1
    s_mul_i32 s56, s54, {32*3840}
    s_mul_i32 s57, s52, 160
    s_add_u32 s56, s56, s57
    s_mul_i32 s45, s54, 5120
    s_mul_i32 s57, s55, {WV-WK}
    s_add_u32 s48, s45, s57
    s_add_u32 s48, s48, {WK}
    s_mul_i32 s49, s55, 1280
    s_add_u32 s49, s49, 1280
    s_mul_i32 s47, s53, {64*3840}
    s_add_u32 s47, s47, s49
    """)
    for i in range(5):
        a(f"""
        v_add_u32 v2, {64*i}, v1
        v_mul_u32_u24 v3, 6554, v2
        v_lshrrev_b32 v3, 16, v3
        v_mul_u32_u24 v4, 10, v3
        v_sub_u32 v2, v2, v4
        v_lshrrev_b32 v4, 1, v3
        v_xor_b32 v4, v4, v3
        v_and_b32 v4, 4, v4
        v_mul_u32_u24 v4, 3, v4
        v_xor_b32 v3, v3, v4
        v_mul_u32_u24 v3, 3840, v3
        v_lshl_add_u32 v2, v2, 4, v3
        v_add_u32 v{WO+i}, s56, v2
        s_add_u32 m0, s48, {i*1024}
        s_nop 0
        buffer_load_dwordx4 v{WO+i}, s[36:39], s47 offen lds
        """)
    def adv():
        a(f"""
        s_add_u32 s46, s46, 128
        s_add_u32 s47, s47, {64*3840}
        s_cmp_eq_u32 s46, 1280
        s_cselect_b32 s46, 0, s46
        s_cselect_b32 s47, s49, s47
        """)
    def stage(s):
        adv(); ldx(s % 3)
        for i in range(5):
            a(f"s_add_u32 m0, s48, {(s%3)*SLOT + i*1024}\ns_nop 0\nbuffer_load_dwordx4 v{WO+i}, s[36:39], s47 offen lds")
        for i in range(9): vm.push(("S", s))
    def qpair(n):
        a(f"""
        s_add_u32 s57, s53, s55
        s_add_u32 s57, s57, {2*n}
        s_cmp_ge_u32 s57, 10
        s_cselect_b32 s58, 10, 0
        s_sub_u32 s57, s57, s58
        s_mul_i32 s57, s57, {64*3840}
        s_cmp_eq_u32 s55, 0
        s_mov_b32 s58, {qloc(2*n+1)}
        s_cselect_b32 s58, {qloc(2*n)}, s58
        s_add_u32 s58, s58, s45
        """)
        for i in range(5):
            a(f"s_add_u32 m0, s58, {i*1024}\ns_nop 0\nbuffer_load_dwordx4 v{WO+i}, s[36:39], s57 offen lds")
            vm.push(("Q", n))
    for i in range(9): vm.push(("S", 0))
    stage(1)
    if not opt('b0', 1): stage(2)
    lane_addrs(a)
    a(f"""
    v_add_u32 v2, s44, v2
    v_xor_b32 v4, 64, v2
    v_add_u32 v18, {2*SLOT}, v2
    v_add_u32 v19, {2*SLOT}, v4
    v_mul_u32_u24 v17, 40, v7
    v_add3_u32 v17, v17, v3, 32
    v_lshl_add_u32 v3, v7, 3, v3
    """)
    stamp(a, prof, 1)
    WA = [250, 251, 252, 253, 254]
    for s in range(10):
        vm.wait(("S", s))
        a("s_waitcnt lgkmcnt(0)\ns_barrier")
        if s == 0: stamp(a, prof, 2)
        if (0 if opt('b0', 1) else 1) <= s <= 7: stage(s + 2)
        if s == 7: qpair(0); qpair(1)
        if s == 8: qpair(2)
        if s == 9:
            qpair(3); qpair(4)
            a("v_mov_b32 v248, 0\nglobal_load_dword v249, v248, s[28:29] offset:128 sc1"); vm.push("R")
        if s == 3:
            fin.tile_ids(a)
            a("v_and_b32 v255, 255, v0\ns_lshl_b32 s59, s51, 10")
            fin.wo_addr(a, WA, 248, 249, 256, 255, 92)
        for ks in range(2):
            for i in range(2):
                ad = (2, 4)[ks] if s % 3 < 2 else (18, 19)[ks]
                a(f"ds_read_b128 {vr(XS+16*s+8*ks+4*i,4)}, v{ad} offset:{(s%3%2)*SLOT + i*2048}")
    a(f"v_add_u32 v18, {QB}, v3\nv_add_u32 v19, {QB}, v17\nv_add_u32 v3, {Q2}, v3\nv_add_u32 v17, {Q2}, v17")
    vm.wait(("Q", 0))
    a("s_waitcnt lgkmcnt(0)\ns_barrier")
    stamp(a, prof, 3)
    NB = 7
    BQ, AF, D0, TMP = 20, 52, 84, 148
    T8 = 52
    order = (4, 0, 1, 2, 3)
    seq = [(s, ks, t) for s in range(5) for ks in range(2) for t in range(5)]
    seq += [(s, ks, t) for t in order for s in range(5, 10) for ks in range(2)]
    n1 = opt("n1", 40)
    dma = [f"s_add_u32 m0, s59, {4096*k}\ns_mov_b32 s98, {(k//5)*128*1280}\nbuffer_load_dwordx4 v{WA[k%5]}, s[92:95], s98 offen lds" for k in range(11)]
    def rd(n):
        s, ks, t = seq[n]
        if n == 20 and n1 > 20:
            vm.wait(("Q", 2 if n1 > 40 else 1)); a("s_barrier")
        if n > 20 and n % 2 == 0 and dma: a(dma.pop(0))
        if n == n1:
            while dma: a(dma.pop(0))
            vm.q = []; fin.ready_wait(a, 248, 249, 58, 11); a("s_barrier")
        if n == opt("n2", 56):
            lg.wait(49); a("s_barrier")
        ad = ((18, 19), (3, 17))[s >= 5][t == 4]
        o = (s % 5) * 10240 + ks * 5120 + (40 * t if t < 4 else 0)
        d = WB + 4 * (n % NB)
        a(f"ds_read_b64_tr_b16 {vr(d,2)}, v{ad} offset:{o}\nds_read_b64_tr_b16 {vr(d+2,2)}, v{ad} offset:{o+1280}")
        lg.push(None); lg.push(n)
    msk = ["s[44:45]", "s[46:47]", "s[48:49]", "s[56:57]"]
    setup = f"""
    v_mul_u32_u24 v9, 40, v5
    v_add_u32 v9, {KVT}, v9
    v_lshl_add_u32 v8, v6, 3, v9
    v_lshrrev_b32 v11, 2, v5
    v_cmp_eq_u32 vcc, 0, v7
    v_mov_b32 v12, 4
    v_cmp_eq_u32 s[44:45], 0, v6
    v_cndmask_b32 v11, v12, v11, vcc
    v_cmp_eq_u32 s[46:47], 1, v6
    v_mul_u32_u24 v11, 40, v11
    v_cmp_eq_u32 s[48:49], 2, v6
    v_add_u32 v11, {KVT+640}, v11
    v_cmp_eq_u32 s[56:57], 3, v6
    v_lshl_add_u32 v10, v6, 3, v11
    v_lshlrev_b32 v12, 4, v1
    v_lshlrev_b32 v13, 3, v1
    s_lshl_b32 s54, s50, 3
    s_lshl_b32 s55, s51, 1
    s_add_u32 s54, s54, s55
    s_lshl_b32 s54, s54, 3
    s_add_u32 s54, s54, s52
    s_mul_i32 s54, s54, 2560
    s_add_u32 s54, s54, {WS_O}
    s_add_u32 s55, s54, {8*2560}
    s_lshl_b32 s3, s50, 3
    s_add_u32 s3, s3, s52
    s_lshl_b32 s3, s3, 7
    s_add_u32 s3, s3, {WS_FLAG+16384}
    v_lshlrev_b32 v16, 23, v255
    """.strip().split("\n") + [f"s_mov_b32 s58, {QB}", f"s_mov_b32 s59, 59648"]
    def post(t):
        out = []
        for i in range(2):
            r = ACC + 20 * i + 4 * t
            out += phi(r, 4, T8 + 4 * i)
            b = 14 if t == 4 else BQ + 16 * i + 4 * t
            out += [f"v_cvt_pk_bf16_f32 v{b}, v{r}, v{r+1}", f"v_cvt_pk_bf16_f32 v{b+1}, v{r+2}, v{r+3}"]
            if t == 4:
                for h in range(4): out += [f"v_cndmask_b32 v{BQ+16*i+4*h+2+p}, 0, v{14+p}, {msk[h]}" for p in range(2)]
        return out
    for n in range(NB - 1): rd(n)
    if opt("qd", 0):
        while dma: a(dma.pop(0))
    fill = []
    for n, (s, ks, t) in enumerate(seq):
        if n == 51: fill = setup
        if n >= 60 and n % 10 == 1: fill = fill + post(order[n // 10 - 6])
        lg.wait(n)
        for i in range(2):
            d = ACC + 20 * i + 4 * t
            mfma16(a, d, WB + 4 * (n % NB), XS + 16 * s + 8 * ks + 4 * i, None if n < 5 else d)
            if i == 1 and n + NB - 1 < len(seq): rd(n + NB - 1)
            for _ in range(2):
                if fill: a(fill.pop(0))
    stamp(a, prof, 4)
    a("s_nop 7")
    for x in fill + post(order[4]): a(x)
    stamp(a, prof, 5)
    hint = "buffer_store_dword v16, v16, s[40:43], s3 offen sc1"
    a("s_waitcnt vmcnt(0)")
    if opt("he", 0) == 1: a(hint)
    a("s_barrier")
    if opt("he", 0) == 0: a(hint)
    stamp(a, prof, 6)
    for h in range(4):
        f = AF + 8 * h
        a(f"""
        ds_read_b64 {vr(f+4,2)}, v10 offset:{840*h}
        ds_read_b64 {vr(f+6,2)}, v11 offset:{840*h+32}
        ds_read_b64 {vr(f,2)}, v8 offset:{840*h}
        ds_read_b64 {vr(f+2,2)}, v9 offset:{840*h+32}
        """)
    for h in range(4):
        a(f"s_waitcnt lgkmcnt({12-4*h})")
        for i in range(2): mfma16(a, D0 + 32*i + 8*h + 4, AF + 8*h + 4, BQ + 16*i + 4*h)
        for i in range(2): mfma16(a, D0 + 32*i + 8*h, AF + 8*h, BQ + 16*i + 4*h)
    a("s_nop 1")
    if opt("he", 0) == 2: a(hint)
    for i in range(2):
        for h in range(4):
            d = D0 + 32*i + 8*h
            a(f"v_add_f32 v{d+5}, s61, v{d+5}")
        for h in range(4):
            d = D0 + 32*i + 8*h
            a(f"v_rcp_f32 v{d+5}, v{d+5}")
        o = TMP + 12 * i
        for h in range(4):
            d = D0 + 32*i + 8*h
            for r in range(5): a(f"v_mul_f32 v{d+r}, v{d+r}, v{d+5}")
            a(f"v_cvt_pk_bf16_f32 v{o+2*h}, v{d}, v{d+1}\nv_cvt_pk_bf16_f32 v{o+2*h+1}, v{d+2}, v{d+3}")
            if h & 1:
                a(f"v_cvt_pk_bf16_f32 v{o+8+(h>>1)}, v{d-8+4}, v{d+4}")
                a(f"buffer_store_dwordx4 {vr(o+2*h-2,4)}, v12, s[40:43], s{54+i} offen offset:{(h>>1)*1024} {ost}")
        a(f"buffer_store_dwordx2 {vr(o+8,2)}, v13, s[40:43], s{54+i} offen offset:2048 {ost}")
    stamp(a, prof, 7)
    a("s_branch FIN")

def kv_waves(a, prof):
    ACC, B0, B1 = 16, 96, 132
    lane_addrs(a)
    a(f"""
    s_and_b32 s54, s51, 1
    s_lshr_b32 s55, s51, 1
    s_lshl_b32 s56, s54, 13
    v_add_u32 v8, s56, v2
    v_xor_b32 v9, 64, v8
    s_mul_i32 s56, s55, 80
    s_add_u32 s56, s56, {WK}
    v_lshl_add_u32 v10, v7, 3, v3
    v_add_u32 v10, s56, v10
    v_lshrrev_b32 v4, 1, v7
    v_cmp_eq_u32 vcc, s55, v4
    v_and_b32 v4, 1, v7
    v_mul_u32_u24 v4, 40, v4
    v_mov_b32 v11, {WV-WK+32}
    v_cndmask_b32 v11, v11, 32, vcc
    v_add3_u32 v11, v11, v4, v3
    v_add_u32 v11, s56, v11
    s_mov_b32 s57, 0
    s_mov_b32 s58, 0
    """)
    for r in range(80): a(f"v_mov_b32 v{ACC+r}, 0")
    PK, P, TMP, EA, ONE, TID, GA, SEL, KA, RA = 168, 96, 216, 228, 235, 241, 242, 244, 252, 253
    WA = [236, 237, 238, 239, 240]
    a(f"""
    s_mul_i32 s3, s55, 210
    v_mul_u32_u24 v12, 5, v5
    v_add_u32 v12, s3, v12
    v_lshrrev_b32 v13, 3, v5
    v_cmp_eq_u32 s[94:95], s55, v13
    v_and_b32 v14, 1, v6
    v_mul_u32_u24 v14, 105, v14
    v_cndmask_b32 v13, v7, 4, s[94:95]
    v_mul_u32_u24 v13, 5, v13
    v_add_u32 v13, s3, v13
    v_add_u32 v{EA}, v12, v6
    v_add_u32 v{EA+1}, 105, v{EA}
    v_add_u32 v{EA+2}, v13, v6
    v_add_u32 v{EA+2}, 80, v{EA+2}
    v_add_u32 v{EA+3}, 105, v{EA+2}
    v_add3_u32 v{EA+4}, v12, v14, 4
    v_add3_u32 v{EA+5}, v13, v14, 4
    v_add_u32 v{EA+5}, 80, v{EA+5}
    s_mul_i32 s3, s54, {2*KS}
    s_add_u32 s3, s3, {KV32}
    v_mov_b32 v14, {KS}
    """)
    for i in range(6):
        a(f"""
        v_and_b32 v12, 1, v{EA+i}
        v_lshrrev_b32 v{EA+i}, 1, v{EA+i}
        v_mad_u32_u24 v12, v12, v14, s3
        v_lshl_add_u32 v{EA+i}, v{EA+i}, 4, v12
        """)
    def rep(m16, qs): return sum(m16 << (16 * q) for q in qs)
    def colmask(h): return (0xf << (4 * (h ^ 2))) | (1 << (4 * h))
    masks = []
    for hp in range(2):
        ha, hb = 2 * hp, 2 * hp + 1
        masks.append([rep(colmask(ha), range(4)), rep(colmask(hb), range(4)), rep(0xffff, [ha]), rep(0xffff, [hb]),
                      rep(colmask(ha), [ha]) | rep(colmask(hb), [hb])])
    a("s_cmp_eq_u32 s55, 0")
    for n in range(5):
        for half in range(2):
            c0, c1 = (masks[0][n] >> (32 * half)) & 0xffffffff, (masks[1][n] >> (32 * half)) & 0xffffffff
            a(f"s_mov_b32 s{84+2*n+half}, {hex(c1)}\ns_cselect_b32 s{84+2*n+half}, {hex(c0)}, s{84+2*n+half}")
    a(f"""
    v_mov_b32 v{ONE}, 0x3f803f80
    v_lshlrev_b32 v{TID}, 4, v0
    s_lshl_b32 s3, s52, 4
    s_add_u32 s48, s3, s50
    s_mul_i32 s48, s48, {PSTR}
    s_add_u32 s48, s48, {WS_PART}
    s_mul_i32 s44, s3, {PSTR}
    s_add_u32 s44, s44, {WS_PART}
    s_lshl_b32 s49, s51, 10
    s_add_u32 s44, s44, s49
    s_add_u32 s45, s44, {4*PSTR}
    s_add_u32 s46, s44, {8*PSTR}
    s_add_u32 s47, s44, {12*PSTR}
    s_cmp_lt_u32 s51, 2
    s_mov_b32 s99, {QB-2048}
    s_cselect_b32 s99, {48*1024}, s99
    s_add_u32 s99, s99, s49
    v_mul_u32_u24 v{GA}, {PSTR}, v6
    v_lshl_add_u32 v{GA}, v5, 4, v{GA}
    s_cmp_eq_u32 s51, 3
    s_cselect_b32 s3, 0x7fff0000, 0
    v_or_b32 v{GA+1}, s3, v{GA}
    v_lshrrev_b32 v12, 1, v5
    v_and_b32 v13, 1, v5
    v_lshlrev_b32 v13, 4, v13
    v_mov_b32 v14, 0x3f80
    v_lshlrev_b32 v13, v13, v14
    """)
    for r in range(8):
        a(f"v_cmp_eq_u32 vcc, {r}, v12\ns_nop 1\nv_cndmask_b32 v{SEL+r}, 0, v13, vcc")
    a(f"""
    v_lshrrev_b32 v12, 1, v6
    v_lshlrev_b32 v12, 8, v12
    v_lshl_add_u32 v12, v5, 4, v12
    v_and_b32 v13, 1, v6
    v_lshl_add_u32 v12, v13, 3, v12
    s_add_u32 s3, s49, {KVT}
    v_add_u32 v{KA}, s3, v12
    v_cmp_gt_u32 s[100:101], 210, v0
    """.replace("v_cmp_gt_u32 s[100:101], 210, v0", "v_cmp_gt_u32 vcc, 210, v0\ns_mov_b64 s[100:101], vcc"))
    fin.tile_ids(a)
    fin.wo_addr(a, WA, 12, 13, 256, 0)
    def wo(k):
        m0 = "s_mov_b32 m0, s99" if k == 12 else f"s_add_u32 m0, s49, {4096*k if k < 12 else QB+(4*k-50)*1024}"
        return f"{m0}\ns_mov_b32 s98, {(k//5)*128*1280}\nbuffer_load_dwordx4 v{WA[k%5]}, s[36:39], s98 offen lds"
    def reads(buf, ks):
        out = []
        x = [f"ds_read_b128 {vr(buf+4*i,4)}, v{8+ks} offset:{2048*i}" for i in range(4)]
        w = []
        for t, (ad, o) in enumerate([(10, 0), (10, 40), (11, 0), (10, WV-WK), (10, WV-WK+40)]):
            d = buf + 16 + 4 * t
            w += [f"ds_read_b64_tr_b16 {vr(d,2)}, v{ad} offset:{o+ks*5120}", f"ds_read_b64_tr_b16 {vr(d+2,2)}, v{ad} offset:{o+ks*5120+1280}"]
        return x[:1] + w + x[1:]
    def group(buf, fill):
        fill = list(fill)
        for i in range(4):
            for t in range(5):
                d = ACC + 20 * i + 4 * t
                mfma16(a, d, buf + 4 * i, buf + 16 + 4 * t, d)
                if fill: a(fill.pop(0))
        assert not fill
    stamp(a, prof, 1)
    a("s_waitcnt lgkmcnt(0)\ns_barrier")
    stamp(a, prof, 2)
    for r in reads(B0, 0): a(r)
    a("s_branch G_mid\nG_loop:")
    group(B1, reads(B0, 0))
    a("G_mid:\ns_waitcnt lgkmcnt(0)")
    a(f"""
    s_add_u32 s57, s57, 1
    s_cmp_eq_u32 s57, 3
    s_cselect_b32 s57, 0, s57
    s_mov_b32 s59, {SLOT}
    s_cselect_b32 s59, {-2*SLOT}, s59
    s_add_u32 s58, s58, 1
    s_cmp_lt_u32 s58, 10
    """)
    group(B0, reads(B1, 1) + [f"v_add_u32 v{8+i}, s59, v{8+i}" for i in range(4)])
    a("s_waitcnt lgkmcnt(0)\ns_barrier\ns_cbranch_scc1 G_loop")
    if opt("prio", 1): a("s_setprio 2")
    def post(i):
        b = ACC + 20 * i
        pk = PK + 24 * (i >> 1) + 2 * (i & 1)
        cv = lambda o, t: [f"v_cvt_pk_bf16_f32 v{pk+o}, v{b+4*t}, v{b+4*t+1}", f"v_cvt_pk_bf16_f32 v{pk+o+1}, v{b+4*t+2}, v{b+4*t+3}"]
        ph = phi(b, 12, TMP)
        out = ph[:12] + cv(20, 2) + ph[12:28] + cv(12, 3) + cv(16, 4) + ph[28:]
        out += [f"v_cndmask_b32 v{pk+20+p}, v{pk+20+p}, v{ONE}, s[94:95]" for p in range(2)]
        out += cv(0, 0) + cv(4, 1) + cv(8, 2) + (["s_barrier"] if i == opt("kb", 0) and opt("n1", 40) > 20 else []) + (["s_nop 1"] if i & 1 else [])
        if i & 1:
            k = PK + 24 * (i >> 1)
            for n, (x, y) in enumerate([(0, 12), (4, 16), (0, 20), (4, 20), (8, 12), (8, 16), (8, 20)]):
                out.append(f"v_mfma_f32_16x16x32_bf16 {vr(P+4*n,4)}, {vr(k+x,4)}, {vr(k+y,4)}, {vr(P+4*n,4) if i == 3 else 0}")
        return out
    fill = post(0) + post(1)
    for n in range(20):
        i, t = divmod(n, 5)
        d = ACC + 20 * i + 4 * t
        mfma16(a, d, B1 + 4 * i, B1 + 16 + 4 * t, d)
        if n >= 8:
            for _ in range(opt("kf", 2)): a(fill.pop(0))
    stamp(a, prof, 3)
    for x in fill + post(2) + post(3): a(x)
    a("s_nop 3")
    a(f"""
    ds_write_b128 v{EA}, {vr(P,4)}
    ds_write_b128 v{EA+1}, {vr(P+4,4)}
    s_mov_b64 exec, s[84:85]
    ds_write_b128 v{EA+2}, {vr(P+8,4)}
    s_mov_b64 exec, s[86:87]
    ds_write_b128 v{EA+3}, {vr(P+12,4)}
    s_mov_b64 exec, s[88:89]
    ds_write_b128 v{EA+4}, {vr(P+16,4)}
    s_mov_b64 exec, s[90:91]
    ds_write_b128 v{EA+4}, {vr(P+20,4)}
    s_mov_b64 exec, s[92:93]
    ds_write_b128 v{EA+5}, {vr(P+24,4)}
    s_mov_b64 exec, -1
    s_waitcnt lgkmcnt(0)
    s_barrier
    """)
    stamp(a, prof, 4)
    a(f"""
    ds_read_b128 v[16:19], v{TID} offset:{KV32}
    ds_read_b128 v[24:27], v{TID} offset:{KV32+2*KS}
    ds_read_b128 v[20:23], v{TID} offset:{KV32+KS}
    ds_read_b128 v[28:31], v{TID} offset:{KV32+3*KS}
    s_waitcnt lgkmcnt(2)
    """)
    for r in range(4): a(f"v_add_f32 v{16+r}, v{16+r}, v{24+r}")
    a("s_waitcnt lgkmcnt(0)")
    for r in range(4, 8): a(f"v_add_f32 v{16+r}, v{16+r}, v{24+r}")
    for r in range(4): a(f"v_cvt_pk_bf16_f32 v{32+r}, v{16+2*r}, v{17+2*r}")
    for r in range(4): a(f"v_cndmask_b32 v{32+r}, 0, v{32+r}, s[100:101]")
    L, D = 48, 16
    a(f"buffer_store_dwordx4 v[32:35], v{TID}, s[40:43], s48 offen sc1")
    if opt("prio", 1): a("s_setprio 0")
    n1 = opt("wo1", 21)
    for r in range(8): a(f"v_mov_b32 v{D+r}, 0")
    a("s_barrier")
    for k in range(11, n1): a(wo(k))
    def issue(i, sc="sc1"):
        for g in range(4):
            a(f"buffer_load_dwordx4 {vr(L+16*i+4*g,4)}, v{GA if g < 2 else GA+1}, s[40:43], s{44+i} offen offset:{256*g} {sc}")
    for i in range(4): issue(i, '' if opt('pp', 0) else 'sc1')
    stamp(a, prof, 5)
    for k in range(n1, 25): a(wo(k))
    a("s_mov_b32 s56, 15\ns_mov_b32 s58, 0\ns_mov_b64 s[96:97], -1")
    stamp(a, prof, 7)
    a("G_poll:")
    for i in range(4):
        b = L + 16 * i
        a(f"""
        s_bitcmp1_b32 s56, {i}
        s_cbranch_scc0 G_n{i}
        s_waitcnt vmcnt({25-n1+12-4*i})
        v_max3_u32 v2, v{b}, v{b+4}, v{b+8}
        v_max_u32 v2, v2, v{b+12}
        v_cmp_eq_u32 vcc, -1, v2
        s_and_b64 vcc, vcc, s[96:97]
        s_cbranch_scc1 G_n{i}
        s_bitset0_b32 s56, {i}
        """)
        for g in range(4):
            d = D + 4 * (g >> 1)
            mfma16(a, d, SEL + 4 * (g & 1), b + 4 * g, d)
        a(f"G_n{i}:")
    a("s_cmp_eq_u32 s56, 0\ns_cbranch_scc1 G_done")
    for i in range(4):
        a(f"s_bitcmp1_b32 s56, {i}\ns_cbranch_scc0 G_r{i}")
        issue(i)
        a(f"G_r{i}:")
    a(f"""
    s_add_u32 s58, s58, 1
    s_cmp_lt_u32 s58, {fin.POLL_MAX}
    s_cselect_b64 s[96:97], -1, 0
    s_waitcnt vmcnt(0)
    s_branch G_poll
    G_done:
    s_nop 2
    s_mov_b32 s58, {QB}
    s_mov_b32 s59, 59648
    s_nop 1
    """)
    for p in range(2):
        d = D + 4 * p
        a(f"v_cvt_pk_bf16_f32 v{d}, v{d}, v{d+1}\nv_cvt_pk_bf16_f32 v{d+1}, v{d+2}, v{d+3}")
        a(f"ds_write_b64 v{KA}, {vr(d,2)} offset:{512*p}")
    a("s_waitcnt lgkmcnt(0)\ns_barrier")
    stamp(a, prof, 6)
    a("s_branch FIN")
```

```python
from common import *
import fin

RS = 2064
BROW = 24 * RS
XB = 56 * RS
US = 4608
UB = 163840 - 8 * US
TB, TS = 102400, 3072
EO, FO = 2176, 2880
LOG2E = "0x3fb8aa3b"

def cmul(a, d, x, y, t):
    a(f"v_pk_mul_f32 {vr(t,2)}, {vr(x,2)}, {vr(y,2)} op_sel:[0,0] op_sel_hi:[0,1]")
    a(f"v_pk_fma_f32 {vr(d,2)}, {vr(x,2)}, {vr(y,2)}, {vr(t,2)} op_sel:[1,1,0] op_sel_hi:[1,0,1] neg_lo:[1,0,0]")

def cmul2(a, jobs):
    for d, x, y, t in jobs:
        a(f"v_pk_mul_f32 {vr(t,2)}, {vr(x,2)}, {vr(y,2)} op_sel:[0,0] op_sel_hi:[0,1]")
    for d, x, y, t in jobs:
        a(f"v_pk_fma_f32 {vr(d,2)}, {vr(x,2)}, {vr(y,2)}, {vr(t,2)} op_sel:[1,1,0] op_sel_hi:[1,0,1] neg_lo:[1,0,0]")

def ssm_role(a, prof=False, st=""):
    lg = Q(a, "lgkmcnt", 15); vm = Q(a, "vmcnt", 63)
    R, PRM, X = 12, 28, 32
    a(f"""
    s_lshl_b32 s52, s50, 3
    s_add_u32 s52, s52, s51
    s_lshl_b32 s53, s52, 8
    v_lshl_add_u32 v2, v1, 2, s53
    s_lshl_b32 s54, s52, 1
    s_and_b32 s55, s54, 0xfffffffc
    s_load_dword s56, s[20:21], s55
    s_load_dword s57, s[22:23], s55
    global_load_dword v{PRM}, v2, s[12:13]
    global_load_dword v{PRM+1}, v2, s[14:15]
    global_load_dword v{PRM+2}, v2, s[16:17]
    global_load_dword v{PRM+3}, v2, s[18:19]
    s_and_b32 s58, s50, 7
    s_lshl_b32 s58, s58, 8
    v_lshl_add_u32 v3, v0, 2, s58
    v_and_b32 v3, 2047, v3
    v_mul_u32_u24 v251, 1280, v3
    v_bfe_u32 v250, v1, 1, 2
    v_or_b32 v250, v250, v3
    s_and_b32 s58, s50, {opt("gr", 3)}
    v_xor_b32 v250, s58, v250
    s_lshl_b32 s59, s50, 4
    s_lshl_b32 s97, s50, 7
    s_add_u32 s97, s97, {WS_FLAG}
    """)
    for i in range(4): vm.push("prm")
    if opt("l2pf", 1):
        fin.pf_first(a, 254); vm.push("pf")
    def gather(i):
        if opt("gx", 1):
            a(f"v_xor_b32 v{R+4*i}, {i}, v250\nv_mul_u32_u24 v{R+4*i}, 1280, v{R+4*i}")
            a(f"buffer_load_dwordx4 {vr(R+4*i,4)}, v{R+4*i}, s[32:35], s59 offen")
        else: a(f"buffer_load_dwordx4 {vr(R+4*i,4)}, v251, s[32:35], s59 offen offset:{1280*i}")
        vm.push("g")
    late = opt("gl", 1)
    if not late:
        for i in range(4): gather(i)
    if late >= 4:
        a("s_cmp_lt_u32 s51, 4\ns_cbranch_scc1 S_g0")
        if opt("gw", 0): a("s_waitcnt vmcnt(1)")
        for i in range(4): gather(i)
        a("S_g0:")
    a(f"""
    v_lshlrev_b32 v3, 1, v3
    v_add_u32 v3, {UB+512}, v3
    v_and_b32 v5, 15, v1
    v_lshrrev_b32 v6, 4, v1
    s_mul_i32 s60, s51, {US}
    s_add_u32 s60, s60, {UB}
    v_mov_b32 v8, 0
    v_mov_b32 v9, 0
    v_mov_b32 v10, 0
    v_mov_b32 v11, 0
    v_lshl_add_u32 v7, v1, 3, s60
    ds_write_b64 v7, v[8:9]
    s_lshl_b32 s61, s51, 10
    s_add_u32 s61, s61, {XB}
    v_lshl_add_u32 v7, v1, 2, s61
    v_mov_b32 v50, 0x3f80
    v_mov_b32 v51, 0x3f800000
    """)
    for h in range(1, 5):
        a(f"""
        v_subrev_u32 v48, {32-h}, v1
        v_subrev_u32 v49, {33-h}, v1
        v_cmp_ge_u32 vcc, {2*h}, v48
        v_cmp_ge_u32 s[62:63], {2*h}, v49
        s_nop 0
        v_cndmask_b32 v48, 0, v50, vcc
        v_cndmask_b32 v49, 0, v51, s[62:63]
        v_or_b32 v{51+h}, v48, v49
        ds_write_b32 v7, v{51+h} offset:{256*(h-1)}
        """)
    a(f"""
    v_lshlrev_b32 v2, 3, v6
    v_sub_u32 v2, v5, v2
    v_add_u32 v2, 24, v2
    v_lshlrev_b32 v2, 2, v2
    v_add_u32 v7, s61, v2
    """)
    for h in range(1, 5):
        o = 64 * (h - 1) + (20 if h == 1 else 16)
        a(f"ds_read2_b32 {vr(X+4*(h-1),2)}, v7 offset0:{o} offset1:{o-2}")
        a(f"ds_read2_b32 {vr(X+4*(h-1)+2,2)}, v7 offset0:{o-4} offset1:{o-6}")
    a(f"""
    v_and_b32 v48, 31, v1
    v_lshrrev_b32 v49, 5, v1
    v_mul_u32_u24 v4, {RS}, v48
    s_lshl_b32 s53, s51, 8
    v_lshl_add_u32 v4, v49, 4, v4
    v_add_u32 v4, s53, v4
    s_waitcnt lgkmcnt(0)
    s_and_b32 s54, s54, 2
    s_lshl_b32 s54, s54, 3
    s_lshr_b32 s56, s56, s54
    s_lshl_b32 s56, s56, 16
    s_lshr_b32 s57, s57, s54
    s_lshl_b32 s57, s57, 16
    v_mov_b32 v60, {LOG2E}
    v_mul_f32 v61, s56, v60
    v_exp_f32 v61, v61
    s_nop 0
    v_cvt_pk_bf16_f32 v61, v61, v61
    v_and_b32 v61, 0xffff0000, v61
    v_mul_f32 v62, v61, v60
    v_mul_f32 v63, 0.15915494, v61
    v_add_f32 v61, v61, v61
    """)
    stamp(a, prof, 1)
    def older(gs):
        l = a.label("sg")
        a(f"s_cmp_ge_u32 s51, 4\ns_cbranch_scc1 {l}")
        for i in gs: gather(i)
        a(f"{l}:")
    if late >= 4:
        a("s_cmp_ge_u32 s51, 4\ns_cbranch_scc1 S_prm\ns_waitcnt vmcnt(1)\nS_prm:\ns_waitcnt vmcnt(5)")
    else: vm.wait("prm")
    OP, KA = 128, 192
    W1, W8, W256, A0 = 64, 66, 68, 70
    tmpi = [0]
    def put(src, rows):
        t = 56 + tmpi[0] % 4; tmpi[0] += 1
        a(f"v_cvt_pk_bf16_f32 v{t}, v{src}, v{src+1}")
        for r in rows: a(f"ds_write_addtid_b32 v{t} offset:{r*RS}")
    for p in range(2):
        if late == 3 and p == 0: gather(0)
        if opt("kp", 1): a(f"s_setprio {3-2*p}")
        for i in range(4):
            a(f"v_lshlrev_b32 v{48+i}, 16, v{PRM+i}" if p == 0 else f"v_and_b32 v{48+i}, 0xffff0000, v{PRM+i}")
        a(f"""
        v_mul_f32 v48, v48, v60
        v_exp_f32 v48, v48
        v_mul_f32 v49, v49, v63
        v_mul_f32 v{A0}, v50, v61
        v_mul_f32 v{A0+1}, v51, -v61
        v_cvt_pk_bf16_f32 v48, v48, v48
        v_and_b32 v48, 0xffff0000, v48
        v_mul_f32 v48, v48, -v62
        v_mul_f32 v50, 0x41000000, v49
        v_mul_f32 v51, 0x43800000, v49
        v_mul_f32 v52, 0x41000000, v48
        v_mul_f32 v53, 0x43800000, v48
        v_fract_f32 v49, v49
        v_fract_f32 v50, v50
        v_fract_f32 v51, v51
        v_exp_f32 v48, v48
        v_exp_f32 v52, v52
        v_exp_f32 v53, v53
        v_cos_f32 v{W1}, v49
        v_sin_f32 v{W1+1}, v49
        v_cos_f32 v{W8}, v50
        v_sin_f32 v{W8+1}, v50
        v_cos_f32 v{W256}, v51
        v_sin_f32 v{W256+1}, v51
        s_mov_b32 m0, s53
        v_mul_f32 v{W1}, v{W1}, v48
        v_mul_f32 v{W1+1}, v{W1+1}, -v48
        v_mul_f32 v{W8}, v{W8}, v52
        v_mul_f32 v{W8+1}, v{W8+1}, v52
        v_mul_f32 v{W256}, v{W256}, v53
        v_mul_f32 v{W256+1}, v{W256+1}, -v53
        """)
        rowA = {0:[0],1:[1],2:[2],3:[3],4:[4,8],5:[5],6:[6],7:[7],8:[12],256:[9],258:[10],260:[11,13],262:[14],264:[15],
                516:[16],520:[17],1032:[18],1544:[19],772:[20],776:[21],1288:[22],1800:[23]}
        reg = {0: A0}; nxt = [72]
        def R_(t):
            reg[t] = nxt[0]; nxt[0] += 2; return reg[t]
        W2, W512, T0, T1, T2 = 118, 120, 122, 124, 126
        cmul2(a, [(R_(1), A0, W1, T0), (W2, W1, W1, T1), (W512, W256, W256, T2)])
        put(A0, rowA[0])
        for t in (2, 4, 6):
            cmul2(a, [(R_(t), reg[t-2], W2, T0), (R_(t+1), reg[t-1], W2, T1), (R_(254+t), reg[t-2], W256, T2)])
            put(reg[t-1], rowA[t-1])
            put(reg[t], rowA[t]); put(reg[254+t], rowA[254+t])
        cmul2(a, [(R_(8), reg[6], W2, T0), (R_(262), reg[6], W256, T1), (R_(516), reg[4], W512, T2)])
        put(reg[7], rowA[7])
        cmul2(a, [(R_(264), reg[8], W256, T0), (R_(520), reg[8], W512, T1), (R_(772), reg[260], W512, T2)])
        for t in (8, 262, 516): put(reg[t], rowA[t])
        cmul2(a, [(R_(776), reg[264], W512, T0), (R_(1032), reg[520], W512, T1), (W2, W8, W8, T2)])
        for t in (264, 520, 772): put(reg[t], rowA[t])
        B3, W32 = 114, 116
        cmul2(a, [(R_(1288), reg[776], W512, T0), (R_(1544), reg[1032], W512, T1), (B3, W2, W8, T2)])
        for t in (776, 1032): put(reg[t], rowA[t])
        cmul2(a, [(R_(1800), reg[1288], W512, T0), (W32, W2, W2, T1)])
        for t in (1288, 1544, 1800): put(reg[t], rowA[t])
        assert nxt[0] <= 114
        if late == 1: gather(2 * p)
        if late == 2 and p == 0: gather(0); gather(1)
        if late == 3 and p == 0: gather(1); gather(2)
        if late == 5 and p == 1: older([0, 1])
        if late == 6 and p == 1: older([1])
        if opt("kp", 1) == 2: a(f"s_setprio {2-2*p}")
        a(f"s_add_u32 m0, s53, {BROW}\nv_mov_b32 v55, 0x3f80")
        if p == 0: a("ds_write_addtid_b32 v55 offset:0")
        cur = [W8, W2, B3, W32]
        buf = [[72, 74, 76, 78], [80, 82, 84, 86]]
        tmp = [88, 90, 92, 94]
        for g in range(8):
            n = 4 if g < 6 else (3 if g == 6 else 0)
            new = buf[g & 1]
            cmul2(a, [(new[i], cur[i], W32, tmp[i]) for i in range(n)])
            for i in range(4 if g < 7 else 3): put(cur[i], [4*g+1+i])
            cur = new
        if late == 1: gather(2 * p + 1)
        if late == 2 and p == 0: gather(2); gather(3)
        if late == 3 and p == 0: gather(3)
        if late == 5 and p == 1: older([2, 3])
        if late == 6: older([[0], [2]][p])
        for ks in range(8):
            a(f"ds_read_b128 {vr(OP+8*ks,4)}, v4 offset:{32*ks}")
            a(f"ds_read_b128 {vr(OP+8*ks+4,4)}, v4 offset:{BROW+32*ks}")
        for ks in range(8):
            a(f"s_waitcnt lgkmcnt({14-2*ks})")
            mfma32(a, KA, OP+8*ks, OP+8*ks+4, None if (p == 0 and ks == 0) else KA)
    stamp(a, prof, 2)
    if late == 4: older(range(4))
    if late == 6: older([3])
    a(f"""
    s_mov_b32 s46, 0x05040100
    s_mov_b32 s47, 0x07060302
    s_mul_i32 s53, s51, {TS}
    s_add_u32 s53, s53, {TB}
    v_lshl_add_u32 v48, v1, 4, s53
    v_and_b32 v49, 31, v1
    v_lshrrev_b32 v50, 5, v1
    v_lshlrev_b32 v51, 5, v49
    v_lshl_add_u32 v51, v50, 4, v51
    v_add_u32 v51, s53, v51
    v_and_b32 v52, 1, v1
    v_mul_u32_u24 v52, 192, v52
    v_lshl_add_u32 v52, v50, 6, v52
    v_and_b32 v53, 30, v1
    v_lshl_add_u32 v52, v53, 1, v52
    v_add_u32 v52, s53, v52
    v_lshl_add_u32 v53, v1, 1, s53
    v_mov_b32 v54, s53
    s_add_u32 s54, s53, 4
    v_add_u32 v2, s54, v2
    v_add_u32 v4, 1024, v2
    v_add_u32 v7, 2048, v2
    v_lshlrev_b32 v253, 2, v6
    v_sub_u32 v253, v5, v253
    s_add_u32 s54, s53, {EO+52}
    v_lshl_add_u32 v253, v253, 2, s54
    s_waitcnt vmcnt(0)
    """)
    if opt("gx", 1):
        a("v_and_b32 v251, 1, v250\nv_and_b32 v250, 2, v250\nv_cmp_ne_u32 s[44:45], 0, v250\nv_cmpx_ne_u32 vcc, 0, v251")
        for d in range(4): a(f"v_swap_b32 v{R+d}, v{R+4+d}\nv_swap_b32 v{R+8+d}, v{R+12+d}")
        a("s_mov_b64 exec, s[44:45]")
        for d in range(8): a(f"v_swap_b32 v{R+d}, v{R+8+d}")
        a("s_mov_b64 exec, -1")
    for c in range(8):
        d, sel = c >> 1, 46 + (c & 1)
        t = 72 + 2 * c
        a(f"v_perm_b32 v{t}, v{R+4+d}, v{R+d}, s{sel}\nv_perm_b32 v{t+1}, v{R+12+d}, v{R+8+d}, s{sel}")
        a(f"ds_write_b64 v3, {vr(t,2)} offset:{c*US}")
    a(f"""
    v_lshlrev_b32 v3, 5, v5
    v_and_b32 v254, 1, v6
    v_lshl_add_u32 v254, v254, 9, v3
    v_lshrrev_b32 v12, 1, v6
    v_lshl_add_u32 v254, v12, 4, v254
    v_lshl_add_u32 v3, v6, 4, v3
    v_add_u32 v3, s60, v3
    s_lshl_b32 s53, s52, 12
    s_add_u32 s53, s53, {WS_BT}
    s_mul_i32 s44, s64, 5120
    s_mul_i32 s45, s64, {32*1280}
    s_add_u32 s46, s45, {256*1280}
    s_add_u32 s47, s45, {512*1280}
    """)
    fin.tile_ids(a)
    WA = [28, 29, 30, 31, 252]
    fin.wo_addr(a, WA, 12, 13)
    a(f"""
    s_mov_b64 exec, 1
    v_add_f32 v{KA}, s57, v{KA}
    s_mov_b64 exec, -1
    v_cvt_pk_bf16_f32 v55, v{KA}, 0
    """)
    for i in range(4): a(f"v_cvt_pk_bf16_f32 v{56+i}, v{KA+i+1}, v{KA+i}")
    for i, (lo, hi) in enumerate([(5,5),(6,5),(7,6),(7,7)]): a(f"v_cvt_pk_bf16_f32 v{60+i}, v{KA+lo}, v{KA+hi}")
    a(f"""
    v_cvt_pk_bf16_f32 v64, v{KA+8}, v{KA+9}
    v_cvt_pk_bf16_f32 v65, v{KA+10}, v{KA+11}
    v_and_b32 v66, 0xffff0000, v63
    v_lshrrev_b32 v67, 16, v64
    v_and_b32 v69, 0xffff0000, v64
    v_or_b32 v68, v67, v69
    s_waitcnt lgkmcnt(0)
    """)
    stamp(a, prof, 3)
    a(f"s_setprio {opt('sp', 1)}")
    a(f"""
    s_barrier
    ds_write_b128 v48, v[8:11]
    ds_write_b128 v48, v[8:11] offset:2048
    ds_write_b128 v51, v[56:59] offset:64
    ds_write_b128 v51, v[60:63] offset:1088
    s_mov_b64 exec, 1
    ds_write_b32 v54, v55 offset:60
    s_mov_b64 exec, -1
    """)
    T, E, ACC, F, BX, OUT = 72, 120, 160, 192, 228, 24
    G, PK = [224, 104], [12, 108]
    T32, TFIX = 96, 100
    def treg(m): return T + 8 * ((m % 16) // 2 % 3) + (4 if m >= 16 else 0)
    def rd2(d, addr, o, step, tag):
        return [(f"ds_read2_b32 {vr(d,2)}, v{addr} offset0:{o+3*step} offset1:{o+2*step}", None),
                (f"ds_read2_b32 {vr(d+2,2)}, v{addr} offset0:{o+step} offset1:{o}", tag)]
    def ld(x): a(x[0]); lg.push(x[1])
    def rdT(mu): return rd2(treg(mu), 2, 16 * mu, 2, None) + rd2(treg(mu + 16), 4, 16 * mu, 2, ("T", mu))
    nearq = [(mu, j) for mu in range(0, 16, 2) for j in range(8)] + [(0, j) for j in range(6)]
    def ldF(n):
        mu, j = nearq[n]
        ld((f"ds_read_b128 {vr(F+4*(n%8),4)}, v3 offset:{480+512*j-32*mu}", ("F", n)))
    def ldG(j): ld((f"ds_read_b128 {vr(G[j&1],4)}, v3 offset:{464+512*j}", ("G", j)))
    for i in range(5): lg.push(None)
    for x in rdT(0): ld(x)
    for n in range(3): ldF(n)
    a(f"""
    ds_write_b32 v52, v64 offset:{EO+64}
    ds_write_b16 v53, v65 offset:{EO+384+64}
    ds_write_b16_d16_hi v53, v65 offset:{EO+384+64+128}
    s_mov_b32 exec_lo, 0
    s_mov_b32 exec_hi, 0x80000000
    ds_write2_b32 v54, v63, v63 offset0:0 offset1:1
    ds_write2_b32 v54, v66, v67 offset0:2 offset1:{(FO+72-2112)//4}
    ds_write2_b32 v54, v68, v69 offset0:{(FO+76-2112)//4} offset1:{(FO+80-2112)//4}
    s_mov_b64 exec, -1
    """.replace("s_mov_b32 exec_lo, 0", "v_add_u32 v54, 2112, v54\ns_mov_b32 exec_lo, 0"))
    for i in range(6): lg.push(None)
    for n in range(3, 7): ldF(n)
    stamp(a, prof, 4)
    if prof: lg.q = []
    EA = {d: E + 4 * (d - 2) for d in (2, 3, 4)}
    EB = {d: E + 12 + 4 * (d - 2) for d in (2, 3, 4)}
    E3 = {d: E + 24 + 4 * (d - 4) for d in (4, 5, 6, 7)}
    far = rd2(T32, 7, 0, 2, "E") + rd2(TFIX, 7, (FO - 2048) // 4, 2, "E")
    for d in (2, 3, 4): far += rd2(EA[d], 253, 16 * (d - 2), 1, "E") + rd2(EB[d], 253, 48 + 16 * (d - 2), 1, "E")
    for d in (4, 5, 6, 7): far += rd2(E3[d], 253, 96 + 16 * (d - 4), 1, "E")
    last = {}
    def mf(d, x, y, c):
        mfma16(a, d, x, y, c); last[d] = len(a.lines)
    def need(*ds):
        n = 8 - min(sum(1 for l in a.lines[last[d]:] if l.strip()) for d in ds)
        if n > 0: a(f"s_nop {n-1}")
    started = set()
    def acc(i, x, y):
        mf(ACC+4*i, x, y, ACC+4*i if i in started else None); started.add(i)
    def store(i):
        o = OUT + 2 * (i & 1)
        need(ACC + 4 * i)
        a(f"v_cvt_pk_bf16_f32 v{o}, v{ACC+4*i}, v{ACC+4*i+1}\nv_cvt_pk_bf16_f32 v{o+1}, v{ACC+4*i+2}, v{ACC+4*i+3}")
        if i & 1:
            a(f"s_nop 1\nv_permlane16_swap_b32 v{OUT}, v{OUT+2}\nv_permlane16_swap_b32 v{OUT+1}, v{OUT+3}")
            a(f"buffer_store_dwordx4 {vr(OUT,4)}, v254, s[40:43], s53 offen offset:{512*(i-1)} sc1")
    dma = fin.wo_group(WA, 44, 45, 0) + fin.wo_group(WA, 44, 46, 40960)
    tq = []
    for n in range(64):
        mu, j = nearq[n]
        if j == 0:
            lg.wait(("T", mu), ("F", n))
            tq = (rdT(mu + 2) if mu < 14 else []) + far[:4]; far = far[4:]
        else: lg.wait(("F", n))
        f = F + 4 * (n % 8)
        acc(j, treg(mu), f)
        if tq: ld(tq.pop(0))
        if j <= 6: acc(j + 1, treg(mu + 16), f)
        if n + 7 < len(nearq): ldF(n + 7)
        if n >= opt("sd", 8) and n % 4 == 1 and dma: a(dma.pop(0))
        if n == opt("sd", 8) + 44:
            a("s_cmp_ge_u32 s64, 4\ns_cbranch_scc1 S_nodma")
            for x in fin.wo_group(WA, 44, 47, 81920): a(x)
            a("S_nodma:")
        if n in (58, 60): ldG((n - 58) // 2)
    assert not far and not dma
    fin.ready_issue(a, 8, 9)
    a("s_setprio 0")
    stamp(a, prof, 6)
    if prof: lg.q = []
    def box(j):
        f = F + 4 * ((64 + j) % 8); g = G[j & 1]
        lg.wait(("F", 64 + j), ("G", j), "E")
        mf(BX, f, X, None); mf(BX+4, f, X+4, None); mf(BX+8, g, X, None); mf(BX+12, g, X+4, None)
        if j <= 3: mf(BX+16, f, X+8, None); mf(BX+20, g, X+12, None)
        if j + 2 <= 5: ldG(j + 2)
        acc(j + 2, T32, f)
        if j <= 3: acc(j + 4, TFIX, f)
    def pack(j):
        out = []
        for k in range(3 if j <= 3 else 2):
            for r in range(4): out.append(((BX+8*k, BX+8*k+4), f"v_cvt_pk_bf16_f32 v{PK[j&1]+4*k+r}, v{BX+8*k+r}, v{BX+8*k+4+r}"))
        return out
    box(0)
    store(0); store(1)
    for dep, x in pack(0): need(*dep); a(x)
    for j in range(6):
        pk = []
        if j < 5: box(j + 1); pk = pack(j + 1)
        else: a("s_nop 1")
        p = PK[j & 1]
        ops = [(j+d, p, EA[d]) for d in (2, 3, 4)] + [(j+d, p+4, EB[d]) for d in (2, 3, 4)] + [(j+d, p+8, E3[d]) for d in (4, 5, 6, 7)]
        ops = [o for o in ops if o[0] <= 7]
        ops.sort(key=lambda o: o[0] != j + 2)
        for i, o in enumerate(ops):
            acc(*o)
            for _ in range(2):
                if pk and i >= 1:
                    dep, x = pk.pop(0); need(*dep); a(x)
        for dep, x in pk: need(*dep); a(x)
        if j == 1: fin.ready_wait(a, 8, 9, 44)
        store(j + 2)
    stamp(a, prof, 5)
    a("s_branch FIN_B")
```

```python
from gen import Asm

WS_BT   = 0x000000
WS_O    = 0x280000
WS_PART = 0x500000
WS_FLAG = 0x580000
WS_G    = 0x600000
WS_DBG  = 0x700000
WS_SIZE = 0x800000

OPT = {}
def opt(name, default=0): return OPT.get(name, default)

class Q:
    def __init__(self, a, name, cap):
        self.a, self.name, self.cap, self.q = a, name, cap, []
    def push(self, tag=None):
        self.q.append(tag)
    def wait(self, *tags):
        idx = max((i for i, t in enumerate(self.q) if t in tags), default=-1)
        if idx < 0: return
        n = len(self.q) - 1 - idx
        if n > self.cap: n = self.cap
        self.a(f"s_waitcnt {self.name}({n})")
        self.q = self.q[len(self.q) - n:] if n else []
    def drain(self):
        if self.q: self.a(f"s_waitcnt {self.name}(0)")
        self.q = []

def vr(b, n=1):
    return f"v{b}" if n == 1 else f"v[{b}:{b+n-1}]"

def srd(a, d, base, nbytes):
    a(f"s_mov_b32 s{d}, s{base}\ns_mov_b32 s{d+1}, s{base+1}\ns_mov_b32 s{d+2}, {nbytes}\ns_mov_b32 s{d+3}, 0x20000")

def mfma16(a, d, x, y, c=None):
    a(f"v_mfma_f32_16x16x32_bf16 {vr(d,4)}, {vr(x,4)}, {vr(y,4)}, {vr(c,4) if c is not None else '0'}")

def mfma32(a, d, x, y, c=None):
    a(f"v_mfma_f32_32x32x16_bf16 {vr(d,16)}, {vr(x,4)}, {vr(y,4)}, {vr(c,16) if c is not None else '0'}")

def stamp(a, on, idx):
    if opt("ls", 0):
        if idx < 100: return
        idx -= 100
    elif idx >= 100: return
    if on:
        a(f"{'s_memrealtime' if opt('rt') else 's_memtime'} s[68:69]\ns_waitcnt lgkmcnt(0)\ns_mov_b32 s{70+idx}, s68")

def stamp_out(a, on, n, slot_sgpr):
    if not on: return
    a("s_memrealtime s[68:69]\ns_waitcnt lgkmcnt(0)")
    a(f"s_lshl_b32 s67, s{slot_sgpr}, 6\ns_add_u32 s67, s67, {WS_DBG}\ns_mov_b64 exec, 1\nv_mov_b32 v2, s67")
    for i in range(n):
        a(f"v_mov_b32 v3, s{70+i}\nbuffer_store_dword v3, v2, s[40:43], 0 offen offset:{4*i}")
    a("v_mov_b32 v3, s66\nbuffer_store_dword v3, v2, s[40:43], 0 offen offset:56")
    a("v_mov_b32 v3, s68\nbuffer_store_dword v3, v2, s[40:43], 0 offen offset:60")
    a("s_waitcnt vmcnt(0)")
```

```python
from common import *

POLL_MAX = 1 << 14
TILE_IDS = ["s_and_b32 s62, s2, 7", "s_lshl_b32 s62, s62, 2", "s_lshr_b32 s63, s2, 6", "s_add_u32 s62, s62, s63",
            "s_bfe_u32 s63, s2, 0x30003"]

def tile_list():
    if not opt("tm", 0): return TILE_IDS
    return ["s_and_b32 s62, s2, 3", "s_lshl_b32 s62, s62, 3", "s_and_b32 s63, s2, 4", "s_add_u32 s62, s62, s63"] + TILE_IDS[2:]

def tile_ids(a):
    for x in tile_list(): a(x)

def wo_addr(a, regs, t0, t1, step=64, vid=1, sd=36):
    srd(a, sd, 8, 819200)
    a("s_mul_i32 s3, s63, 160")
    for i, r in enumerate(regs):
        a(f"""
        v_add_u32 v{t0}, {step*i}, v{vid}
        v_mul_u32_u24 v{t1}, 6554, v{t0}
        v_lshrrev_b32 v{t1}, 16, v{t1}
        v_mul_u32_u24 v{t1}, {1280-160}, v{t1}
        v_lshl_add_u32 v{t0}, v{t0}, 4, v{t1}
        v_add_u32 v{r}, s3, v{t0}
        """)

def wo_group(regs, sl, sg, dl):
    return [f"s_add_u32 m0, s{sl}, {dl + 1024*i}\ns_nop 0\nbuffer_load_dwordx4 v{r}, s[36:39], s{sg} offen lds" for i, r in enumerate(regs)]

def ready_set(a, va, vd, wave=0, n=48, off=0):
    l = a.label("rds")
    a(f"""
    s_cmp_lg_u32 s64, {wave}
    s_cbranch_scc1 {l}
    v_mov_b32 v{va}, {off}
    v_mov_b32 v{vd}, 1
    s_mov_b64 exec, 1
    global_atomic_add v{vd}, v{va}, v{vd}, s[28:29] sc0 sc1
    s_waitcnt vmcnt(0)
    v_cmp_eq_u32 vcc, {n-1}, v{vd}
    s_cbranch_vccz {l}x
    global_store_dword v{va}, v{vd}, s[28:29] offset:128 sc1
    {l}x:
    s_mov_b64 exec, -1
    {l}:
    """)

def ready_issue(a, va, vd, wave=0):
    l = a.label("rdi")
    a(f"v_mov_b32 v{va}, 0\nv_mov_b32 v{vd}, 1\ns_cmp_lg_u32 s64, {wave}\ns_cbranch_scc1 {l}")
    a(f"global_load_dword v{vd}, v{va}, s[28:29] offset:128 sc1\n{l}:")

def ready_wait(a, va, vd, st, newer=0):
    l = a.label("rdy")
    a(f"""
    s_mov_b32 s{st}, 0
    s_waitcnt vmcnt({newer})
    {l}:
    v_cmp_eq_u32 vcc, 0, v{vd}
    s_cbranch_vccz {l}x
    s_sleep 4
    global_load_dword v{vd}, v{va}, s[28:29] offset:128 sc1
    s_add_u32 s{st}, s{st}, 1
    s_cmp_lt_u32 s{st}, {POLL_MAX}
    s_waitcnt vmcnt(0)
    s_cbranch_scc1 {l}
    {l}x:
    """)

def l2_prefetch(a, sn, vd):
    l = a.label("pf")
    a(f"""
    s_cmp_ge_u32 s{sn}, 108
    s_cbranch_scc1 {l}q
    s_mul_i32 s44, s{sn}, 3641
    s_lshr_b32 s44, s44, 16
    s_mul_i32 s45, s44, 18
    s_sub_u32 s45, s{sn}, s45
    s_lshl_b32 s44, s44, 2
    s_lshr_b32 s44, 0x948631, s44
    s_and_b32 s44, s44, 15
    s_cmp_ge_u32 s45, 8
    s_cbranch_scc1 {l}w
    s_and_b32 s46, s2, 3
    s_lshl_b32 s46, s46, 3
    s_add_u32 s46, s46, s45
    s_mul_i32 s46, s46, {64*1280}
    s_lshl_b32 s44, s44, 7
    s_add_u32 s46, s46, s44
    v_mul_u32_u24 v{vd}, 1280, v1
    buffer_load_dword v{vd}, v{vd}, s[32:35], s46 offen
    s_branch {l}x
    {l}q:
    s_sub_u32 s45, s{sn}, 108
    s_mul_i32 s44, s45, 13108
    s_lshr_b32 s44, s44, 16
    s_mul_i32 s46, s44, 5
    s_sub_u32 s45, s45, s46
    s_branch {l}v
    {l}w:
    s_cmp_ge_u32 s45, 13
    s_cselect_b32 s46, 7, 2
    s_add_u32 s45, s45, s46
    {l}v:
    s_mul_i32 s44, s44, {64*3840}
    s_lshl_b32 s45, s45, 7
    s_add_u32 s44, s44, s45
    s_bfe_u32 s45, s2, 0x10002
    s_mul_i32 s45, s45, 640
    s_add_u32 s44, s44, s45
    v_mul_u32_u24 v{vd}, 3840, v1
    v_add_u32 v{vd}, s44, v{vd}
    global_load_dword v{vd}, v{vd}, s[6:7]
    {l}x:
    """)

def pf_first(a, vd):
    a("s_lshr_b32 s47, s2, 3\ns_lshl_b32 s3, s64, 4\ns_add_u32 s47, s47, s3\ns_sub_u32 s47, s47, 16")
    l2_prefetch(a, 47, vd)

def help_role(a, prof):
    if opt("l2pf", 1):
        pf_first(a, 254)
        a("s_lshr_b32 s47, s2, 3\ns_mul_i32 s3, s64, 6\ns_add_u32 s47, s47, s3\ns_add_u32 s47, s47, 102\ns_cmp_ge_u32 s47, 158\ns_cbranch_scc1 H_gate")
        l2_prefetch(a, 47, 253)
        a("H_gate:")
        if opt("pfw", 0): a("s_waitcnt vmcnt(0)")
    a("""
    s_sub_u32 s50, s2, 208
    s_lshl_b32 s52, s50, 3
    s_add_u32 s52, s52, s64
    s_and_b32 s3, s2, 3
    s_lshl_b32 s3, s3, 1
    s_bfe_u32 s44, s2, 0x10002
    s_add_u32 s3, s3, s44
    s_lshl_b32 s3, s3, 2
    s_lshr_b32 s44, s50, 3
    s_add_u32 s3, s3, s44
    s_lshl_b32 s3, s3, 3
    s_add_u32 s3, s3, s64
    s_lshl_b32 s3, s3, 3
    v_lshrrev_b32 v2, 3, v1
    v_add_u32 v2, s3, v2
    v_mul_u32_u24 v3, 1280, v2
    v_and_b32 v4, 7, v1
    v_lshlrev_b32 v5, 4, v4
    v_add_u32 v3, v3, v5
    v_lshlrev_b32 v2, 2, v2
    """)
    def gstore(v):
        a(f"""
        v_cmp_eq_u32 vcc, 0, v4
        s_mov_b32 s3, {WS_G}
        s_and_saveexec_b64 s[44:45], vcc
        buffer_store_dword v{v}, v2, s[40:43], s3 offen sc1
        s_mov_b64 exec, -1
        """)
    def gate():
        a("s_cmp_ge_u32 s50, 32\ns_cbranch_scc1 H_nogate")
        for i in range(10):
            a(f"global_load_dwordx4 {vr(8+8*i,4)}, v5, s[24:25] offset:{128*i}")
            a(f"buffer_load_dwordx4 {vr(12+8*i,4)}, v3, s[32:35], 0 offen offset:{128*i}")
        a("v_mov_b32 v6, 0\nv_mov_b32 v7, 0")
        for i in range(10):
            a(f"s_waitcnt vmcnt({18-2*i})")
            for r in range(4): a(f"v_dot2c_f32_bf16 v{6+(r&1)}, v{8+8*i+r}, v{12+8*i+r}")
        a("""
        s_nop 2
        v_add_f32 v6, v6, v7
        s_nop 1
        v_add_f32 v6, v6, v6 quad_perm:[1,0,3,2] row_mask:0xf bank_mask:0xf
        s_nop 1
        v_add_f32 v6, v6, v6 quad_perm:[2,3,0,1] row_mask:0xf bank_mask:0xf
        s_nop 1
        v_add_f32 v6, v6, v6 row_half_mirror row_mask:0xf bank_mask:0xf
        v_mul_f32 v6, 0xbfb8aa3b, v6
        v_exp_f32 v6, v6
        s_nop 0
        v_add_f32 v6, 1.0, v6
        v_rcp_f32 v6, v6
        s_nop 0
        v_and_b32 v6, 0x7fffffff, v6
        """)
        gstore(6)
        a("H_nogate:")
    first = opt("gfirst", 0)
    if first: gate()
    a(f"""
    v_mov_b32 v96, -1
    v_mov_b32 v97, -1
    v_mov_b32 v98, -1
    v_mov_b32 v99, -1
    v_lshlrev_b32 v100, 4, v1
    s_add_u32 s46, s50, 1
    s_and_b32 s46, s46, 7
    s_mul_i32 s46, s46, 5
    s_lshr_b32 s47, s50, 3
    s_add_u32 s46, s46, s47
    s_cmp_ge_u32 s50, 40
    s_cselect_b32 s46, s50, s46
    s_lshl_b32 s46, s46, 3
    s_add_u32 s46, s46, s64
    s_lshl_b32 s46, s46, 13
    s_add_u32 s46, s46, {WS_O}
    s_add_u32 s47, s46, 4096
    s_cmp_ge_u32 s50, 32
    s_cbranch_scc1 H_flag
    """)
    if not first: gstore(96)
    a(f"""
    s_branch H_fill
    H_flag:
    s_lshl_b32 s3, s52, 7
    s_add_u32 s3, s3, {WS_FLAG - 256*128}
    v_lshlrev_b32 v6, 14, v1
    s_mov_b64 exec, 3
    buffer_store_dword v96, v6, s[40:43], s3 offen sc1
    s_mov_b64 exec, -1
    H_fill:
    """)
    for i in range(8): a(f"buffer_store_dwordx4 v[96:99], v100, s[40:43], s{46+(i>>2)} offen offset:{(i&3)*1024} sc1")
    W = [101, 102, 103, 104, 105]
    wo_addr(a, W, 6, 7)
    stamp(a, prof, 1)
    a("s_waitcnt vmcnt(0)\ns_barrier")
    ready_set(a, 6, 7)
    stamp(a, prof, 2)
    if not first: gate()
    a(f"s_mul_i32 s44, s64, 5120\ns_mul_i32 s45, s64, {32*1280}")
    stamp(a, prof, 3)
    for g in range(3):
        if g == 2: a("s_cmp_ge_u32 s64, 4\ns_cbranch_scc1 H_wait")
        for x in wo_group(W, 44, 45, 40960 * g): a(x)
        a(f"s_add_u32 s45, s45, {256*1280}")
    a("H_wait:\ns_waitcnt vmcnt(0)")
    ready_issue(a, 252, 253)
    ready_wait(a, 252, 253, 44)
    a("s_barrier")
    stamp(a, prof, 7)
    a("FIN_B:\ns_mov_b32 s58, 51200\ns_mov_b32 s59, 102400")

def final(a, prof):
    FR, OF, ACC, BR, BF = 88, 28, 68, 12, 20
    NP = 21
    a(f"""
    FIN:
    s_and_b32 s44, s64, 3
    s_lshr_b32 s45, s64, 2
    s_lshl_b32 s46, s62, 2
    s_add_u32 s46, s46, s44
    s_lshl_b32 s47, s46, 1
    s_add_u32 s47, s47, s45
    s_mul_i32 s47, s47, {4*2560}
    s_add_u32 s47, s47, {WS_O}
    s_add_u32 s48, s47, 2560
    s_add_u32 s49, s47, 5120
    s_add_u32 s50, s47, 7680
    s_mul_i32 s51, s63, 80
    s_lshl_b32 s52, s51, 12
    s_lshl_b32 s53, s46, 5
    s_add_u32 s52, s52, s53
    s_add_u32 s52, s52, {WS_BT}
    s_add_u32 s53, s52, {32*4096}
    s_lshl_b32 s54, s46, 6
    s_add_u32 s54, s54, {WS_G}
    v_lshlrev_b32 v4, 4, v1
    v_lshlrev_b32 v5, 3, v1
    v_lshrrev_b32 v6, 1, v1
    v_lshlrev_b32 v6, 12, v6
    v_and_b32 v7, 1, v1
    v_lshl_add_u32 v6, v7, 4, v6
    v_cmp_gt_u32 vcc, 10, v1
    v_and_b32 v8, 15, v1
    v_lshlrev_b32 v{BF+1}, 2, v8
    s_mul_i32 s99, s63, 1280
    s_add_u32 s99, s99, {WS_FLAG}
    v_lshl_add_u32 v7, v1, 7, s99
    s_lshr_b32 s99, s62, 1
    s_lshl_b32 s99, s99, 10
    s_add_u32 s99, s99, {WS_FLAG+16384}
    v_lshl_add_u32 v{BF}, v8, 7, s99
    v_cndmask_b32 v{BF}, v{BF}, v7, vcc
    s_add_u32 s98, s52, {64*4096}
    v_mov_b32 v7, 0
    """)
    def issueC():
        for i, sr in enumerate((52, 53, 98)):
            a(f"s_add_u32 m0, s55, {1024*i}\n" + ("s_mov_b32 exec_hi, 0" if i == 2 else "s_nop 0"))
            a(f"buffer_load_dwordx4 v6, s[40:43], s{sr} offen {'' if opt('bp', 1) else 'sc1'} lds")
        a("s_mov_b32 exec_hi, -1")
    def issue(c, sc="sc1"):
        o = OF + 20 * c
        for g in range(2):
            s = 47 + 2 * c + g
            a(f"buffer_load_dwordx2 {vr(o+16+2*g,2)}, v5, s[40:43], s{s} offen offset:2048 {sc}")
            a(f"buffer_load_dwordx4 {vr(o+8*g,4)}, v4, s[40:43], s{s} offen {sc}")
            a(f"buffer_load_dwordx4 {vr(o+8*g+4,4)}, v4, s[40:43], s{s} offen offset:1024 {sc}")
    stamp(a, prof, 8)
    a(f"""
    s_mul_i32 s55, s45, s58
    v_and_b32 v27, 3, v1
    v_lshrrev_b32 v2, 2, v1
    v_mul_u32_u24 v2, 160, v2
    v_add_u32 v2, s55, v2
    v_bfe_u32 v10, v1, 2, 2
    v_mul_u32_u24 v10, 20, v10
    v_lshrrev_b32 v9, 4, v1
    v_add3_u32 v10, v10, v9, 16
    v_mul_u32_u24 v10, 160, v10
    v_add_u32 v10, s55, v10
    v_lshl_add_u32 v3, v27, 3, v2
    v_lshl_add_u32 v11, v27, 3, v10
    v_lshrrev_b32 v0, 1, v27
    v_lshlrev_b32 v0, 3, v0
    v_lshl_add_u32 v0, v27, 4, v0
    v_add_u32 v2, v2, v0
    v_add_u32 v10, v10, v0
    v_xor_b32 v0, 8, v2
    v_xor_b32 v27, 8, v10
    """)
    def rd(c, n, d):
        ks, j = divmod(n, 5)
        out = []
        for half in range(2):
            if ks < 4: ad, o = (2, 0, 2, 0, 3)[j], (80 * (ks >> 1) + 20 * (2 * (ks & 1) + half)) * 160
            else: ad, o = (10, 27, 10, 27, 11)[j], 80 * half * 160
            out.append(f"ds_read_b64_tr_b16 {vr(d+2*half,2)}, v{ad} offset:{c*25600 + o + 64*(j>>1)}")
        return "\n".join(out)
    so = opt("so", 0)
    def flag(l):
        return f"""s_waitcnt vmcnt(0)
        s_barrier
        s_cmp_lg_u32 s64, 4
        s_cbranch_scc1 {l}
        s_mov_b64 exec, 1
        buffer_store_dword v7, v7, s[40:43], s97 offen sc1
        s_mov_b64 exec, -1"""
    a(f"""
    s_cmp_ge_u32 s2, 208
    s_cbranch_scc1 F_pre
    s_cmp_ge_u32 s2, 128
    s_cbranch_scc1 F_ssm
    s_cmp_eq_u32 s45, 0
    s_cbranch_scc1 {"F_lo" if opt("ep", 0) else "F_pre"}
    s_barrier
    s_branch F_pre
    F_lo:
    s_mov_b64 exec, 0xff03ff
    buffer_load_dword v25, v{BF}, s[40:43], 0 offen sc1
    s_mov_b64 exec, -1
    s_branch F_pre
    F_ssm:
    {"s_barrier" if so else flag("F_pre")}
    F_pre:
    buffer_load_dword v26, v{BF+1}, s[40:43], s54 offen sc1
    """)
    def freg(c, n): return FR + 4 * NP * c + 4 * (n % NP)
    for c in range(2):
        for n in range(NP):
            a(rd(c, n, freg(c, n)))
            if c == 0 and n < 20: a(f"v_mov_b32 v{ACC+n}, 0")
            if c * NP + n + 1 == so:
                a(f"s_sub_u32 s3, s2, 128\ns_cmp_ge_u32 s3, 80\ns_cbranch_scc1 F_mid\n{flag('F_mid')}\nF_mid:")
    a(f"""
    s_mov_b32 s56, 3
    s_mov_b32 s57, 0
    s_mov_b64 s[60:61], -1
    s_mul_i32 s55, s44, {3072+5120}
    s_add_u32 s55, s55, s59
    v_lshrrev_b32 v12, 1, v9
    v_lshlrev_b32 v12, 7, v12
    v_lshl_add_u32 v12, v9, 8, v12
    v_lshl_add_u32 v12, v8, 3, v12
    v_add_u32 v12, s55, v12
    v_xor_b32 v13, 128, v12
    v_add_u32 v14, s55, v5
    v_add_u32 v15, s55, v4
    v_mul_u32_u24 v16, 1280, v8
    v_lshl_add_u32 v17, v9, 3, v16
    v_lshl_add_u32 v16, v9, 4, v16
    s_mul_i32 s46, s46, {16*1280}
    s_lshl_b32 s51, s51, 1
    s_add_u32 s46, s46, s51
    s_waitcnt lgkmcnt(0)
    """)
    srd(a, 36, 26, 2621440)
    stamp(a, prof, 9)
    bflag = f"buffer_load_dword v25, v{BF}, s[40:43], 0 offen sc1"
    a(f"""
    s_mov_b32 s96, 0
    s_cmp_lg_u32 s45, 0
    s_cbranch_scc1 F_go
    s_mov_b32 s99, 0xff0000
    s_cmp_ge_u32 s2, 128
    s_cbranch_scc1 F_idle
    s_waitcnt vmcnt(0)
    s_barrier
    {"s_mov_b32 s99, 0" if opt("gb", 0) else ""}
    {"s_mov_b64 exec, 0xff03ff" if opt("ep", 0) else ""}
    {"s_branch F_chk" if opt("ep", 0) else ""}
    F_idle:
    s_or_b32 exec_lo, s99, 0x3ff
    s_mov_b32 exec_hi, 0
    {bflag}
    s_add_u32 s57, s57, 1
    s_waitcnt vmcnt(0)
    F_chk:
    v_cmp_eq_u32 vcc, -1, v25
    s_mov_b64 exec, -1
    s_and_b32 s3, vcc_lo, 0x3ff
    s_or_b32 s3, s3, s96
    s_cbranch_scc1 F_nob
    s_mov_b32 s96, 1
    """)
    issueC()
    a(f"""
    F_nob:
    s_and_b32 s3, vcc_lo, s99
    s_cbranch_scc0 F_seen
    s_sleep {opt("fs", 0)}
    s_cmp_lt_u32 s57, {POLL_MAX}
    s_cbranch_scc1 F_idle
    F_seen:
    s_mov_b32 s57, 0
    """)
    if opt("fo", 0):
        nb = opt("fn", 2)
        for c in range(nb): issue(c)
        a("s_barrier")
        for c in range(nb, 2): issue(c)
        a("s_branch F_in")
    a("F_go:\ns_barrier")
    def run(h):
        t = "FH" if h else "FL"
        for c in range(2): issue(c, ("sc1", "", "sc0", "nt")[opt("op", 0)])
        a("F_in:")
        if opt("br", 0):
            a(f"s_or_b32 s3, s96, s45\ns_cbranch_scc1 F_nrp\ns_mov_b64 exec, 0x3ff\n{bflag}\ns_mov_b64 exec, -1\nF_nrp:")
        stamp(a, prof, 10)
        a(f"{t}_loop:")
        for c in range(2):
            o = OF + 20 * c
            a(f"""
            s_bitcmp1_b32 s56, {c}
            s_cbranch_scc0 {t}_n{c}
            s_waitcnt vmcnt({6-6*c})
            v_max3_u32 v1, v{o}, v{o+4}, v{o+8}
            v_max3_u32 v1, v1, v{o+12}, v{o+16}
            v_max_u32 v1, v1, v{o+18}
            v_cmp_eq_u32 vcc, -1, v1
            s_and_b64 vcc, vcc, s[60:61]
            s_cbranch_scc1 {t}_n{c}
            s_bitset0_b32 s56, {c}
            """)
            if c == 1 and opt("br", 0):
                a("v_cmp_eq_u32 vcc, -1, v25\ns_or_b32 s3, s96, s45\ns_and_b32 vcc_lo, vcc_lo, 0x3ff\ns_or_b32 s3, s3, vcc_lo\ns_cbranch_scc1 F_nbr\ns_mov_b32 s96, 1")
                issueC()
                a("F_nbr:")
            for n in range(25):
                ks, j = divmod(n, 5)
                if n == NP: a("s_waitcnt lgkmcnt(0)")
                mfma16(a, ACC + 4 * j, freg(c, n), o + 4 * ks, ACC + 4 * j)
                if 2 <= n < 2 + 25 - NP: a(rd(c, NP + n - 2, freg(c, NP + n - 2)))
            a(f"{t}_n{c}:")
        a(f"""
        s_cmp_eq_u32 s56, 0
        s_cbranch_scc1 {t}_done
        s_bitcmp1_b32 s56, 0
        s_cbranch_scc0 {t}_r1
        """)
        issue(0)
        a(f"{t}_r1:\ns_bitcmp1_b32 s56, 1\ns_cbranch_scc0 {t}_r2")
        issue(1)
        a(f"""
        {t}_r2:
        s_add_u32 s57, s57, 1
        s_cmp_lt_u32 s57, {POLL_MAX}
        s_cselect_b64 s[60:61], -1, 0
        s_waitcnt vmcnt(0)
        s_branch {t}_loop
        {t}_done:
        """)
        stamp(a, prof, 13)
    def end():
        stamp(a, prof, 12)
        stamp_out(a, prof, 14, 65)
        a("s_endpgm")
    B, P = OF, OF + 12
    run(0)
    a(f"""
    v_cmp_eq_u32 vcc, -1, v26
    s_cbranch_vccnz F_gw
    F_gok:
    s_cmp_lg_u32 s45, 0
    s_cbranch_scc1 F_hi
    s_cmp_lg_u32 s96, 0
    s_cbranch_scc1 F_bin
    s_mov_b32 s57, 0
    s_mov_b64 exec, 0x3ff
    F_bw:
    {bflag}
    s_add_u32 s57, s57, 1
    s_cmp_lt_u32 s57, {POLL_MAX}
    s_waitcnt vmcnt(0)
    s_cbranch_scc0 F_bok
    v_cmp_eq_u32 vcc, -1, v25
    s_cbranch_vccnz F_bw
    F_bok:
    s_mov_b64 exec, -1
    """)
    issueC()
    a(f"""
    F_bin:
    s_waitcnt vmcnt(0)
    ds_read_b64_tr_b16 v[16:17], v12
    ds_read_b64_tr_b16 v[18:19], v13
    ds_read_b64_tr_b16 v[20:21], v12 offset:1024
    ds_read_b64_tr_b16 v[22:23], v13 offset:1024
    ds_read_b64_tr_b16 v[24:25], v14 offset:2048
    """)
    stamp(a, prof, 11)
    for j in range(5):
        a("s_waitcnt lgkmcnt(4)")
        d = ACC + 4 * j
        for p in range(2):
            a(f"v_lshlrev_b32 v{P+4*j+2*p}, 16, v{16+2*j+p}\nv_and_b32 v{P+4*j+2*p+1}, 0xffff0000, v{16+2*j+p}")
        for r in range(4): a(f"v_sub_f32 v{d+r}, v{d+r}, v{P+4*j+r}")
        for r in range(4): a(f"v_fmac_f32 v{P+4*j+r}, v{d+r}, v26")
        a(f"ds_write_b128 v15, {vr(P+4*j,4)} offset:{3072+1024*j}")
    a("s_waitcnt lgkmcnt(0)\ns_barrier")
    end()
    a("F_hi:")
    a("v_cmp_lt_u32 vcc, 1, v9\ns_barrier")
    stamp(a, prof, 11)
    for j in range(5): a(f"ds_read_b128 {vr(FR+4*j,4)}, v15 offset:{3072+1024*j}")
    for j in range(5):
        a(f"s_waitcnt lgkmcnt({4-j})")
        for r in range(4): a(f"v_fmac_f32 v{FR+4*j+r}, v{ACC+4*j+r}, v26")
        for p in range(2): a(f"v_cvt_pk_bf16_f32 v{B+2*j+p}, v{FR+4*j+2*p}, v{FR+4*j+2*p+1}")
        if j & 1:
            for p in range(4): a(f"v_cndmask_b32 v{P+2*j-2+p}, v{B+2*j-2+p}, v{B+2*j-2+(p^2)}, vcc")
            a(f"buffer_store_dwordx4 {vr(P+2*j-2,4)}, v16, s[36:39], s46 offen offset:{32*(j-1)}")
    a(f"buffer_store_dwordx2 {vr(B+8,2)}, v17, s[36:39], s46 offen offset:128")
    end()
    a(f"""
    F_gw:
    s_sleep 8
    buffer_load_dword v26, v{BF+1}, s[40:43], s54 offen sc1
    s_add_u32 s57, s57, 1
    s_cmp_ge_u32 s57, {POLL_MAX}
    s_waitcnt vmcnt(0)
    s_cbranch_scc1 F_gok
    v_cmp_eq_u32 vcc, -1, v26
    s_cbranch_vccnz F_gw
    s_branch F_gok
    """)
```

```python
from common import *
import fin

SLOT = 36880
WK, WV = 16384, 16384 + 10240 + 16
QB = 3 * SLOT
Q2 = QB - 51200
KVT = 51200
KV32, KS = 45056, 3584
PSTR = 4096
LOG2E = "0x3fb8aa3b"
EPS = "0x358637bd"

def MOD(k): return ("", "sc0", "sc1", "nt", "sc0 sc1", "sc1 nt", "sc0 nt")[opt(k, 0)]

def qloc(s):
    return QB + s * 10240 if s < 5 else Q2 + (s - 5) * 10240

def phi(r, n, tmp):
    out = [f"v_mul_f32 v{tmp+i}, s60, v{r+i}" for i in range(n)]
    for i in range(n): out += [f"v_exp_f32 v{tmp+i}, v{tmp+i} clamp", f"v_max_f32 v{r+i}, s61, v{r+i}"]
    return out + [f"v_add_f32 v{r+i}, v{r+i}, v{tmp+i}" for i in range(n)]

def gemm_role(a, prof=False, ost="sc1"):
    a(f"""
    s_and_b32 s3, s2, 7
    s_lshr_b32 s54, s2, 3
    s_and_b32 s50, s3, 3
    s_lshl_b32 s50, s50, 2
    s_and_b32 s55, s54, 3
    s_add_u32 s50, s50, s55
    s_lshr_b32 s52, s3, 2
    s_lshl_b32 s52, s52, 2
    s_lshr_b32 s54, s54, 2
    s_add_u32 s52, s52, s54
    s_add_u32 s53, s54, s55
    s_and_b32 s53, s53, 3
    s_mul_i32 s53, s53, 5
    s_lshr_b32 s53, s53, 1
    s_mov_b32 s60, {LOG2E}
    s_mov_b32 s61, {EPS}
    s_cmp_lt_u32 s51, 4
    s_cbranch_scc1 G_kv
    """)
    q_waves(a, prof, ost)
    a("G_kv:")
    kv_waves(a, prof)

def lane_addrs(a):
    a("""
    v_and_b32 v5, 15, v1
    v_lshrrev_b32 v6, 4, v1
    v_and_b32 v7, 3, v1
    v_lshrrev_b32 v2, 1, v5
    v_xor_b32 v2, v2, v6
    v_lshlrev_b32 v2, 4, v2
    v_lshl_add_u32 v2, v5, 7, v2
    v_bfe_u32 v3, v1, 2, 3
    v_lshrrev_b32 v4, 5, v1
    v_lshl_add_u32 v3, v4, 4, v3
    v_mul_u32_u24 v3, 160, v3
    """)

def q_waves(a, prof, ost):
    vm = Q(a, "vmcnt", 63); lg = Q(a, "lgkmcnt", 15)
    XO, WO, XS, ACC, WB = 8, 12, 20, 180, 220
    srd(a, 36, 6, 2457600)
    a(f"""
    s_sub_u32 s51, s51, 4
    s_lshl_b32 s54, s50, 2
    s_add_u32 s54, s54, s51
    s_mul_i32 s54, s54, {32*1280}
    v_lshrrev_b32 v2, 3, v1
    v_mul_u32_u24 v2, 1280, v2
    v_lshrrev_b32 v3, 4, v1
    v_and_b32 v4, 7, v1
    v_xor_b32 v3, v3, v4
    v_lshl_add_u32 v2, v3, 4, v2
    v_add_u32 v{XO}, s54, v2
    v_xor_b32 v2, 64, v2
    s_add_u32 s54, s54, {8*1280}
    v_add_u32 v{XO+1}, s54, v2
    v_add_u32 v{XO+2}, {16*1280}, v{XO}
    v_add_u32 v{XO+3}, {16*1280}, v{XO+1}
    s_lshl_b32 s44, s51, 12
    s_lshl_b32 s46, s53, 7
    """)
    def ldx(slot):
        for i in range(4):
            a(f"s_add_u32 m0, s44, {slot*SLOT + i*1024}\ns_nop 0\nbuffer_load_dwordx4 v{XO+i}, s[32:35], s46 offen lds")
    ldx(0)
    a(f"""
    s_and_b32 s54, s51, 1
    s_lshr_b32 s55, s51, 1
    s_mul_i32 s56, s54, {32*3840}
    s_mul_i32 s57, s52, 160
    s_add_u32 s56, s56, s57
    s_mul_i32 s45, s54, 5120
    s_mul_i32 s57, s55, {WV-WK}
    s_add_u32 s48, s45, s57
    s_add_u32 s48, s48, {WK}
    s_mul_i32 s49, s55, 1280
    s_add_u32 s49, s49, 1280
    s_mul_i32 s47, s53, {64*3840}
    s_add_u32 s47, s47, s49
    """)
    for i in range(5):
        a(f"""
        v_add_u32 v2, {64*i}, v1
        v_mul_u32_u24 v3, 6554, v2
        v_lshrrev_b32 v3, 16, v3
        v_mul_u32_u24 v4, 10, v3
        v_sub_u32 v2, v2, v4
        v_lshrrev_b32 v4, 1, v3
        v_xor_b32 v4, v4, v3
        v_and_b32 v4, 4, v4
        v_mul_u32_u24 v4, 3, v4
        v_xor_b32 v3, v3, v4
        v_mul_u32_u24 v3, 3840, v3
        v_lshl_add_u32 v2, v2, 4, v3
        v_add_u32 v{WO+i}, s56, v2
        s_add_u32 m0, s48, {i*1024}
        s_nop 0
        buffer_load_dwordx4 v{WO+i}, s[36:39], s47 offen {MOD('wm')} lds
        """)
    def adv():
        a(f"""
        s_add_u32 s46, s46, 128
        s_add_u32 s47, s47, {64*3840}
        s_cmp_eq_u32 s46, 1280
        s_cselect_b32 s46, 0, s46
        s_cselect_b32 s47, s49, s47
        """)
    def stage_list(s):
        out = [f"s_add_u32 m0, s44, {(s%3)*SLOT + i*1024}\ns_nop 0\nbuffer_load_dwordx4 v{XO+i}, s[32:35], s46 offen lds" for i in range(4)]
        out += [f"s_add_u32 m0, s48, {(s%3)*SLOT + i*1024}\ns_nop 0\nbuffer_load_dwordx4 v{WO+i}, s[36:39], s47 offen lds" for i in range(5)]
        return [(x, ("S", s)) for x in out]
    def emit(x):
        a(x[0]); vm.push(x[1])
    def stage(s):
        adv()
        for x in stage_list(s): emit(x)
    def qpair(n):
        head = f"""
        s_add_u32 s57, s53, s55
        s_add_u32 s57, s57, {2*n}
        s_cmp_ge_u32 s57, 10
        s_cselect_b32 s58, 10, 0
        s_sub_u32 s57, s57, s58
        s_mul_i32 s57, s57, {64*3840}
        s_cmp_eq_u32 s55, 0
        s_mov_b32 s58, {qloc(2*n+1)}
        s_cselect_b32 s58, {qloc(2*n)}, s58
        s_add_u32 s58, s58, s45
        """
        return [((head if i == 0 else "") + f"s_add_u32 m0, s58, {i*1024}\ns_nop 0\nbuffer_load_dwordx4 v{WO+i}, s[36:39], s57 offen lds", ("Q", n)) for i in range(5)]
    for i in range(9): vm.push(("S", 0))
    stage(1)
    lane_addrs(a)
    a(f"""
    v_add_u32 v2, s44, v2
    v_xor_b32 v4, 64, v2
    v_add_u32 v18, {2*SLOT}, v2
    v_add_u32 v19, {2*SLOT}, v4
    v_mul_u32_u24 v17, 40, v7
    v_add3_u32 v17, v17, v3, 32
    v_lshl_add_u32 v3, v7, 3, v3
    """)
    stamp(a, prof, 1)
    WA = [250, 251, 252, 253, 254]
    side = Asm()
    fin.tile_ids(side)
    side("v_and_b32 v255, 255, v0\ns_lshl_b32 s59, s51, 10")
    fin.wo_addr(side, WA, 248, 249, 256, 255, 92)
    side = [x for x in side.lines if x.strip()]
    dma = sum((qpair(n) for n in range(5)), [])
    dma.insert(15 if opt("qs", 0) else 25, ("v_mov_b32 v248, 0\nglobal_load_dword v249, v248, s[28:29] offset:128 sc1", "R"))
    dma += [(f"s_add_u32 m0, s59, {4096*k}\ns_mov_b32 s98, {(k//5)*128*1280}\nbuffer_load_dwordx4 v{WA[k%5]}, s[92:95], s98 offen lds", ("W", 9)) for k in range(11)]
    for s in range(10):
        if opt("ls", 0) == 3: stamp(a, prof, 102 + s)
        vm.wait(("S", s))
        if opt("ls", 0) == 2: stamp(a, prof, 102 + s)
        a("s_waitcnt lgkmcnt(0)\ns_barrier")
        if s == 0: stamp(a, prof, 2)
        if opt("ls", 0) == 1: stamp(a, prof, 102 + s)
        loads = []
        if s <= 7: adv(); loads = stage_list(s + 2)
        if s >= 7:
            c = (opt("c7", 1), opt("c8", 7), opt("c9", 8))[s - 7]
            loads += dma[:c]; del dma[:c]
            assert all(x[1] == "R" or x[1][0] == "S" or x[1][1] < (2, 3, 5)[s - 7] for x in loads)
        fill = []
        for ks in range(2):
            for i in range(2):
                ad = (2, 4)[ks] if s % 3 < 2 else (18, 19)[ks]
                fill.append(f"ds_read_b128 {vr(XS+16*s+8*ks+4*i,4)}, v{ad} offset:{(s%3%2)*SLOT + i*2048}")
        fill = ["\n".join(fill)]
        if 1 <= s <= 6:
            n = (len(side) + 6 - s) // (7 - s)
            fill.append("\n".join(side[:n])); del side[:n]
        for j, x in enumerate(loads):
            emit(x)
            if j >= opt("dp", 2) and fill: a(fill.pop(0))
        for x in fill: a(x)
    a(f"v_add_u32 v18, {QB}, v3\nv_add_u32 v19, {QB}, v17\nv_add_u32 v3, {Q2}, v3\nv_add_u32 v17, {Q2}, v17")
    vm.wait(("Q", 0))
    a("s_waitcnt lgkmcnt(0)\ns_barrier")
    stamp(a, prof, 3); stamp(a, prof, 112)
    NB = 7
    BQ, AF, D0, TMP = 20, 52, 84, 148
    T8 = 52
    order = (4, 0, 1, 2, 3)
    seq = [(s, ks, t) for s in range(5) for ks in range(2) for t in range(5)]
    seq += [(s, ks, t) for t in order for s in range(5, 10) for ks in range(2)]
    n1, n2 = opt("n1", 40), opt("n2", 52 if opt("qs", 0) else 56)
    assert n1 <= 40 and n2 >= 50 and (n2 <= 52 or not opt("qs", 0))
    nd, d0, d1 = len(dma), opt('d0', 5), opt('d1', 40)
    def rd(n):
        s, ks, t = seq[n]
        if n == 20 and n1 > 20:
            vm.wait(("Q", 2 if n1 > 40 else 1)); a("s_barrier")
        while dma and n > d0 and (nd - len(dma)) * (d1 - d0) < (n - d0) * nd: emit(dma.pop(0))
        if n == n1:
            while any(x[1] == "R" for x in dma): emit(dma.pop(0))
            newer = vm.q[vm.q.index("R") + 1:]
            vm.q = newer; fin.ready_wait(a, 248, 249, 99, len(newer)); a("s_barrier")
        if n == n2:
            while any(x[1][0] == "Q" for x in dma): emit(dma.pop(0))
            vm.wait(("Q", 4)); lg.wait(49); a("s_barrier")
        ad = ((18, 19), (3, 17))[s >= 5][t == 4]
        o = (s % 5) * 10240 + ks * 5120 + (40 * t if t < 4 else 0)
        d = WB + 4 * (n % NB)
        a(f"ds_read_b64_tr_b16 {vr(d,2)}, v{ad} offset:{o}\nds_read_b64_tr_b16 {vr(d+2,2)}, v{ad} offset:{o+1280}")
        lg.push(None); lg.push(n)
    msk = ["s[44:45]", "s[46:47]", "s[48:49]", "s[56:57]"]
    setup = f"""
    v_mul_u32_u24 v9, 40, v5
    v_add_u32 v9, {KVT}, v9
    v_lshl_add_u32 v8, v6, 3, v9
    v_lshrrev_b32 v11, 2, v5
    v_cmp_eq_u32 vcc, 0, v7
    v_mov_b32 v12, 4
    v_cmp_eq_u32 s[44:45], 0, v6
    v_cndmask_b32 v11, v12, v11, vcc
    v_cmp_eq_u32 s[46:47], 1, v6
    v_mul_u32_u24 v11, 40, v11
    v_cmp_eq_u32 s[48:49], 2, v6
    v_add_u32 v11, {KVT+640}, v11
    v_cmp_eq_u32 s[56:57], 3, v6
    v_lshl_add_u32 v10, v6, 3, v11
    v_lshlrev_b32 v12, 4, v1
    v_lshlrev_b32 v13, 3, v1
    s_lshl_b32 s54, s50, 3
    s_lshl_b32 s55, s51, 1
    s_add_u32 s54, s54, s55
    s_lshl_b32 s54, s54, 3
    s_add_u32 s54, s54, s52
    s_mul_i32 s54, s54, 2560
    s_add_u32 s54, s54, {WS_O}
    s_add_u32 s55, s54, {8*2560}
    s_lshl_b32 s3, s50, 3
    s_add_u32 s3, s3, s52
    s_lshl_b32 s3, s3, 7
    s_add_u32 s3, s3, {WS_FLAG+16384}
    v_lshlrev_b32 v16, 23, v255
    """.strip().split("\n") + [f"s_mov_b32 s58, {QB}", ]
    def post(t):
        out = []
        for i in range(2):
            r = ACC + 20 * i + 4 * t
            out += phi(r, 4, T8 + 4 * i)
            b = 14 if t == 4 else BQ + 16 * i + 4 * t
            out += [f"v_cvt_pk_bf16_f32 v{b}, v{r}, v{r+1}", f"v_cvt_pk_bf16_f32 v{b+1}, v{r+2}, v{r+3}"]
            if t == 4:
                for h in range(4): out += [f"v_cndmask_b32 v{BQ+16*i+4*h+2+p}, 0, v{14+p}, {msk[h]}" for p in range(2)]
        return out
    for n in range(NB - 1): rd(n)
    fill = []
    for n, (s, ks, t) in enumerate(seq):
        if n == 51: fill = setup
        if n >= 60 and n % 10 == 1: fill = fill + post(order[n // 10 - 6])
        lg.wait(n)
        for i in range(2):
            d = ACC + 20 * i + 4 * t
            mfma16(a, d, WB + 4 * (n % NB), XS + 16 * s + 8 * ks + 4 * i, None if n < 5 else d)
            if i == 1 and n + NB - 1 < len(seq): rd(n + NB - 1)
            for _ in range(2):
                if fill: a(fill.pop(0))
    assert not dma
    stamp(a, prof, 4)
    a("s_mov_b32 s59, 59648\ns_nop 6")
    for x in fill + post(order[4]): a(x)
    stamp(a, prof, 5)
    hint = "buffer_store_dword v16, v16, s[40:43], s3 offen sc1"
    a("s_waitcnt vmcnt(0)")
    if opt("he", 0) == 1: a(hint)
    a("s_barrier")
    if opt("he", 0) == 0: a(hint)
    stamp(a, prof, 6)
    for h in range(4):
        f = AF + 8 * h
        a(f"""
        ds_read_b64 {vr(f+4,2)}, v10 offset:{840*h}
        ds_read_b64 {vr(f+6,2)}, v11 offset:{840*h+32}
        ds_read_b64 {vr(f,2)}, v8 offset:{840*h}
        ds_read_b64 {vr(f+2,2)}, v9 offset:{840*h+32}
        """)
    for h in range(4):
        a(f"s_waitcnt lgkmcnt({12-4*h})")
        for i in range(2): mfma16(a, D0 + 32*i + 8*h + 4, AF + 8*h + 4, BQ + 16*i + 4*h)
        for i in range(2): mfma16(a, D0 + 32*i + 8*h, AF + 8*h, BQ + 16*i + 4*h)
    a("s_nop 1")
    if opt("he", 0) == 2: a(hint)
    for i in range(2):
        for h in range(4):
            d = D0 + 32*i + 8*h
            a(f"v_add_f32 v{d+5}, s61, v{d+5}")
        for h in range(4):
            d = D0 + 32*i + 8*h
            a(f"v_rcp_f32 v{d+5}, v{d+5}")
        o = TMP + 12 * i
        for h in range(4):
            d = D0 + 32*i + 8*h
            for r in range(5): a(f"v_mul_f32 v{d+r}, v{d+r}, v{d+5}")
            a(f"v_cvt_pk_bf16_f32 v{o+2*h}, v{d}, v{d+1}\nv_cvt_pk_bf16_f32 v{o+2*h+1}, v{d+2}, v{d+3}")
            if h & 1:
                a(f"v_cvt_pk_bf16_f32 v{o+8+(h>>1)}, v{d-8+4}, v{d+4}")
                a(f"buffer_store_dwordx4 {vr(o+2*h-2,4)}, v12, s[40:43], s{54+i} offen offset:{(h>>1)*1024} {ost}")
        a(f"buffer_store_dwordx2 {vr(o+8,2)}, v13, s[40:43], s{54+i} offen offset:2048 {ost}")
        if opt("he", 0) == 3 + i: a(hint)
    stamp(a, prof, 7)
    a("s_branch FIN")

def kv_waves(a, prof):
    ACC, B0, B1 = 16, 96, 132
    lane_addrs(a)
    a(f"""
    s_and_b32 s54, s51, 1
    s_lshr_b32 s55, s51, 1
    s_lshl_b32 s56, s54, 13
    v_add_u32 v8, s56, v2
    v_xor_b32 v9, 64, v8
    s_mul_i32 s56, s55, 80
    s_add_u32 s56, s56, {WK}
    v_lshl_add_u32 v10, v7, 3, v3
    v_add_u32 v10, s56, v10
    v_lshrrev_b32 v4, 1, v7
    v_cmp_eq_u32 vcc, s55, v4
    v_and_b32 v4, 1, v7
    v_mul_u32_u24 v4, 40, v4
    v_mov_b32 v11, {WV-WK+32}
    v_cndmask_b32 v11, v11, 32, vcc
    v_add3_u32 v11, v11, v4, v3
    v_add_u32 v11, s56, v11
    s_mov_b32 s57, 0
    s_mov_b32 s58, 0
    """)
    for r in range(80): a(f"v_mov_b32 v{ACC+r}, 0")
    PK, P, TMP, EA, ONE, TID, GA, SEL, KA, RA = 168, 96, 216, 228, 235, 241, 242, 244, 252, 253
    WA = [236, 237, 238, 239, 240]
    a(f"""
    s_mul_i32 s3, s55, 210
    v_mul_u32_u24 v12, 5, v5
    v_add_u32 v12, s3, v12
    v_lshrrev_b32 v13, 3, v5
    v_cmp_eq_u32 s[94:95], s55, v13
    v_and_b32 v14, 1, v6
    v_mul_u32_u24 v14, 105, v14
    v_cndmask_b32 v13, v7, 4, s[94:95]
    v_mul_u32_u24 v13, 5, v13
    v_add_u32 v13, s3, v13
    v_add_u32 v{EA}, v12, v6
    v_add_u32 v{EA+1}, 105, v{EA}
    v_add_u32 v{EA+2}, v13, v6
    v_add_u32 v{EA+2}, 80, v{EA+2}
    v_add_u32 v{EA+3}, 105, v{EA+2}
    v_add3_u32 v{EA+4}, v12, v14, 4
    v_add3_u32 v{EA+5}, v13, v14, 4
    v_add_u32 v{EA+5}, 80, v{EA+5}
    s_mul_i32 s3, s54, {2*KS}
    s_add_u32 s3, s3, {KV32}
    v_mov_b32 v14, {KS}
    """)
    for i in range(6):
        a(f"""
        v_and_b32 v12, 1, v{EA+i}
        v_lshrrev_b32 v{EA+i}, 1, v{EA+i}
        v_mad_u32_u24 v12, v12, v14, s3
        v_lshl_add_u32 v{EA+i}, v{EA+i}, 4, v12
        """)
    def rep(m16, qs): return sum(m16 << (16 * q) for q in qs)
    def colmask(h): return (0xf << (4 * (h ^ 2))) | (1 << (4 * h))
    masks = []
    for hp in range(2):
        ha, hb = 2 * hp, 2 * hp + 1
        masks.append([rep(colmask(ha), range(4)), rep(colmask(hb), range(4)), rep(0xffff, [ha]), rep(0xffff, [hb]),
                      rep(colmask(ha), [ha]) | rep(colmask(hb), [hb])])
    a("s_cmp_eq_u32 s55, 0")
    for n in range(5):
        for half in range(2):
            c0, c1 = (masks[0][n] >> (32 * half)) & 0xffffffff, (masks[1][n] >> (32 * half)) & 0xffffffff
            a(f"s_mov_b32 s{84+2*n+half}, {hex(c1)}\ns_cselect_b32 s{84+2*n+half}, {hex(c0)}, s{84+2*n+half}")
    a(f"""
    v_mov_b32 v{ONE}, 0x3f803f80
    v_lshlrev_b32 v{TID}, 4, v0
    s_lshl_b32 s3, s52, 4
    s_add_u32 s48, s3, s50
    s_mul_i32 s48, s48, {PSTR}
    s_add_u32 s48, s48, {WS_PART}
    s_mul_i32 s44, s3, {PSTR}
    s_add_u32 s44, s44, {WS_PART}
    s_lshl_b32 s49, s51, 10
    s_add_u32 s44, s44, s49
    s_add_u32 s45, s44, {4*PSTR}
    s_add_u32 s46, s44, {8*PSTR}
    s_add_u32 s47, s44, {12*PSTR}
    s_cmp_lt_u32 s51, 2
    s_mov_b32 s99, {QB-2048}
    s_cselect_b32 s99, {48*1024}, s99
    s_add_u32 s99, s99, s49
    v_mul_u32_u24 v{GA}, {PSTR}, v6
    v_lshl_add_u32 v{GA}, v5, 4, v{GA}
    s_cmp_eq_u32 s51, 3
    s_cselect_b32 s3, 0x7fff0000, 0
    v_or_b32 v{GA+1}, s3, v{GA}
    v_lshrrev_b32 v12, 1, v5
    v_and_b32 v13, 1, v5
    v_lshlrev_b32 v13, 4, v13
    v_mov_b32 v14, 0x3f80
    v_lshlrev_b32 v13, v13, v14
    """)
    for r in range(8):
        a(f"v_cmp_eq_u32 vcc, {r}, v12\ns_nop 1\nv_cndmask_b32 v{SEL+r}, 0, v13, vcc")
    a(f"""
    v_lshrrev_b32 v12, 1, v6
    v_lshlrev_b32 v12, 8, v12
    v_lshl_add_u32 v12, v5, 4, v12
    v_and_b32 v13, 1, v6
    v_lshl_add_u32 v12, v13, 3, v12
    s_add_u32 s3, s49, {KVT}
    v_add_u32 v{KA}, s3, v12
    v_cmp_gt_u32 s[100:101], 210, v0
    """.replace("v_cmp_gt_u32 s[100:101], 210, v0", "v_cmp_gt_u32 vcc, 210, v0\ns_mov_b64 s[100:101], vcc"))
    fin.tile_ids(a)
    fin.wo_addr(a, WA, 12, 13, 256, 0)
    def wo(k):
        m0 = "s_mov_b32 m0, s99" if k == 12 else f"s_add_u32 m0, s49, {4096*k if k < 12 else QB+(4*k-50)*1024}"
        return f"{m0}\ns_mov_b32 s98, {(k//5)*128*1280}\nbuffer_load_dwordx4 v{WA[k%5]}, s[36:39], s98 offen lds"
    def reads(buf, ks):
        out = []
        x = [f"ds_read_b128 {vr(buf+4*i,4)}, v{8+ks} offset:{2048*i}" for i in range(4)]
        w = []
        for t, (ad, o) in enumerate([(10, 0), (10, 40), (11, 0), (10, WV-WK), (10, WV-WK+40)]):
            d = buf + 16 + 4 * t
            w += [f"ds_read_b64_tr_b16 {vr(d,2)}, v{ad} offset:{o+ks*5120}", f"ds_read_b64_tr_b16 {vr(d+2,2)}, v{ad} offset:{o+ks*5120+1280}"]
        return x[:1] + w + x[1:]
    def group(buf, fill):
        fill = list(fill)
        for i in range(4):
            for t in range(5):
                d = ACC + 20 * i + 4 * t
                mfma16(a, d, buf + 4 * i, buf + 16 + 4 * t, d)
                if fill: a(fill.pop(0))
        assert not fill
    stamp(a, prof, 1)
    a("s_waitcnt lgkmcnt(0)\ns_barrier")
    stamp(a, prof, 2)
    for r in reads(B0, 0): a(r)
    a("s_branch G_mid\nG_loop:")
    group(B1, reads(B0, 0))
    a("G_mid:\ns_waitcnt lgkmcnt(0)")
    a(f"""
    s_add_u32 s57, s57, 1
    s_cmp_eq_u32 s57, 3
    s_cselect_b32 s57, 0, s57
    s_mov_b32 s59, {SLOT}
    s_cselect_b32 s59, {-2*SLOT}, s59
    s_add_u32 s58, s58, 1
    s_cmp_lt_u32 s58, 10
    """)
    group(B0, reads(B1, 1) + [f"v_add_u32 v{8+i}, s59, v{8+i}" for i in range(4)])
    a("s_waitcnt lgkmcnt(0)\ns_barrier\ns_cbranch_scc1 G_loop")
    if opt("prio", 1): a("s_setprio 2")
    def post(i):
        b = ACC + 20 * i
        pk = PK + 24 * (i >> 1) + 2 * (i & 1)
        cv = lambda o, t: [f"v_cvt_pk_bf16_f32 v{pk+o}, v{b+4*t}, v{b+4*t+1}", f"v_cvt_pk_bf16_f32 v{pk+o+1}, v{b+4*t+2}, v{b+4*t+3}"]
        ph = phi(b, 12, TMP)
        out = ph[:12] + cv(20, 2) + ph[12:28] + cv(12, 3) + cv(16, 4) + ph[28:]
        out += [f"v_cndmask_b32 v{pk+20+p}, v{pk+20+p}, v{ONE}, s[94:95]" for p in range(2)]
        out += cv(0, 0) + cv(4, 1) + cv(8, 2) + (["s_barrier"] if i == opt("kb", 1) and opt("n1", 40) > 20 else []) + (["s_nop 1"] if i & 1 else [])
        if i & 1:
            k = PK + 24 * (i >> 1)
            for n, (x, y) in enumerate([(0, 12), (4, 16), (0, 20), (4, 20), (8, 12), (8, 16), (8, 20)]):
                out.append(f"v_mfma_f32_16x16x32_bf16 {vr(P+4*n,4)}, {vr(k+x,4)}, {vr(k+y,4)}, {vr(P+4*n,4) if i == 3 else 0}")
        return out
    fill = post(0) + post(1)
    for n in range(20):
        i, t = divmod(n, 5)
        d = ACC + 20 * i + 4 * t
        mfma16(a, d, B1 + 4 * i, B1 + 16 + 4 * t, d)
        if n >= 8:
            for _ in range(opt("kf", 2)): a(fill.pop(0))
    stamp(a, prof, 3)
    for x in fill + post(2) + post(3): a(x)
    a("s_nop 3")
    a(f"""
    ds_write_b128 v{EA}, {vr(P,4)}
    ds_write_b128 v{EA+1}, {vr(P+4,4)}
    s_mov_b64 exec, s[84:85]
    ds_write_b128 v{EA+2}, {vr(P+8,4)}
    s_mov_b64 exec, s[86:87]
    ds_write_b128 v{EA+3}, {vr(P+12,4)}
    s_mov_b64 exec, s[88:89]
    ds_write_b128 v{EA+4}, {vr(P+16,4)}
    s_mov_b64 exec, s[90:91]
    ds_write_b128 v{EA+4}, {vr(P+20,4)}
    s_mov_b64 exec, s[92:93]
    ds_write_b128 v{EA+5}, {vr(P+24,4)}
    s_mov_b64 exec, -1
    s_waitcnt lgkmcnt(0)
    s_barrier
    """)
    stamp(a, prof, 4)
    a(f"""
    ds_read_b128 v[16:19], v{TID} offset:{KV32}
    ds_read_b128 v[24:27], v{TID} offset:{KV32+2*KS}
    ds_read_b128 v[20:23], v{TID} offset:{KV32+KS}
    ds_read_b128 v[28:31], v{TID} offset:{KV32+3*KS}
    s_waitcnt lgkmcnt(2)
    """)
    for r in range(4): a(f"v_add_f32 v{16+r}, v{16+r}, v{24+r}")
    a("s_waitcnt lgkmcnt(0)")
    for r in range(4, 8): a(f"v_add_f32 v{16+r}, v{16+r}, v{24+r}")
    for r in range(4): a(f"v_cvt_pk_bf16_f32 v{32+r}, v{16+2*r}, v{17+2*r}")
    for r in range(4): a(f"v_cndmask_b32 v{32+r}, 0, v{32+r}, s[100:101]")
    L, D = 48, 16
    a(f"buffer_store_dwordx4 v[32:35], v{TID}, s[40:43], s48 offen sc1")
    if opt("prio", 1): a("s_setprio 0")
    n1 = opt("wo1", 21)
    for r in range(8): a(f"v_mov_b32 v{D+r}, 0")
    a("s_barrier")
    for k in range(11, n1): a(wo(k))
    def issue(i, sc="sc1"):
        for g in range(4):
            a(f"buffer_load_dwordx4 {vr(L+16*i+4*g,4)}, v{GA if g < 2 else GA+1}, s[40:43], s{44+i} offen offset:{256*g} {sc}")
    for i in range(4): issue(i, '' if opt('pp', 0) else 'sc1')
    stamp(a, prof, 5)
    for k in range(n1, 25): a(wo(k))
    a("s_mov_b32 s56, 15\ns_mov_b32 s58, 0\ns_mov_b64 s[96:97], -1")
    stamp(a, prof, 7)
    a("G_poll:")
    for i in range(4):
        b = L + 16 * i
        a(f"""
        s_bitcmp1_b32 s56, {i}
        s_cbranch_scc0 G_n{i}
        s_waitcnt vmcnt({25-n1+12-4*i})
        v_max3_u32 v2, v{b}, v{b+4}, v{b+8}
        v_max_u32 v2, v2, v{b+12}
        v_cmp_eq_u32 vcc, -1, v2
        s_and_b64 vcc, vcc, s[96:97]
        s_cbranch_scc1 G_n{i}
        s_bitset0_b32 s56, {i}
        """)
        for g in range(4):
            d = D + 4 * (g >> 1)
            mfma16(a, d, SEL + 4 * (g & 1), b + 4 * g, d)
        a(f"G_n{i}:")
    a("s_cmp_eq_u32 s56, 0\ns_cbranch_scc1 G_done")
    for i in range(4):
        a(f"s_bitcmp1_b32 s56, {i}\ns_cbranch_scc0 G_r{i}")
        issue(i)
        a(f"G_r{i}:")
    a(f"""
    s_add_u32 s58, s58, 1
    s_cmp_lt_u32 s58, {fin.POLL_MAX}
    s_cselect_b64 s[96:97], -1, 0
    s_waitcnt vmcnt(0)
    s_branch G_poll
    G_done:
    s_nop 2
    s_mov_b32 s58, {QB}
    s_mov_b32 s59, 59648
    s_nop 1
    """)
    for p in range(2):
        d = D + 4 * p
        a(f"v_cvt_pk_bf16_f32 v{d}, v{d}, v{d+1}\nv_cvt_pk_bf16_f32 v{d+1}, v{d+2}, v{d+3}")
        a(f"ds_write_b64 v{KA}, {vr(d,2)} offset:{512*p}")
    a("s_waitcnt lgkmcnt(0)\ns_barrier")
    stamp(a, prof, 6)
    a("s_branch FIN")
```

```python
from common import *

POLL_MAX = 1 << 14
TILE_IDS = ["s_and_b32 s62, s2, 7", "s_lshl_b32 s62, s62, 2", "s_lshr_b32 s63, s2, 6", "s_add_u32 s62, s62, s63",
            "s_bfe_u32 s63, s2, 0x30003"]

def tile_list():
    if not opt("tm", 0): return TILE_IDS
    return ["s_and_b32 s62, s2, 3", "s_lshl_b32 s62, s62, 3", "s_and_b32 s63, s2, 4", "s_add_u32 s62, s62, s63"] + TILE_IDS[2:]

def tile_ids(a):
    for x in tile_list(): a(x)

def wo_addr(a, regs, t0, t1, step=64, vid=1, sd=36):
    srd(a, sd, 8, 819200)
    a("s_mul_i32 s3, s63, 160")
    for i, r in enumerate(regs):
        a(f"""
        v_add_u32 v{t0}, {step*i}, v{vid}
        v_mul_u32_u24 v{t1}, 6554, v{t0}
        v_lshrrev_b32 v{t1}, 16, v{t1}
        v_mul_u32_u24 v{t1}, {1280-160}, v{t1}
        v_lshl_add_u32 v{t0}, v{t0}, 4, v{t1}
        v_add_u32 v{r}, s3, v{t0}
        """)

def wo_group(regs, sl, sg, dl):
    return [f"s_add_u32 m0, s{sl}, {dl + 1024*i}\ns_nop 0\nbuffer_load_dwordx4 v{r}, s[36:39], s{sg} offen lds" for i, r in enumerate(regs)]

def ready_set(a, va, vd, wave=0, n=48, off=0):
    l = a.label("rds")
    a(f"""
    s_cmp_lg_u32 s64, {wave}
    s_cbranch_scc1 {l}
    v_mov_b32 v{va}, {off}
    v_mov_b32 v{vd}, 1
    s_mov_b64 exec, 1
    global_atomic_add v{vd}, v{va}, v{vd}, s[28:29] sc0 sc1
    s_waitcnt vmcnt(0)
    v_cmp_eq_u32 vcc, {n-1}, v{vd}
    s_cbranch_vccz {l}x
    global_store_dword v{va}, v{vd}, s[28:29] offset:128 sc1
    {l}x:
    s_mov_b64 exec, -1
    {l}:
    """)

def ready_issue(a, va, vd, wave=0):
    l = a.label("rdi")
    a(f"v_mov_b32 v{va}, 0\nv_mov_b32 v{vd}, 1\ns_cmp_lg_u32 s64, {wave}\ns_cbranch_scc1 {l}")
    a(f"global_load_dword v{vd}, v{va}, s[28:29] offset:128 sc1\n{l}:")

def ready_wait(a, va, vd, st, newer=0):
    l = a.label("rdy")
    a(f"""
    s_mov_b32 s{st}, 0
    s_waitcnt vmcnt({newer})
    {l}:
    v_cmp_eq_u32 vcc, 0, v{vd}
    s_cbranch_vccz {l}x
    s_sleep 4
    global_load_dword v{vd}, v{va}, s[28:29] offset:128 sc1
    s_add_u32 s{st}, s{st}, 1
    s_cmp_lt_u32 s{st}, {POLL_MAX}
    s_waitcnt vmcnt(0)
    s_cbranch_scc1 {l}
    {l}x:
    """)

def l2_prefetch(a, sn, vd):
    l = a.label("pf")
    a(f"""
    s_cmp_ge_u32 s{sn}, 108
    s_cbranch_scc1 {l}q
    s_mul_i32 s44, s{sn}, 3641
    s_lshr_b32 s44, s44, 16
    s_mul_i32 s45, s44, 18
    s_sub_u32 s45, s{sn}, s45
    s_lshl_b32 s44, s44, 2
    s_lshr_b32 s44, 0x948631, s44
    s_and_b32 s44, s44, 15
    s_cmp_ge_u32 s45, 8
    s_cbranch_scc1 {l}w
    s_and_b32 s46, s2, 3
    s_lshl_b32 s46, s46, 3
    s_add_u32 s46, s46, s45
    s_mul_i32 s46, s46, {64*1280}
    s_lshl_b32 s44, s44, 7
    s_add_u32 s46, s46, s44
    v_mul_u32_u24 v{vd}, 1280, v1
    buffer_load_dword v{vd}, v{vd}, s[32:35], s46 offen
    s_branch {l}x
    {l}q:
    s_sub_u32 s45, s{sn}, 108
    s_mul_i32 s44, s45, 13108
    s_lshr_b32 s44, s44, 16
    s_mul_i32 s46, s44, 5
    s_sub_u32 s45, s45, s46
    s_branch {l}v
    {l}w:
    s_cmp_ge_u32 s45, 13
    s_cselect_b32 s46, 7, 2
    s_add_u32 s45, s45, s46
    {l}v:
    s_mul_i32 s44, s44, {64*3840}
    s_lshl_b32 s45, s45, 7
    s_add_u32 s44, s44, s45
    s_bfe_u32 s45, s2, 0x10002
    s_mul_i32 s45, s45, 640
    s_add_u32 s44, s44, s45
    v_mul_u32_u24 v{vd}, 3840, v1
    v_add_u32 v{vd}, s44, v{vd}
    global_load_dword v{vd}, v{vd}, s[6:7]
    {l}x:
    """)

def pf_first(a, vd):
    a("s_lshr_b32 s47, s2, 3\ns_lshl_b32 s3, s64, 4\ns_add_u32 s47, s47, s3\ns_sub_u32 s47, s47, 16")
    l2_prefetch(a, 47, vd)

def help_role(a, prof):
    if opt("l2pf", 1):
        pf_first(a, 254)
        a("s_lshr_b32 s47, s2, 3\ns_mul_i32 s3, s64, 6\ns_add_u32 s47, s47, s3\ns_add_u32 s47, s47, 102\ns_cmp_ge_u32 s47, 158\ns_cbranch_scc1 H_gate")
        l2_prefetch(a, 47, 253)
        a("H_gate:")
        if opt("pfw", 0): a("s_waitcnt vmcnt(0)")
    a("""
    s_sub_u32 s50, s2, 208
    s_lshl_b32 s52, s50, 3
    s_add_u32 s52, s52, s64
    s_and_b32 s3, s2, 3
    s_lshl_b32 s3, s3, 1
    s_bfe_u32 s44, s2, 0x10002
    s_add_u32 s3, s3, s44
    s_lshl_b32 s3, s3, 2
    s_lshr_b32 s44, s50, 3
    s_add_u32 s3, s3, s44
    s_lshl_b32 s3, s3, 3
    s_add_u32 s3, s3, s64
    s_lshl_b32 s3, s3, 3
    v_lshrrev_b32 v2, 3, v1
    v_add_u32 v2, s3, v2
    v_mul_u32_u24 v3, 1280, v2
    v_and_b32 v4, 7, v1
    v_lshlrev_b32 v5, 4, v4
    v_add_u32 v3, v3, v5
    v_lshlrev_b32 v2, 2, v2
    """)
    def gstore(v):
        a(f"""
        v_cmp_eq_u32 vcc, 0, v4
        s_mov_b32 s3, {WS_G}
        s_and_saveexec_b64 s[44:45], vcc
        buffer_store_dword v{v}, v2, s[40:43], s3 offen sc1
        s_mov_b64 exec, -1
        """)
    def gate():
        a("s_cmp_ge_u32 s50, 32\ns_cbranch_scc1 H_nogate")
        for i in range(10):
            a(f"global_load_dwordx4 {vr(8+8*i,4)}, v5, s[24:25] offset:{128*i}")
            a(f"buffer_load_dwordx4 {vr(12+8*i,4)}, v3, s[32:35], 0 offen offset:{128*i}")
        a("v_mov_b32 v6, 0\nv_mov_b32 v7, 0")
        for i in range(10):
            a(f"s_waitcnt vmcnt({18-2*i})")
            for r in range(4): a(f"v_dot2c_f32_bf16 v{6+(r&1)}, v{8+8*i+r}, v{12+8*i+r}")
        a("""
        s_nop 2
        v_add_f32 v6, v6, v7
        s_nop 1
        v_add_f32 v6, v6, v6 quad_perm:[1,0,3,2] row_mask:0xf bank_mask:0xf
        s_nop 1
        v_add_f32 v6, v6, v6 quad_perm:[2,3,0,1] row_mask:0xf bank_mask:0xf
        s_nop 1
        v_add_f32 v6, v6, v6 row_half_mirror row_mask:0xf bank_mask:0xf
        v_mul_f32 v6, 0xbfb8aa3b, v6
        v_exp_f32 v6, v6
        s_nop 0
        v_add_f32 v6, 1.0, v6
        v_rcp_f32 v6, v6
        s_nop 0
        v_and_b32 v6, 0x7fffffff, v6
        """)
        gstore(6)
        a("H_nogate:")
    first = opt("gfirst", 0)
    if first: gate()
    a(f"""
    v_mov_b32 v96, -1
    v_mov_b32 v97, -1
    v_mov_b32 v98, -1
    v_mov_b32 v99, -1
    v_lshlrev_b32 v100, 4, v1
    s_add_u32 s46, s50, 1
    s_and_b32 s46, s46, 7
    s_mul_i32 s46, s46, 5
    s_lshr_b32 s47, s50, 3
    s_add_u32 s46, s46, s47
    s_cmp_ge_u32 s50, 40
    s_cselect_b32 s46, s50, s46
    s_lshl_b32 s46, s46, 3
    s_add_u32 s46, s46, s64
    s_lshl_b32 s46, s46, 13
    s_add_u32 s46, s46, {WS_O}
    s_add_u32 s47, s46, 4096
    s_cmp_ge_u32 s50, 32
    s_cbranch_scc1 H_flag
    """)
    if not first: gstore(96)
    a(f"""
    s_branch H_fill
    H_flag:
    s_lshl_b32 s3, s52, 7
    s_add_u32 s3, s3, {WS_FLAG - 256*128}
    v_lshlrev_b32 v6, 14, v1
    s_mov_b64 exec, 3
    buffer_store_dword v96, v6, s[40:43], s3 offen sc1
    s_mov_b64 exec, -1
    H_fill:
    """)
    for i in range(8): a(f"buffer_store_dwordx4 v[96:99], v100, s[40:43], s{46+(i>>2)} offen offset:{(i&3)*1024} sc1")
    W = [101, 102, 103, 104, 105]
    wo_addr(a, W, 6, 7)
    stamp(a, prof, 1)
    a("s_waitcnt vmcnt(0)\ns_barrier")
    ready_set(a, 6, 7)
    stamp(a, prof, 2)
    if not first: gate()
    a(f"s_mul_i32 s44, s64, 5120\ns_mul_i32 s45, s64, {32*1280}")
    stamp(a, prof, 3)
    for g in range(3):
        if g == 2: a("s_cmp_ge_u32 s64, 4\ns_cbranch_scc1 H_wait")
        for x in wo_group(W, 44, 45, 40960 * g): a(x)
        a(f"s_add_u32 s45, s45, {256*1280}")
    a("H_wait:\ns_waitcnt vmcnt(0)")
    ready_issue(a, 252, 253)
    ready_wait(a, 252, 253, 44)
    a("s_barrier")
    stamp(a, prof, 7)
    a("FIN_B:\ns_mov_b32 s58, 51200\ns_mov_b32 s59, 102400")

def final(a, prof):
    FR, OF, ACC, BR, BF = 88, 28, 68, 12, 20
    NP = 21
    a(f"""
    FIN:
    s_and_b32 s44, s64, 3
    s_lshr_b32 s45, s64, 2
    s_lshl_b32 s46, s62, 2
    s_add_u32 s46, s46, s44
    s_lshl_b32 s47, s46, 1
    s_add_u32 s47, s47, s45
    s_mul_i32 s47, s47, {4*2560}
    s_add_u32 s47, s47, {WS_O}
    s_add_u32 s48, s47, 2560
    s_add_u32 s49, s47, 5120
    s_add_u32 s50, s47, 7680
    s_mul_i32 s51, s63, 80
    s_lshl_b32 s52, s51, 12
    s_lshl_b32 s53, s46, 5
    s_add_u32 s52, s52, s53
    s_add_u32 s52, s52, {WS_BT}
    s_add_u32 s53, s52, {32*4096}
    s_lshl_b32 s54, s46, 6
    s_add_u32 s54, s54, {WS_G}
    v_lshlrev_b32 v4, 4, v1
    v_lshlrev_b32 v5, 3, v1
    v_lshrrev_b32 v6, 1, v1
    v_lshlrev_b32 v6, 12, v6
    v_and_b32 v7, 1, v1
    v_lshl_add_u32 v6, v7, 4, v6
    v_cmp_gt_u32 vcc, 10, v1
    v_and_b32 v8, 15, v1
    v_lshlrev_b32 v{BF+1}, 2, v8
    s_mul_i32 s99, s63, 1280
    s_add_u32 s99, s99, {WS_FLAG}
    v_lshl_add_u32 v7, v1, 7, s99
    s_lshr_b32 s99, s62, 1
    s_lshl_b32 s99, s99, 10
    s_add_u32 s99, s99, {WS_FLAG+16384}
    v_lshl_add_u32 v{BF}, v8, 7, s99
    v_cndmask_b32 v{BF}, v{BF}, v7, vcc
    s_add_u32 s98, s52, {64*4096}
    v_mov_b32 v7, 0
    """)
    def issueC():
        for i, sr in enumerate((52, 53, 98)):
            a(f"s_add_u32 m0, s55, {1024*i}\n" + ("s_mov_b32 exec_hi, 0" if i == 2 else "s_nop 0"))
            a(f"buffer_load_dwordx4 v6, s[40:43], s{sr} offen {'' if opt('bp', 1) else 'sc1'} lds")
        a("s_mov_b32 exec_hi, -1")
    def issue(c, sc="sc1"):
        o = OF + 20 * c
        for g in range(2):
            s = 47 + 2 * c + g
            a(f"buffer_load_dwordx2 {vr(o+16+2*g,2)}, v5, s[40:43], s{s} offen offset:2048 {sc}")
            a(f"buffer_load_dwordx4 {vr(o+8*g,4)}, v4, s[40:43], s{s} offen {sc}")
            a(f"buffer_load_dwordx4 {vr(o+8*g+4,4)}, v4, s[40:43], s{s} offen offset:1024 {sc}")
    stamp(a, prof, 8)
    a(f"""
    s_mul_i32 s55, s45, s58
    v_and_b32 v27, 3, v1
    v_lshrrev_b32 v2, 2, v1
    v_mul_u32_u24 v2, 160, v2
    v_add_u32 v2, s55, v2
    v_bfe_u32 v10, v1, 2, 2
    v_mul_u32_u24 v10, 20, v10
    v_lshrrev_b32 v9, 4, v1
    v_add3_u32 v10, v10, v9, 16
    v_mul_u32_u24 v10, 160, v10
    v_add_u32 v10, s55, v10
    v_lshl_add_u32 v3, v27, 3, v2
    v_lshl_add_u32 v11, v27, 3, v10
    v_lshrrev_b32 v0, 1, v27
    v_lshlrev_b32 v0, 3, v0
    v_lshl_add_u32 v0, v27, 4, v0
    v_add_u32 v2, v2, v0
    v_add_u32 v10, v10, v0
    v_xor_b32 v0, 8, v2
    v_xor_b32 v27, 8, v10
    """)
    def rd(c, n, d):
        ks, j = divmod(n, 5)
        out = []
        for half in range(2):
            if ks < 4: ad, o = (2, 0, 2, 0, 3)[j], (80 * (ks >> 1) + 20 * (2 * (ks & 1) + half)) * 160
            else: ad, o = (10, 27, 10, 27, 11)[j], 80 * half * 160
            out.append(f"ds_read_b64_tr_b16 {vr(d+2*half,2)}, v{ad} offset:{c*25600 + o + 64*(j>>1)}")
        return "\n".join(out)
    jb = opt("jb", 2)
    so = opt("so", 42 if jb else 0)
    first = "s_cmp_lg_u32 s45, 0\ns_cbranch_scc1 F_pre\ns_waitcnt vmcnt(4)\ns_barrier" if jb else "s_barrier"
    assert so or not jb
    assert not (opt("p1", 0) and opt("fo", 1))
    assert jb or not (so and opt("rw", 1))
    def flag(l):
        return f"""s_waitcnt vmcnt(0)
        s_barrier
        s_cmp_lg_u32 s64, 4
        s_cbranch_scc1 {l}
        s_mov_b64 exec, 1
        buffer_store_dword v7, v7, s[40:43], s97 offen sc1
        s_mov_b64 exec, -1"""
    a(f"""
    s_cmp_ge_u32 s2, 208
    s_cbranch_scc1 F_pre
    s_cmp_ge_u32 s2, 128
    s_cbranch_scc1 F_ssm
    s_cmp_eq_u32 s45, 0
    s_cbranch_scc1 {"F_lo" if opt("ep", 0) else "F_pre"}
    s_barrier
    s_branch F_pre
    F_lo:
    {"s_cmp_lg_u32 s64, 0" if opt("p1", 0) else ""}
    {"s_cbranch_scc1 F_pre" if opt("p1", 0) else ""}
    s_mov_b64 exec, 0xff0000
    buffer_load_dword v25, v{BF}, s[40:43], 0 offen sc1
    s_mov_b64 exec, -1
    s_branch F_pre
    F_ssm:
    {first if so else flag("F_pre")}
    F_pre:
    buffer_load_dword v26, v{BF+1}, s[40:43], s54 offen sc1
    """)
    def freg(c, n): return FR + 4 * NP * c + 4 * (n % NP)
    for c in range(2):
        for n in range(NP):
            a(rd(c, n, freg(c, n)))
            if c == 0 and n < 20: a(f"v_mov_b32 v{ACC+n}, 0")
            if c * NP + n + 1 == so:
                a(f"s_sub_u32 s3, s2, 128\ns_cmp_ge_u32 s3, 80\ns_cbranch_scc1 F_mid\n{flag('F_mid')}\nF_mid:")
    a(f"""
    s_mov_b32 s56, 3
    s_mov_b32 s57, 0
    s_mov_b64 s[60:61], -1
    s_mul_i32 s55, s44, {3072+5120}
    s_add_u32 s55, s55, s59
    v_lshrrev_b32 v12, 1, v9
    v_lshlrev_b32 v12, 7, v12
    v_lshl_add_u32 v12, v9, 8, v12
    v_lshl_add_u32 v12, v8, 3, v12
    v_add_u32 v12, s55, v12
    v_xor_b32 v13, 128, v12
    v_add_u32 v14, s55, v5
    v_add_u32 v15, s55, v4
    v_mul_u32_u24 v16, 1280, v8
    v_lshl_add_u32 v17, v9, 3, v16
    v_lshl_add_u32 v16, v9, 4, v16
    s_mul_i32 s46, s46, {16*1280}
    s_lshl_b32 s51, s51, 1
    s_add_u32 s46, s46, s51
    s_waitcnt lgkmcnt(0)
    """)
    srd(a, 36, 26, 2621440)
    stamp(a, prof, 9)
    bflag = f"buffer_load_dword v25, v{BF}, s[40:43], 0 offen sc1"
    a(f"""
    s_mov_b32 s96, 0
    s_cmp_lg_u32 s45, 0
    s_cbranch_scc1 F_go
    s_mov_b32 s99, 0xff0000
    s_cmp_ge_u32 s2, 128
    s_cbranch_scc1 F_id0
    s_waitcnt vmcnt(0)
    s_barrier
    {"s_mov_b32 s99, 0" if opt("gb", 0) else ""}
    {"s_cmp_lg_u32 s64, 0" if opt("p1", 0) else ""}
    {"s_cbranch_scc1 F_seen" if opt("p1", 0) else ""}
    {"s_mov_b64 exec, 0xff0000" if opt("ep", 0) else ""}
    {"s_branch F_chk" if opt("ep", 0) else ""}
    F_id0:
    {"s_cmp_lg_u32 s64, 0" if opt("p1", 0) else ""}
    {"s_cbranch_scc1 F_seen" if opt("p1", 0) else ""}
    F_idle:
    s_or_b32 exec_lo, s99, {0 if opt("bg", 1) else 0x3ff}
    s_mov_b32 exec_hi, 0
    {bflag}
    s_add_u32 s57, s57, 1
    s_waitcnt vmcnt(0)
    F_chk:
    v_cmp_eq_u32 vcc, -1, v25
    s_mov_b64 exec, -1
    s_and_b32 s3, vcc_lo, 0x3ff
    s_or_b32 s3, s3, {1 if opt("bg", 1) else "s96"}
    s_cbranch_scc1 F_nob
    s_mov_b32 s96, 1
    """)
    issueC()
    a(f"""
    F_nob:
    s_and_b32 s3, vcc_lo, s99
    s_cbranch_scc0 F_seen
    s_sleep {opt("fs", 0)}
    s_cmp_lt_u32 s57, {POLL_MAX}
    s_cbranch_scc1 F_idle
    F_seen:
    s_mov_b32 s57, 0
    """)
    if opt("fo", 1):
        nb = opt("fn", 2)
        for c in range(nb): issue(c)
        a("s_barrier")
        for c in range(nb, 2): issue(c)
        a("s_branch F_in")
    a("F_go:\ns_barrier")
    def run(h):
        t = "FH" if h else "FL"
        if opt("br", 1) == 2:
            a(f"s_or_b32 s3, s96, s45\ns_cbranch_scc1 F_nrp\ns_mov_b64 exec, 0x3ff\n{bflag}\ns_mov_b64 exec, -1\nF_nrp:")
        for c in range(2): issue(c, ("sc1", "", "sc0", "nt")[opt("op", 0)])
        a("F_in:")
        if opt("br", 1) == 1:
            a(f"s_or_b32 s3, s96, s45\ns_cbranch_scc1 F_nrp\ns_mov_b64 exec, 0x3ff\n{bflag}\ns_mov_b64 exec, -1\nF_nrp:")
        stamp(a, prof, 10)
        a(f"{t}_loop:")
        for c in range(2):
            o = OF + 20 * c
            a(f"""
            s_bitcmp1_b32 s56, {c}
            s_cbranch_scc0 {t}_n{c}
            s_waitcnt vmcnt({6-6*c})
            v_max3_u32 v1, v{o}, v{o+4}, v{o+8}
            v_max3_u32 v1, v1, v{o+12}, v{o+16}
            v_max_u32 v1, v1, v{o+18}
            v_cmp_eq_u32 vcc, -1, v1
            s_and_b64 vcc, vcc, s[60:61]
            s_cbranch_scc1 {t}_n{c}
            s_bitset0_b32 s56, {c}
            """)
            if c == 2 - opt("br", 1):
                a("v_cmp_eq_u32 vcc, -1, v25\ns_or_b32 s3, s96, s45\ns_and_b32 vcc_lo, vcc_lo, 0x3ff\ns_or_b32 s3, s3, vcc_lo\ns_cbranch_scc1 F_nbr\ns_mov_b32 s96, 1")
                issueC()
                a("F_nbr:")
            for n in range(25):
                ks, j = divmod(n, 5)
                if n == NP: a("s_waitcnt lgkmcnt(0)")
                mfma16(a, ACC + 4 * j, freg(c, n), o + 4 * ks, ACC + 4 * j)
                if 2 <= n < 2 + 25 - NP: a(rd(c, NP + n - 2, freg(c, NP + n - 2)))
            a(f"{t}_n{c}:")
        a(f"""
        s_cmp_eq_u32 s56, 0
        s_cbranch_scc1 {t}_done
        s_bitcmp1_b32 s56, 0
        s_cbranch_scc0 {t}_r1
        """)
        issue(0)
        a(f"{t}_r1:\ns_bitcmp1_b32 s56, 1\ns_cbranch_scc0 {t}_r2")
        issue(1)
        a(f"""
        {t}_r2:
        s_add_u32 s57, s57, 1
        s_cmp_lt_u32 s57, {POLL_MAX}
        s_cselect_b64 s[60:61], -1, 0
        s_waitcnt vmcnt(0)
        s_branch {t}_loop
        {t}_done:
        """)
        stamp(a, prof, 13)
    def end():
        stamp(a, prof, 12)
        stamp_out(a, prof, 14, 65)
        a("s_endpgm")
    B, P = OF, OF + 12
    run(0)
    a(f"""
    v_cmp_eq_u32 vcc, -1, v26
    s_cbranch_vccnz F_gw
    F_gok:
    s_cmp_lg_u32 s45, 0
    s_cbranch_scc1 F_hi
    s_cmp_lg_u32 s96, 0
    s_cbranch_scc1 F_bin
    s_mov_b32 s57, 0
    s_mov_b64 exec, 0x3ff
    F_bw:
    {bflag}
    s_add_u32 s57, s57, 1
    s_cmp_lt_u32 s57, {POLL_MAX}
    s_waitcnt vmcnt(0)
    s_cbranch_scc0 F_bok
    v_cmp_eq_u32 vcc, -1, v25
    s_cbranch_vccnz F_bw
    F_bok:
    s_mov_b64 exec, -1
    """)
    issueC()
    a(f"""
    F_bin:
    s_waitcnt vmcnt(0)
    ds_read_b64_tr_b16 v[16:17], v12
    ds_read_b64_tr_b16 v[18:19], v13
    ds_read_b64_tr_b16 v[20:21], v12 offset:1024
    ds_read_b64_tr_b16 v[22:23], v13 offset:1024
    ds_read_b64_tr_b16 v[24:25], v14 offset:2048
    """)
    stamp(a, prof, 11)
    for j in range(5):
        a("s_waitcnt lgkmcnt(4)")
        d = ACC + 4 * j
        for p in range(2):
            a(f"v_lshlrev_b32 v{P+4*j+2*p}, 16, v{16+2*j+p}\nv_and_b32 v{P+4*j+2*p+1}, 0xffff0000, v{16+2*j+p}")
        for r in range(4): a(f"v_sub_f32 v{d+r}, v{d+r}, v{P+4*j+r}")
        for r in range(4): a(f"v_fmac_f32 v{P+4*j+r}, v{d+r}, v26")
        a(f"ds_write_b128 v15, {vr(P+4*j,4)} offset:{3072+1024*j}")
    a("s_waitcnt lgkmcnt(0)\ns_barrier")
    end()
    a("F_hi:")
    a("v_cmp_lt_u32 vcc, 1, v9\ns_barrier")
    stamp(a, prof, 11)
    for j in range(5): a(f"ds_read_b128 {vr(FR+4*j,4)}, v15 offset:{3072+1024*j}")
    for j in range(5):
        a(f"s_waitcnt lgkmcnt({4-j})")
        for r in range(4): a(f"v_fmac_f32 v{FR+4*j+r}, v{ACC+4*j+r}, v26")
        for p in range(2): a(f"v_cvt_pk_bf16_f32 v{B+2*j+p}, v{FR+4*j+2*p}, v{FR+4*j+2*p+1}")
        if j & 1:
            for p in range(4): a(f"v_cndmask_b32 v{P+2*j-2+p}, v{B+2*j-2+p}, v{B+2*j-2+(p^2)}, vcc")
            a(f"buffer_store_dwordx4 {vr(P+2*j-2,4)}, v16, s[36:39], s46 offen offset:{32*(j-1)}")
    a(f"buffer_store_dwordx2 {vr(B+8,2)}, v17, s[36:39], s46 offen offset:128")
    end()
    a(f"""
    F_gw:
    s_sleep 8
    buffer_load_dword v26, v{BF+1}, s[40:43], s54 offen sc1
    s_add_u32 s57, s57, 1
    s_cmp_ge_u32 s57, {POLL_MAX}
    s_waitcnt vmcnt(0)
    s_cbranch_scc1 F_gok
    v_cmp_eq_u32 vcc, -1, v26
    s_cbranch_vccnz F_gw
    s_branch F_gok
    """)
```

```python
from common import *
import fin

SLOT = 36880
WK, WV = 16384, 16384 + 10240 + 16
QB = 3 * SLOT
Q2 = QB - 51200
KVT = 51200
KV32, KS = 45056, 3584
PSTR = 4096
LOG2E = "0x3fb8aa3b"
EPS = "0x358637bd"

def MOD(k): return ("", "sc0", "sc1", "nt", "sc0 sc1", "sc1 nt", "sc0 nt")[opt(k, 0)]

def qloc(s):
    return QB + s * 10240 if s < 5 else Q2 + (s - 5) * 10240

def phi(r, n, tmp):
    out = [f"v_mul_f32 v{tmp+i}, s60, v{r+i}" for i in range(n)]
    for i in range(n): out += [f"v_exp_f32 v{tmp+i}, v{tmp+i} clamp", f"v_max_f32 v{r+i}, s61, v{r+i}"]
    return out + [f"v_add_f32 v{r+i}, v{r+i}, v{tmp+i}" for i in range(n)]

def gemm_role(a, prof=False, ost="sc1"):
    a(f"""
    s_and_b32 s3, s2, 7
    s_lshr_b32 s54, s2, 3
    s_and_b32 s50, s3, 3
    s_lshl_b32 s50, s50, 2
    s_and_b32 s55, s54, 3
    s_add_u32 s50, s50, s55
    s_lshr_b32 s52, s3, 2
    s_lshl_b32 s52, s52, 2
    s_lshr_b32 s54, s54, 2
    s_add_u32 s52, s52, s54
    s_add_u32 s53, s54, s55
    s_and_b32 s53, s53, 3
    s_mul_i32 s53, s53, 5
    s_lshr_b32 s53, s53, 1
    s_mov_b32 s60, {LOG2E}
    s_mov_b32 s61, {EPS}
    s_cmp_lt_u32 s51, 4
    s_cbranch_scc1 G_kv
    """)
    q_waves(a, prof, ost)
    a("G_kv:")
    kv_waves(a, prof)

def lane_addrs(a):
    a("""
    v_and_b32 v5, 15, v1
    v_lshrrev_b32 v6, 4, v1
    v_and_b32 v7, 3, v1
    v_lshrrev_b32 v2, 1, v5
    v_xor_b32 v2, v2, v6
    v_lshlrev_b32 v2, 4, v2
    v_lshl_add_u32 v2, v5, 7, v2
    v_bfe_u32 v3, v1, 2, 3
    v_lshrrev_b32 v4, 5, v1
    v_lshl_add_u32 v3, v4, 4, v3
    v_mul_u32_u24 v3, 160, v3
    """)

def q_waves(a, prof, ost):
    vm = Q(a, "vmcnt", 63); lg = Q(a, "lgkmcnt", 15)
    XO, WO, XS, ACC, WB = 8, 12, 20, 180, 220
    srd(a, 36, 6, 2457600)
    a(f"""
    s_sub_u32 s51, s51, 4
    s_lshl_b32 s54, s50, 2
    s_add_u32 s54, s54, s51
    s_mul_i32 s54, s54, {32*1280}
    v_lshrrev_b32 v2, 3, v1
    v_mul_u32_u24 v2, 1280, v2
    v_lshrrev_b32 v3, 4, v1
    v_and_b32 v4, 7, v1
    v_xor_b32 v3, v3, v4
    v_lshl_add_u32 v2, v3, 4, v2
    v_add_u32 v{XO}, s54, v2
    v_xor_b32 v2, 64, v2
    s_add_u32 s54, s54, {8*1280}
    v_add_u32 v{XO+1}, s54, v2
    v_add_u32 v{XO+2}, {16*1280}, v{XO}
    v_add_u32 v{XO+3}, {16*1280}, v{XO+1}
    s_lshl_b32 s44, s51, 12
    s_lshl_b32 s46, s53, 7
    """)
    def ldx(slot):
        for i in range(4):
            a(f"s_add_u32 m0, s44, {slot*SLOT + i*1024}\ns_nop 0\nbuffer_load_dwordx4 v{XO+i}, s[32:35], s46 offen lds")
    ldx(0)
    a(f"""
    s_and_b32 s54, s51, 1
    s_lshr_b32 s55, s51, 1
    s_mul_i32 s56, s54, {32*3840}
    s_mul_i32 s57, s52, 160
    s_add_u32 s56, s56, s57
    s_mul_i32 s45, s54, 5120
    s_mul_i32 s57, s55, {WV-WK}
    s_add_u32 s48, s45, s57
    s_add_u32 s48, s48, {WK}
    s_mul_i32 s49, s55, 1280
    s_add_u32 s49, s49, 1280
    s_mul_i32 s47, s53, {64*3840}
    s_add_u32 s47, s47, s49
    """)
    for i in range(5):
        a(f"""
        v_add_u32 v2, {64*i}, v1
        v_mul_u32_u24 v3, 6554, v2
        v_lshrrev_b32 v3, 16, v3
        v_mul_u32_u24 v4, 10, v3
        v_sub_u32 v2, v2, v4
        v_lshrrev_b32 v4, 1, v3
        v_xor_b32 v4, v4, v3
        v_and_b32 v4, 4, v4
        v_mul_u32_u24 v4, 3, v4
        v_xor_b32 v3, v3, v4
        v_mul_u32_u24 v3, 3840, v3
        v_lshl_add_u32 v2, v2, 4, v3
        v_add_u32 v{WO+i}, s56, v2
        s_add_u32 m0, s48, {i*1024}
        s_nop 0
        buffer_load_dwordx4 v{WO+i}, s[36:39], s47 offen {MOD('wm')} lds
        """)
    def adv():
        a(f"""
        s_add_u32 s46, s46, 128
        s_add_u32 s47, s47, {64*3840}
        s_cmp_eq_u32 s46, 1280
        s_cselect_b32 s46, 0, s46
        s_cselect_b32 s47, s49, s47
        """)
    def stage_list(s):
        out = [f"s_add_u32 m0, s44, {(s%3)*SLOT + i*1024}\ns_nop 0\nbuffer_load_dwordx4 v{XO+i}, s[32:35], s46 offen lds" for i in range(4)]
        out += [f"s_add_u32 m0, s48, {(s%3)*SLOT + i*1024}\ns_nop 0\nbuffer_load_dwordx4 v{WO+i}, s[36:39], s47 offen lds" for i in range(5)]
        return [(x, ("S", s)) for x in out]
    def emit(x):
        a(x[0]); vm.push(x[1])
    def stage(s):
        adv()
        for x in stage_list(s): emit(x)
    def qpair(n):
        head = f"""
        s_add_u32 s57, s53, s55
        s_add_u32 s57, s57, {2*n}
        s_cmp_ge_u32 s57, 10
        s_cselect_b32 s58, 10, 0
        s_sub_u32 s57, s57, s58
        s_mul_i32 s57, s57, {64*3840}
        s_cmp_eq_u32 s55, 0
        s_mov_b32 s58, {qloc(2*n+1)}
        s_cselect_b32 s58, {qloc(2*n)}, s58
        s_add_u32 s58, s58, s45
        """
        return [((head if i == 0 else "") + f"s_add_u32 m0, s58, {i*1024}\ns_nop 0\nbuffer_load_dwordx4 v{WO+i}, s[36:39], s57 offen lds", ("Q", n)) for i in range(5)]
    for i in range(9): vm.push(("S", 0))
    stage(1)
    lane_addrs(a)
    a(f"""
    v_add_u32 v2, s44, v2
    v_xor_b32 v4, 64, v2
    v_add_u32 v18, {2*SLOT}, v2
    v_add_u32 v19, {2*SLOT}, v4
    v_mul_u32_u24 v17, 40, v7
    v_add3_u32 v17, v17, v3, 32
    v_lshl_add_u32 v3, v7, 3, v3
    """)
    stamp(a, prof, 1)
    WA = [250, 251, 252, 253, 254]
    side = Asm()
    fin.tile_ids(side)
    side("v_and_b32 v255, 255, v0\ns_lshl_b32 s59, s51, 10")
    fin.wo_addr(side, WA, 248, 249, 256, 255, 92)
    side = [x for x in side.lines if x.strip()]
    dma = sum((qpair(n) for n in range(5)), [])
    dma.insert(15 if opt("qs", 0) else 25, ("v_mov_b32 v248, 0\nglobal_load_dword v249, v248, s[28:29] offset:128 sc1", "R"))
    dma += [(f"s_add_u32 m0, s59, {4096*k}\ns_mov_b32 s98, {(k//5)*128*1280}\nbuffer_load_dwordx4 v{WA[k%5]}, s[92:95], s98 offen lds", ("W", 9)) for k in range(11)]
    for s in range(10):
        if opt("ls", 0) == 3: stamp(a, prof, 102 + s)
        vm.wait(("S", s))
        if opt("ls", 0) == 2: stamp(a, prof, 102 + s)
        a("s_waitcnt lgkmcnt(0)\ns_barrier")
        if s == 0: stamp(a, prof, 2)
        if opt("ls", 0) == 1: stamp(a, prof, 102 + s)
        loads = []
        if s <= 7: adv(); loads = stage_list(s + 2)
        if s >= 7:
            c = (opt("c7", 1), opt("c8", 7), opt("c9", 8))[s - 7]
            loads += dma[:c]; del dma[:c]
            assert all(x[1] == "R" or x[1][0] == "S" or x[1][1] < (2, 3, 5)[s - 7] for x in loads)
        fill = []
        for ks in range(2):
            for i in range(2):
                ad = (2, 4)[ks] if s % 3 < 2 else (18, 19)[ks]
                fill.append(f"ds_read_b128 {vr(XS+16*s+8*ks+4*i,4)}, v{ad} offset:{(s%3%2)*SLOT + i*2048}")
        fill = ["\n".join(fill)]
        if 1 <= s <= 6:
            n = (len(side) + 6 - s) // (7 - s)
            fill.append("\n".join(side[:n])); del side[:n]
        for j, x in enumerate(loads):
            emit(x)
            if j >= opt("dp", 2) and fill: a(fill.pop(0))
        for x in fill: a(x)
    a(f"v_add_u32 v18, {QB}, v3\nv_add_u32 v19, {QB}, v17\nv_add_u32 v3, {Q2}, v3\nv_add_u32 v17, {Q2}, v17")
    vm.wait(("Q", 0))
    a("s_waitcnt lgkmcnt(0)\ns_barrier")
    stamp(a, prof, 3); stamp(a, prof, 112)
    NB = 7
    BQ, AF, D0, TMP = 20, 52, 84, 148
    T8 = 52
    order = (4, 0, 1, 2, 3)
    seq = [(s, ks, t) for s in range(5) for ks in range(2) for t in range(5)]
    seq += [(s, ks, t) for t in order for s in range(5, 10) for ks in range(2)]
    n1, n2 = opt("n1", 40), opt("n2", 52 if opt("qs", 0) else 56)
    assert n1 <= 40 and n2 >= 50 and (n2 <= 52 or not opt("qs", 0))
    nd, d0, d1 = len(dma), opt('d0', 5), opt('d1', 40)
    def rd(n):
        s, ks, t = seq[n]
        if n == 20 and n1 > 20:
            vm.wait(("Q", 2 if n1 > 40 else 1)); a("s_barrier")
        while dma and n > d0 and (nd - len(dma)) * (d1 - d0) < (n - d0) * nd: emit(dma.pop(0))
        if n == n1:
            while any(x[1] == "R" for x in dma): emit(dma.pop(0))
            newer = vm.q[vm.q.index("R") + 1:]
            vm.q = newer; fin.ready_wait(a, 248, 249, 99, len(newer)); a("s_barrier")
        if n == n2:
            while any(x[1][0] == "Q" for x in dma): emit(dma.pop(0))
            vm.wait(("Q", 4)); lg.wait(49); a("s_barrier")
        ad = ((18, 19), (3, 17))[s >= 5][t == 4]
        o = (s % 5) * 10240 + ks * 5120 + (40 * t if t < 4 else 0)
        d = WB + 4 * (n % NB)
        a(f"ds_read_b64_tr_b16 {vr(d,2)}, v{ad} offset:{o}\nds_read_b64_tr_b16 {vr(d+2,2)}, v{ad} offset:{o+1280}")
        lg.push(None); lg.push(n)
    msk = ["s[44:45]", "s[46:47]", "s[48:49]", "s[56:57]"]
    setup = f"""
    v_mul_u32_u24 v9, 40, v5
    v_add_u32 v9, {KVT}, v9
    v_lshl_add_u32 v8, v6, 3, v9
    v_lshrrev_b32 v11, 2, v5
    v_cmp_eq_u32 vcc, 0, v7
    v_mov_b32 v12, 4
    v_cmp_eq_u32 s[44:45], 0, v6
    v_cndmask_b32 v11, v12, v11, vcc
    v_cmp_eq_u32 s[46:47], 1, v6
    v_mul_u32_u24 v11, 40, v11
    v_cmp_eq_u32 s[48:49], 2, v6
    v_add_u32 v11, {KVT+640}, v11
    v_cmp_eq_u32 s[56:57], 3, v6
    v_lshl_add_u32 v10, v6, 3, v11
    v_lshlrev_b32 v12, 4, v1
    v_lshlrev_b32 v13, 3, v1
    s_lshl_b32 s54, s50, 3
    s_lshl_b32 s55, s51, 1
    s_add_u32 s54, s54, s55
    s_lshl_b32 s54, s54, 3
    s_add_u32 s54, s54, s52
    s_mul_i32 s54, s54, 2560
    s_add_u32 s54, s54, {WS_O}
    s_add_u32 s55, s54, {8*2560}
    s_lshl_b32 s3, s50, 3
    s_add_u32 s3, s3, s52
    s_lshl_b32 s3, s3, 7
    s_add_u32 s3, s3, {WS_FLAG+16384}
    v_lshlrev_b32 v16, 23, v255
    """.strip().split("\n") + [f"s_mov_b32 s58, {QB}", ]
    def post(t):
        out = []
        for i in range(2):
            r = ACC + 20 * i + 4 * t
            out += phi(r, 4, T8 + 4 * i)
            b = 14 if t == 4 else BQ + 16 * i + 4 * t
            out += [f"v_cvt_pk_bf16_f32 v{b}, v{r}, v{r+1}", f"v_cvt_pk_bf16_f32 v{b+1}, v{r+2}, v{r+3}"]
            if t == 4:
                for h in range(4): out += [f"v_cndmask_b32 v{BQ+16*i+4*h+2+p}, 0, v{14+p}, {msk[h]}" for p in range(2)]
        return out
    for n in range(NB - 1): rd(n)
    fill = []
    for n, (s, ks, t) in enumerate(seq):
        if n == 51: fill = setup
        if n >= 60 and n % 10 == 1: fill = fill + post(order[n // 10 - 6])
        lg.wait(n)
        for i in range(2):
            d = ACC + 20 * i + 4 * t
            mfma16(a, d, WB + 4 * (n % NB), XS + 16 * s + 8 * ks + 4 * i, None if n < 5 else d)
            if i == 1 and n + NB - 1 < len(seq): rd(n + NB - 1)
            for _ in range(2):
                if fill: a(fill.pop(0))
    assert not dma
    stamp(a, prof, 4)
    a("s_mov_b32 s59, 59648\ns_nop 6")
    for x in fill + post(order[4]): a(x)
    stamp(a, prof, 5)
    hint = "buffer_store_dword v16, v16, s[40:43], s3 offen sc1"
    a("s_waitcnt vmcnt(0)")
    if opt("he", 2) == 1: a(hint)
    a("s_barrier")
    if opt("he", 2) == 0: a(hint)
    stamp(a, prof, 6)
    for h in range(4):
        f = AF + 8 * h
        a(f"""
        ds_read_b64 {vr(f+4,2)}, v10 offset:{840*h}
        ds_read_b64 {vr(f+6,2)}, v11 offset:{840*h+32}
        ds_read_b64 {vr(f,2)}, v8 offset:{840*h}
        ds_read_b64 {vr(f+2,2)}, v9 offset:{840*h+32}
        """)
    for h in range(4):
        a(f"s_waitcnt lgkmcnt({12-4*h})")
        for i in range(2): mfma16(a, D0 + 32*i + 8*h + 4, AF + 8*h + 4, BQ + 16*i + 4*h)
        for i in range(2): mfma16(a, D0 + 32*i + 8*h, AF + 8*h, BQ + 16*i + 4*h)
    a("s_nop 1")
    if opt("he", 2) == 2: a(hint)
    for i in range(2):
        for h in range(4):
            d = D0 + 32*i + 8*h
            a(f"v_add_f32 v{d+5}, s61, v{d+5}")
        for h in range(4):
            d = D0 + 32*i + 8*h
            a(f"v_rcp_f32 v{d+5}, v{d+5}")
        o = TMP + 12 * i
        for h in range(4):
            d = D0 + 32*i + 8*h
            for r in range(5): a(f"v_mul_f32 v{d+r}, v{d+r}, v{d+5}")
            a(f"v_cvt_pk_bf16_f32 v{o+2*h}, v{d}, v{d+1}\nv_cvt_pk_bf16_f32 v{o+2*h+1}, v{d+2}, v{d+3}")
            if h & 1:
                a(f"v_cvt_pk_bf16_f32 v{o+8+(h>>1)}, v{d-8+4}, v{d+4}")
                a(f"buffer_store_dwordx4 {vr(o+2*h-2,4)}, v12, s[40:43], s{54+i} offen offset:{(h>>1)*1024} {ost}")
        a(f"buffer_store_dwordx2 {vr(o+8,2)}, v13, s[40:43], s{54+i} offen offset:2048 {ost}")
        if opt("he", 2) == 3 + i: a(hint)
    stamp(a, prof, 7)
    a("s_branch FIN")

def kv_waves(a, prof):
    ACC, B0, B1 = 16, 96, 132
    lane_addrs(a)
    a(f"""
    s_and_b32 s54, s51, 1
    s_lshr_b32 s55, s51, 1
    s_lshl_b32 s56, s54, 13
    v_add_u32 v8, s56, v2
    v_xor_b32 v9, 64, v8
    s_mul_i32 s56, s55, 80
    s_add_u32 s56, s56, {WK}
    v_lshl_add_u32 v10, v7, 3, v3
    v_add_u32 v10, s56, v10
    v_lshrrev_b32 v4, 1, v7
    v_cmp_eq_u32 vcc, s55, v4
    v_and_b32 v4, 1, v7
    v_mul_u32_u24 v4, 40, v4
    v_mov_b32 v11, {WV-WK+32}
    v_cndmask_b32 v11, v11, 32, vcc
    v_add3_u32 v11, v11, v4, v3
    v_add_u32 v11, s56, v11
    s_mov_b32 s57, 0
    s_mov_b32 s58, 0
    """)
    for r in range(80): a(f"v_mov_b32 v{ACC+r}, 0")
    PK, P, TMP, EA, ONE, TID, GA, SEL, KA, RA = 168, 96, 216, 228, 235, 241, 242, 244, 252, 253
    WA = [236, 237, 238, 239, 240]
    a(f"""
    s_mul_i32 s3, s55, 210
    v_mul_u32_u24 v12, 5, v5
    v_add_u32 v12, s3, v12
    v_lshrrev_b32 v13, 3, v5
    v_cmp_eq_u32 s[94:95], s55, v13
    v_and_b32 v14, 1, v6
    v_mul_u32_u24 v14, 105, v14
    v_cndmask_b32 v13, v7, 4, s[94:95]
    v_mul_u32_u24 v13, 5, v13
    v_add_u32 v13, s3, v13
    v_add_u32 v{EA}, v12, v6
    v_add_u32 v{EA+1}, 105, v{EA}
    v_add_u32 v{EA+2}, v13, v6
    v_add_u32 v{EA+2}, 80, v{EA+2}
    v_add_u32 v{EA+3}, 105, v{EA+2}
    v_add3_u32 v{EA+4}, v12, v14, 4
    v_add3_u32 v{EA+5}, v13, v14, 4
    v_add_u32 v{EA+5}, 80, v{EA+5}
    s_mul_i32 s3, s54, {2*KS}
    s_add_u32 s3, s3, {KV32}
    v_mov_b32 v14, {KS}
    """)
    for i in range(6):
        a(f"""
        v_and_b32 v12, 1, v{EA+i}
        v_lshrrev_b32 v{EA+i}, 1, v{EA+i}
        v_mad_u32_u24 v12, v12, v14, s3
        v_lshl_add_u32 v{EA+i}, v{EA+i}, 4, v12
        """)
    def rep(m16, qs): return sum(m16 << (16 * q) for q in qs)
    def colmask(h): return (0xf << (4 * (h ^ 2))) | (1 << (4 * h))
    masks = []
    for hp in range(2):
        ha, hb = 2 * hp, 2 * hp + 1
        masks.append([rep(colmask(ha), range(4)), rep(colmask(hb), range(4)), rep(0xffff, [ha]), rep(0xffff, [hb]),
                      rep(colmask(ha), [ha]) | rep(colmask(hb), [hb])])
    a("s_cmp_eq_u32 s55, 0")
    for n in range(5):
        for half in range(2):
            c0, c1 = (masks[0][n] >> (32 * half)) & 0xffffffff, (masks[1][n] >> (32 * half)) & 0xffffffff
            a(f"s_mov_b32 s{84+2*n+half}, {hex(c1)}\ns_cselect_b32 s{84+2*n+half}, {hex(c0)}, s{84+2*n+half}")
    a(f"""
    v_mov_b32 v{ONE}, 0x3f803f80
    v_lshlrev_b32 v{TID}, 4, v0
    s_lshl_b32 s3, s52, 4
    s_add_u32 s48, s3, s50
    s_mul_i32 s48, s48, {PSTR}
    s_add_u32 s48, s48, {WS_PART}
    s_mul_i32 s44, s3, {PSTR}
    s_add_u32 s44, s44, {WS_PART}
    s_lshl_b32 s49, s51, 10
    s_add_u32 s44, s44, s49
    s_add_u32 s45, s44, {4*PSTR}
    s_add_u32 s46, s44, {8*PSTR}
    s_add_u32 s47, s44, {12*PSTR}
    s_cmp_lt_u32 s51, 2
    s_mov_b32 s99, {QB-2048}
    s_cselect_b32 s99, {48*1024}, s99
    s_add_u32 s99, s99, s49
    v_mul_u32_u24 v{GA}, {PSTR}, v6
    v_lshl_add_u32 v{GA}, v5, 4, v{GA}
    s_cmp_eq_u32 s51, 3
    s_cselect_b32 s3, 0x7fff0000, 0
    v_or_b32 v{GA+1}, s3, v{GA}
    v_lshrrev_b32 v12, 1, v5
    v_and_b32 v13, 1, v5
    v_lshlrev_b32 v13, 4, v13
    v_mov_b32 v14, 0x3f80
    v_lshlrev_b32 v13, v13, v14
    """)
    for r in range(8):
        a(f"v_cmp_eq_u32 vcc, {r}, v12\ns_nop 1\nv_cndmask_b32 v{SEL+r}, 0, v13, vcc")
    a(f"""
    v_lshrrev_b32 v12, 1, v6
    v_lshlrev_b32 v12, 8, v12
    v_lshl_add_u32 v12, v5, 4, v12
    v_and_b32 v13, 1, v6
    v_lshl_add_u32 v12, v13, 3, v12
    s_add_u32 s3, s49, {KVT}
    v_add_u32 v{KA}, s3, v12
    v_cmp_gt_u32 s[100:101], 210, v0
    """.replace("v_cmp_gt_u32 s[100:101], 210, v0", "v_cmp_gt_u32 vcc, 210, v0\ns_mov_b64 s[100:101], vcc"))
    fin.tile_ids(a)
    fin.wo_addr(a, WA, 12, 13, 256, 0)
    def wo(k):
        m0 = "s_mov_b32 m0, s99" if k == 12 else f"s_add_u32 m0, s49, {4096*k if k < 12 else QB+(4*k-50)*1024}"
        return f"{m0}\ns_mov_b32 s98, {(k//5)*128*1280}\nbuffer_load_dwordx4 v{WA[k%5]}, s[36:39], s98 offen lds"
    def reads(buf, ks):
        out = []
        x = [f"ds_read_b128 {vr(buf+4*i,4)}, v{8+ks} offset:{2048*i}" for i in range(4)]
        w = []
        for t, (ad, o) in enumerate([(10, 0), (10, 40), (11, 0), (10, WV-WK), (10, WV-WK+40)]):
            d = buf + 16 + 4 * t
            w += [f"ds_read_b64_tr_b16 {vr(d,2)}, v{ad} offset:{o+ks*5120}", f"ds_read_b64_tr_b16 {vr(d+2,2)}, v{ad} offset:{o+ks*5120+1280}"]
        return x[:1] + w + x[1:]
    def group(buf, fill):
        fill = list(fill)
        for i in range(4):
            for t in range(5):
                d = ACC + 20 * i + 4 * t
                mfma16(a, d, buf + 4 * i, buf + 16 + 4 * t, d)
                if fill: a(fill.pop(0))
        assert not fill
    stamp(a, prof, 1)
    a("s_waitcnt lgkmcnt(0)\ns_barrier")
    stamp(a, prof, 2)
    for r in reads(B0, 0): a(r)
    a("s_branch G_mid\nG_loop:")
    group(B1, reads(B0, 0))
    a("G_mid:\ns_waitcnt lgkmcnt(0)")
    a(f"""
    s_add_u32 s57, s57, 1
    s_cmp_eq_u32 s57, 3
    s_cselect_b32 s57, 0, s57
    s_mov_b32 s59, {SLOT}
    s_cselect_b32 s59, {-2*SLOT}, s59
    s_add_u32 s58, s58, 1
    s_cmp_lt_u32 s58, 10
    """)
    group(B0, reads(B1, 1) + [f"v_add_u32 v{8+i}, s59, v{8+i}" for i in range(4)])
    a("s_waitcnt lgkmcnt(0)\ns_barrier\ns_cbranch_scc1 G_loop")
    if opt("prio", 1): a("s_setprio 2")
    def post(i):
        b = ACC + 20 * i
        pk = PK + 24 * (i >> 1) + 2 * (i & 1)
        cv = lambda o, t: [f"v_cvt_pk_bf16_f32 v{pk+o}, v{b+4*t}, v{b+4*t+1}", f"v_cvt_pk_bf16_f32 v{pk+o+1}, v{b+4*t+2}, v{b+4*t+3}"]
        ph = phi(b, 12, TMP)
        out = ph[:12] + cv(20, 2) + ph[12:28] + cv(12, 3) + cv(16, 4) + ph[28:]
        out += [f"v_cndmask_b32 v{pk+20+p}, v{pk+20+p}, v{ONE}, s[94:95]" for p in range(2)]
        out += cv(0, 0) + cv(4, 1) + cv(8, 2) + (["s_barrier"] if i == opt("kb", 1) and opt("n1", 40) > 20 else []) + (["s_nop 1"] if i & 1 else [])
        if i & 1:
            k = PK + 24 * (i >> 1)
            for n, (x, y) in enumerate([(0, 12), (4, 16), (0, 20), (4, 20), (8, 12), (8, 16), (8, 20)]):
                out.append(f"v_mfma_f32_16x16x32_bf16 {vr(P+4*n,4)}, {vr(k+x,4)}, {vr(k+y,4)}, {vr(P+4*n,4) if i == 3 else 0}")
        return out
    fill = post(0) + post(1)
    for n in range(20):
        i, t = divmod(n, 5)
        d = ACC + 20 * i + 4 * t
        mfma16(a, d, B1 + 4 * i, B1 + 16 + 4 * t, d)
        if n >= 8:
            for _ in range(opt("kf", 2)): a(fill.pop(0))
    stamp(a, prof, 3)
    for x in fill + post(2) + post(3): a(x)
    a("s_nop 3")
    a(f"""
    ds_write_b128 v{EA}, {vr(P,4)}
    ds_write_b128 v{EA+1}, {vr(P+4,4)}
    s_mov_b64 exec, s[84:85]
    ds_write_b128 v{EA+2}, {vr(P+8,4)}
    s_mov_b64 exec, s[86:87]
    ds_write_b128 v{EA+3}, {vr(P+12,4)}
    s_mov_b64 exec, s[88:89]
    ds_write_b128 v{EA+4}, {vr(P+16,4)}
    s_mov_b64 exec, s[90:91]
    ds_write_b128 v{EA+4}, {vr(P+20,4)}
    s_mov_b64 exec, s[92:93]
    ds_write_b128 v{EA+5}, {vr(P+24,4)}
    s_mov_b64 exec, -1
    s_waitcnt lgkmcnt(0)
    s_barrier
    """)
    stamp(a, prof, 4)
    a(f"""
    ds_read_b128 v[16:19], v{TID} offset:{KV32}
    ds_read_b128 v[24:27], v{TID} offset:{KV32+2*KS}
    ds_read_b128 v[20:23], v{TID} offset:{KV32+KS}
    ds_read_b128 v[28:31], v{TID} offset:{KV32+3*KS}
    s_waitcnt lgkmcnt(2)
    """)
    for r in range(4): a(f"v_add_f32 v{16+r}, v{16+r}, v{24+r}")
    a("s_waitcnt lgkmcnt(0)")
    for r in range(4, 8): a(f"v_add_f32 v{16+r}, v{16+r}, v{24+r}")
    for r in range(4): a(f"v_cvt_pk_bf16_f32 v{32+r}, v{16+2*r}, v{17+2*r}")
    for r in range(4): a(f"v_cndmask_b32 v{32+r}, 0, v{32+r}, s[100:101]")
    L, D = 48, 16
    a(f"buffer_store_dwordx4 v[32:35], v{TID}, s[40:43], s48 offen sc1")
    if opt("prio", 1): a("s_setprio 0")
    n1 = opt("wo1", 21)
    for r in range(8): a(f"v_mov_b32 v{D+r}, 0")
    a("s_barrier")
    for k in range(11, n1): a(wo(k))
    def issue(i, sc="sc1"):
        for g in range(4):
            a(f"buffer_load_dwordx4 {vr(L+16*i+4*g,4)}, v{GA if g < 2 else GA+1}, s[40:43], s{44+i} offen offset:{256*g} {sc}")
    for i in range(4): issue(i, '' if opt('pp', 0) else 'sc1')
    stamp(a, prof, 5)
    for k in range(n1, 25): a(wo(k))
    a("s_mov_b32 s56, 15\ns_mov_b32 s58, 0\ns_mov_b64 s[96:97], -1")
    stamp(a, prof, 7)
    a("G_poll:")
    for i in range(4):
        b = L + 16 * i
        a(f"""
        s_bitcmp1_b32 s56, {i}
        s_cbranch_scc0 G_n{i}
        s_waitcnt vmcnt({25-n1+12-4*i})
        v_max3_u32 v2, v{b}, v{b+4}, v{b+8}
        v_max_u32 v2, v2, v{b+12}
        v_cmp_eq_u32 vcc, -1, v2
        s_and_b64 vcc, vcc, s[96:97]
        s_cbranch_scc1 G_n{i}
        s_bitset0_b32 s56, {i}
        """)
        for g in range(4):
            d = D + 4 * (g >> 1)
            mfma16(a, d, SEL + 4 * (g & 1), b + 4 * g, d)
        a(f"G_n{i}:")
    a("s_cmp_eq_u32 s56, 0\ns_cbranch_scc1 G_done")
    for i in range(4):
        a(f"s_bitcmp1_b32 s56, {i}\ns_cbranch_scc0 G_r{i}")
        issue(i)
        a(f"G_r{i}:")
    a(f"""
    s_add_u32 s58, s58, 1
    s_cmp_lt_u32 s58, {fin.POLL_MAX}
    s_cselect_b64 s[96:97], -1, 0
    s_waitcnt vmcnt(0)
    s_branch G_poll
    G_done:
    s_nop 2
    s_mov_b32 s58, {QB}
    s_mov_b32 s59, 59648
    s_nop 1
    """)
    for p in range(2):
        d = D + 4 * p
        a(f"v_cvt_pk_bf16_f32 v{d}, v{d}, v{d+1}\nv_cvt_pk_bf16_f32 v{d+1}, v{d+2}, v{d+3}")
        a(f"ds_write_b64 v{KA}, {vr(d,2)} offset:{512*p}")
    a("s_waitcnt lgkmcnt(0)\ns_barrier")
    stamp(a, prof, 6)
    a("s_branch FIN")
```

```python
from common import *
import fin

RS = 2064
BROW = 24 * RS
XB = 56 * RS
US = 4608
UB = 163840 - 8 * US
TB, TS = 102400, 3072
EO, FO = 2176, 2880
LOG2E = "0x3fb8aa3b"

def cmul(a, d, x, y, t):
    a(f"v_pk_mul_f32 {vr(t,2)}, {vr(x,2)}, {vr(y,2)} op_sel:[0,0] op_sel_hi:[0,1]")
    a(f"v_pk_fma_f32 {vr(d,2)}, {vr(x,2)}, {vr(y,2)}, {vr(t,2)} op_sel:[1,1,0] op_sel_hi:[1,0,1] neg_lo:[1,0,0]")

def cmul2(a, jobs):
    for d, x, y, t in jobs:
        a(f"v_pk_mul_f32 {vr(t,2)}, {vr(x,2)}, {vr(y,2)} op_sel:[0,0] op_sel_hi:[0,1]")
    for d, x, y, t in jobs:
        a(f"v_pk_fma_f32 {vr(d,2)}, {vr(x,2)}, {vr(y,2)}, {vr(t,2)} op_sel:[1,1,0] op_sel_hi:[1,0,1] neg_lo:[1,0,0]")

def ssm_role(a, prof=False, st=""):
    lg = Q(a, "lgkmcnt", 15); vm = Q(a, "vmcnt", 63)
    R, PRM, X = 12, 28, 32
    a(f"""
    s_lshl_b32 s52, s50, 3
    s_add_u32 s52, s52, s51
    s_lshl_b32 s53, s52, 8
    v_lshl_add_u32 v2, v1, 2, s53
    s_lshl_b32 s54, s52, 1
    s_and_b32 s55, s54, 0xfffffffc
    s_load_dword s56, s[20:21], s55
    s_load_dword s57, s[22:23], s55
    global_load_dword v{PRM}, v2, s[12:13]
    global_load_dword v{PRM+1}, v2, s[14:15]
    global_load_dword v{PRM+2}, v2, s[16:17]
    global_load_dword v{PRM+3}, v2, s[18:19]
    s_and_b32 s58, s50, 7
    s_lshl_b32 s58, s58, 8
    v_lshl_add_u32 v3, v0, 2, s58
    v_and_b32 v3, 2047, v3
    v_mul_u32_u24 v251, 1280, v3
    v_bfe_u32 v250, v1, 1, 2
    v_or_b32 v250, v250, v3
    s_and_b32 s58, s50, {opt("gr", 3)}
    v_xor_b32 v250, s58, v250
    s_lshl_b32 s59, s50, 4
    s_lshl_b32 s97, s50, 7
    s_add_u32 s97, s97, {WS_FLAG}
    """)
    for i in range(4): vm.push("prm")
    if opt("l2pf", 1):
        fin.pf_first(a, 254); vm.push("pf")
    def gather(i):
        if opt("gx", 1):
            a(f"v_xor_b32 v{R+4*i}, {i}, v250\nv_mul_u32_u24 v{R+4*i}, 1280, v{R+4*i}")
            a(f"buffer_load_dwordx4 {vr(R+4*i,4)}, v{R+4*i}, s[32:35], s59 offen")
        else: a(f"buffer_load_dwordx4 {vr(R+4*i,4)}, v251, s[32:35], s59 offen offset:{1280*i}")
        vm.push("g")
    late = opt("gl", 1)
    if not late:
        for i in range(4): gather(i)
    if late >= 4:
        a("s_cmp_lt_u32 s51, 4\ns_cbranch_scc1 S_g0")
        if opt("gw", 0): a("s_waitcnt vmcnt(1)")
        for i in range(4): gather(i)
        a("S_g0:")
    a(f"""
    v_lshlrev_b32 v3, 1, v3
    v_add_u32 v3, {UB+512}, v3
    v_and_b32 v5, 15, v1
    v_lshrrev_b32 v6, 4, v1
    s_mul_i32 s60, s51, {US}
    s_add_u32 s60, s60, {UB}
    v_mov_b32 v8, 0
    v_mov_b32 v9, 0
    v_mov_b32 v10, 0
    v_mov_b32 v11, 0
    v_lshl_add_u32 v7, v1, 3, s60
    ds_write_b64 v7, v[8:9]
    s_lshl_b32 s61, s51, 10
    s_add_u32 s61, s61, {XB}
    v_lshl_add_u32 v7, v1, 2, s61
    v_mov_b32 v50, 0x3f80
    v_mov_b32 v51, 0x3f800000
    """)
    for h in range(1, 5):
        a(f"""
        v_subrev_u32 v48, {32-h}, v1
        v_subrev_u32 v49, {33-h}, v1
        v_cmp_ge_u32 vcc, {2*h}, v48
        v_cmp_ge_u32 s[62:63], {2*h}, v49
        s_nop 0
        v_cndmask_b32 v48, 0, v50, vcc
        v_cndmask_b32 v49, 0, v51, s[62:63]
        v_or_b32 v{51+h}, v48, v49
        ds_write_b32 v7, v{51+h} offset:{256*(h-1)}
        """)
    a(f"""
    v_lshlrev_b32 v2, 3, v6
    v_sub_u32 v2, v5, v2
    v_add_u32 v2, 24, v2
    v_lshlrev_b32 v2, 2, v2
    v_add_u32 v7, s61, v2
    """)
    for h in range(1, 5):
        o = 64 * (h - 1) + (20 if h == 1 else 16)
        a(f"ds_read2_b32 {vr(X+4*(h-1),2)}, v7 offset0:{o} offset1:{o-2}")
        a(f"ds_read2_b32 {vr(X+4*(h-1)+2,2)}, v7 offset0:{o-4} offset1:{o-6}")
    a(f"""
    v_and_b32 v48, 31, v1
    v_lshrrev_b32 v49, 5, v1
    v_mul_u32_u24 v4, {RS}, v48
    s_lshl_b32 s53, s51, 8
    v_lshl_add_u32 v4, v49, 4, v4
    v_add_u32 v4, s53, v4
    s_waitcnt lgkmcnt(0)
    s_and_b32 s54, s54, 2
    s_lshl_b32 s54, s54, 3
    s_lshr_b32 s56, s56, s54
    s_lshl_b32 s56, s56, 16
    s_lshr_b32 s57, s57, s54
    s_lshl_b32 s57, s57, 16
    v_mov_b32 v60, {LOG2E}
    v_mul_f32 v61, s56, v60
    v_exp_f32 v61, v61
    s_nop 0
    v_cvt_pk_bf16_f32 v61, v61, v61
    v_and_b32 v61, 0xffff0000, v61
    v_mul_f32 v62, v61, v60
    v_mul_f32 v63, 0.15915494, v61
    v_add_f32 v61, v61, v61
    """)
    stamp(a, prof, 1)
    def older(gs):
        l = a.label("sg")
        a(f"s_cmp_ge_u32 s51, 4\ns_cbranch_scc1 {l}")
        for i in gs: gather(i)
        a(f"{l}:")
    if late >= 4:
        a("s_cmp_ge_u32 s51, 4\ns_cbranch_scc1 S_prm\ns_waitcnt vmcnt(1)\nS_prm:\ns_waitcnt vmcnt(5)")
    else: vm.wait("prm")
    OP, KA = 128, 192
    W1, W8, W256, A0 = 64, 66, 68, 70
    tmpi = [0]
    def put(src, rows):
        t = 56 + tmpi[0] % 4; tmpi[0] += 1
        a(f"v_cvt_pk_bf16_f32 v{t}, v{src}, v{src+1}")
        for r in rows: a(f"ds_write_addtid_b32 v{t} offset:{r*RS}")
    for p in range(2):
        if late == 3 and p == 0: gather(0)
        if opt("kp", 1): a(f"s_setprio {3-2*p}")
        for i in range(4):
            a(f"v_lshlrev_b32 v{48+i}, 16, v{PRM+i}" if p == 0 else f"v_and_b32 v{48+i}, 0xffff0000, v{PRM+i}")
        a(f"""
        v_mul_f32 v48, v48, v60
        v_exp_f32 v48, v48
        v_mul_f32 v49, v49, v63
        v_mul_f32 v{A0}, v50, v61
        v_mul_f32 v{A0+1}, v51, -v61
        v_cvt_pk_bf16_f32 v48, v48, v48
        v_and_b32 v48, 0xffff0000, v48
        v_mul_f32 v48, v48, -v62
        v_mul_f32 v50, 0x41000000, v49
        v_mul_f32 v51, 0x43800000, v49
        v_mul_f32 v52, 0x41000000, v48
        v_mul_f32 v53, 0x43800000, v48
        v_fract_f32 v49, v49
        v_fract_f32 v50, v50
        v_fract_f32 v51, v51
        v_exp_f32 v48, v48
        v_exp_f32 v52, v52
        v_exp_f32 v53, v53
        v_cos_f32 v{W1}, v49
        v_sin_f32 v{W1+1}, v49
        v_cos_f32 v{W8}, v50
        v_sin_f32 v{W8+1}, v50
        v_cos_f32 v{W256}, v51
        v_sin_f32 v{W256+1}, v51
        s_mov_b32 m0, s53
        v_mul_f32 v{W1}, v{W1}, v48
        v_mul_f32 v{W1+1}, v{W1+1}, -v48
        v_mul_f32 v{W8}, v{W8}, v52
        v_mul_f32 v{W8+1}, v{W8+1}, v52
        v_mul_f32 v{W256}, v{W256}, v53
        v_mul_f32 v{W256+1}, v{W256+1}, -v53
        """)
        rowA = {0:[0],1:[1],2:[2],3:[3],4:[4,8],5:[5],6:[6],7:[7],8:[12],256:[9],258:[10],260:[11,13],262:[14],264:[15],
                516:[16],520:[17],1032:[18],1544:[19],772:[20],776:[21],1288:[22],1800:[23]}
        reg = {0: A0}; nxt = [72]
        def R_(t):
            reg[t] = nxt[0]; nxt[0] += 2; return reg[t]
        W2, W512, T0, T1, T2 = 118, 120, 122, 124, 126
        cmul2(a, [(R_(1), A0, W1, T0), (W2, W1, W1, T1), (W512, W256, W256, T2)])
        put(A0, rowA[0])
        for t in (2, 4, 6):
            cmul2(a, [(R_(t), reg[t-2], W2, T0), (R_(t+1), reg[t-1], W2, T1), (R_(254+t), reg[t-2], W256, T2)])
            put(reg[t-1], rowA[t-1])
            put(reg[t], rowA[t]); put(reg[254+t], rowA[254+t])
        cmul2(a, [(R_(8), reg[6], W2, T0), (R_(262), reg[6], W256, T1), (R_(516), reg[4], W512, T2)])
        put(reg[7], rowA[7])
        cmul2(a, [(R_(264), reg[8], W256, T0), (R_(520), reg[8], W512, T1), (R_(772), reg[260], W512, T2)])
        for t in (8, 262, 516): put(reg[t], rowA[t])
        cmul2(a, [(R_(776), reg[264], W512, T0), (R_(1032), reg[520], W512, T1), (W2, W8, W8, T2)])
        for t in (264, 520, 772): put(reg[t], rowA[t])
        B3, W32 = 114, 116
        cmul2(a, [(R_(1288), reg[776], W512, T0), (R_(1544), reg[1032], W512, T1), (B3, W2, W8, T2)])
        for t in (776, 1032): put(reg[t], rowA[t])
        cmul2(a, [(R_(1800), reg[1288], W512, T0), (W32, W2, W2, T1)])
        for t in (1288, 1544, 1800): put(reg[t], rowA[t])
        assert nxt[0] <= 114
        if late == 1: gather(2 * p)
        if late == 2 and p == 0: gather(0); gather(1)
        if late == 3 and p == 0: gather(1); gather(2)
        if late == 5 and p == 1: older([0, 1])
        if late == 6 and p == 1: older([1])
        if opt("kp", 1) == 2: a(f"s_setprio {2-2*p}")
        a(f"s_add_u32 m0, s53, {BROW}\nv_mov_b32 v55, 0x3f80")
        if p == 0: a("ds_write_addtid_b32 v55 offset:0")
        cur = [W8, W2, B3, W32]
        buf = [[72, 74, 76, 78], [80, 82, 84, 86]]
        tmp = [88, 90, 92, 94]
        for g in range(8):
            n = 4 if g < 6 else (3 if g == 6 else 0)
            new = buf[g & 1]
            cmul2(a, [(new[i], cur[i], W32, tmp[i]) for i in range(n)])
            for i in range(4 if g < 7 else 3): put(cur[i], [4*g+1+i])
            cur = new
        if late == 1: gather(2 * p + 1)
        if late == 2 and p == 0: gather(2); gather(3)
        if late == 3 and p == 0: gather(3)
        if late == 5 and p == 1: older([2, 3])
        if late == 6: older([[0], [2]][p])
        for ks in range(8):
            a(f"ds_read_b128 {vr(OP+8*ks,4)}, v4 offset:{32*ks}")
            a(f"ds_read_b128 {vr(OP+8*ks+4,4)}, v4 offset:{BROW+32*ks}")
        for ks in range(8):
            a(f"s_waitcnt lgkmcnt({14-2*ks})")
            mfma32(a, KA, OP+8*ks, OP+8*ks+4, None if (p == 0 and ks == 0) else KA)
    stamp(a, prof, 2)
    if late == 4: older(range(4))
    if late == 6: older([3])
    a(f"""
    s_mov_b32 s46, 0x05040100
    s_mov_b32 s47, 0x07060302
    s_mul_i32 s53, s51, {TS}
    s_add_u32 s53, s53, {TB}
    v_lshl_add_u32 v48, v1, 4, s53
    v_and_b32 v49, 31, v1
    v_lshrrev_b32 v50, 5, v1
    v_lshlrev_b32 v51, 5, v49
    v_lshl_add_u32 v51, v50, 4, v51
    v_add_u32 v51, s53, v51
    v_and_b32 v52, 1, v1
    v_mul_u32_u24 v52, 192, v52
    v_lshl_add_u32 v52, v50, 6, v52
    v_and_b32 v53, 30, v1
    v_lshl_add_u32 v52, v53, 1, v52
    v_add_u32 v52, s53, v52
    v_lshl_add_u32 v53, v1, 1, s53
    v_mov_b32 v54, s53
    s_add_u32 s54, s53, 4
    v_add_u32 v2, s54, v2
    v_add_u32 v4, 1024, v2
    v_add_u32 v7, 2048, v2
    v_lshlrev_b32 v253, 2, v6
    v_sub_u32 v253, v5, v253
    s_add_u32 s54, s53, {EO+52}
    v_lshl_add_u32 v253, v253, 2, s54
    s_waitcnt vmcnt(0)
    """)
    if opt("gx", 1):
        a("v_and_b32 v251, 1, v250\nv_and_b32 v250, 2, v250\nv_cmp_ne_u32 s[44:45], 0, v250\nv_cmpx_ne_u32 vcc, 0, v251")
        for d in range(4): a(f"v_swap_b32 v{R+d}, v{R+4+d}\nv_swap_b32 v{R+8+d}, v{R+12+d}")
        a("s_mov_b64 exec, s[44:45]")
        for d in range(8): a(f"v_swap_b32 v{R+d}, v{R+8+d}")
        a("s_mov_b64 exec, -1")
    for c in range(8):
        d, sel = c >> 1, 46 + (c & 1)
        t = 72 + 2 * c
        a(f"v_perm_b32 v{t}, v{R+4+d}, v{R+d}, s{sel}\nv_perm_b32 v{t+1}, v{R+12+d}, v{R+8+d}, s{sel}")
        a(f"ds_write_b64 v3, {vr(t,2)} offset:{c*US}")
    a(f"""
    v_lshlrev_b32 v3, 5, v5
    v_and_b32 v254, 1, v6
    v_lshl_add_u32 v254, v254, 9, v3
    v_lshrrev_b32 v12, 1, v6
    v_lshl_add_u32 v254, v12, 4, v254
    v_lshl_add_u32 v3, v6, 4, v3
    v_add_u32 v3, s60, v3
    s_lshl_b32 s53, s52, 12
    s_add_u32 s53, s53, {WS_BT}
    s_mul_i32 s44, s64, 5120
    s_mul_i32 s45, s64, {32*1280}
    s_add_u32 s46, s45, {256*1280}
    s_add_u32 s47, s45, {512*1280}
    """)
    fin.tile_ids(a)
    WA = [28, 29, 30, 31, 252]
    fin.wo_addr(a, WA, 12, 13)
    a(f"""
    s_mov_b64 exec, 1
    v_add_f32 v{KA}, s57, v{KA}
    s_mov_b64 exec, -1
    v_cvt_pk_bf16_f32 v55, v{KA}, 0
    """)
    for i in range(4): a(f"v_cvt_pk_bf16_f32 v{56+i}, v{KA+i+1}, v{KA+i}")
    for i, (lo, hi) in enumerate([(5,5),(6,5),(7,6),(7,7)]): a(f"v_cvt_pk_bf16_f32 v{60+i}, v{KA+lo}, v{KA+hi}")
    a(f"""
    v_cvt_pk_bf16_f32 v64, v{KA+8}, v{KA+9}
    v_cvt_pk_bf16_f32 v65, v{KA+10}, v{KA+11}
    v_and_b32 v66, 0xffff0000, v63
    v_lshrrev_b32 v67, 16, v64
    v_and_b32 v69, 0xffff0000, v64
    v_or_b32 v68, v67, v69
    s_waitcnt lgkmcnt(0)
    """)
    stamp(a, prof, 3)
    a(f"s_setprio {opt('sp', 1)}")
    a(f"""
    s_barrier
    ds_write_b128 v48, v[8:11]
    ds_write_b128 v48, v[8:11] offset:2048
    ds_write_b128 v51, v[56:59] offset:64
    ds_write_b128 v51, v[60:63] offset:1088
    s_mov_b64 exec, 1
    ds_write_b32 v54, v55 offset:60
    s_mov_b64 exec, -1
    """)
    T, E, ACC, F, BX, OUT = 72, 120, 160, 192, 228, 24
    G, PK = [224, 104], [12, 108]
    T32, TFIX = 96, 100
    def treg(m): return T + 8 * ((m % 16) // 2 % 3) + (4 if m >= 16 else 0)
    def rd2(d, addr, o, step, tag):
        return [(f"ds_read2_b32 {vr(d,2)}, v{addr} offset0:{o+3*step} offset1:{o+2*step}", None),
                (f"ds_read2_b32 {vr(d+2,2)}, v{addr} offset0:{o+step} offset1:{o}", tag)]
    def ld(x): a(x[0]); lg.push(x[1])
    def rdT(mu): return rd2(treg(mu), 2, 16 * mu, 2, None) + rd2(treg(mu + 16), 4, 16 * mu, 2, ("T", mu))
    nearq = [(mu, j) for mu in range(0, 16, 2) for j in range(8)] + [(0, j) for j in range(6)]
    def ldF(n):
        mu, j = nearq[n]
        ld((f"ds_read_b128 {vr(F+4*(n%8),4)}, v3 offset:{480+512*j-32*mu}", ("F", n)))
    def ldG(j): ld((f"ds_read_b128 {vr(G[j&1],4)}, v3 offset:{464+512*j}", ("G", j)))
    for i in range(5): lg.push(None)
    for x in rdT(0): ld(x)
    for n in range(3): ldF(n)
    a(f"""
    ds_write_b32 v52, v64 offset:{EO+64}
    ds_write_b16 v53, v65 offset:{EO+384+64}
    ds_write_b16_d16_hi v53, v65 offset:{EO+384+64+128}
    s_mov_b32 exec_lo, 0
    s_mov_b32 exec_hi, 0x80000000
    ds_write2_b32 v54, v63, v63 offset0:0 offset1:1
    ds_write2_b32 v54, v66, v67 offset0:2 offset1:{(FO+72-2112)//4}
    ds_write2_b32 v54, v68, v69 offset0:{(FO+76-2112)//4} offset1:{(FO+80-2112)//4}
    s_mov_b64 exec, -1
    """.replace("s_mov_b32 exec_lo, 0", "v_add_u32 v54, 2112, v54\ns_mov_b32 exec_lo, 0"))
    for i in range(6): lg.push(None)
    for n in range(3, 7): ldF(n)
    stamp(a, prof, 4)
    if prof: lg.q = []
    EA = {d: E + 4 * (d - 2) for d in (2, 3, 4)}
    EB = {d: E + 12 + 4 * (d - 2) for d in (2, 3, 4)}
    E3 = {d: E + 24 + 4 * (d - 4) for d in (4, 5, 6, 7)}
    far = rd2(T32, 7, 0, 2, "E") + rd2(TFIX, 7, (FO - 2048) // 4, 2, "E")
    for d in (2, 3, 4): far += rd2(EA[d], 253, 16 * (d - 2), 1, "E") + rd2(EB[d], 253, 48 + 16 * (d - 2), 1, "E")
    for d in (4, 5, 6, 7): far += rd2(E3[d], 253, 96 + 16 * (d - 4), 1, "E")
    last = {}
    def mf(d, x, y, c):
        mfma16(a, d, x, y, c); last[d] = len(a.lines)
    def need(*ds):
        n = 8 - min(sum(1 for l in a.lines[last[d]:] if l.strip()) for d in ds)
        if n > 0: a(f"s_nop {n-1}")
    started = set()
    def acc(i, x, y):
        mf(ACC+4*i, x, y, ACC+4*i if i in started else None); started.add(i)
    def store(i):
        o = OUT + 2 * (i & 1)
        need(ACC + 4 * i)
        a(f"v_cvt_pk_bf16_f32 v{o}, v{ACC+4*i}, v{ACC+4*i+1}\nv_cvt_pk_bf16_f32 v{o+1}, v{ACC+4*i+2}, v{ACC+4*i+3}")
        if i & 1:
            a(f"s_nop 1\nv_permlane16_swap_b32 v{OUT}, v{OUT+2}\nv_permlane16_swap_b32 v{OUT+1}, v{OUT+3}")
            a(f"buffer_store_dwordx4 {vr(OUT,4)}, v254, s[40:43], s53 offen offset:{512*(i-1)} sc1")
    dma = fin.wo_group(WA, 44, 45, 0) + fin.wo_group(WA, 44, 46, 40960)
    dm, fr = opt("dm", 0), opt("fr", 0)
    if dm: dma = []
    tq = []
    for n in range(64):
        mu, j = nearq[n]
        if j == 0:
            lg.wait(("T", mu), ("F", n))
            nf = 4 if not fr else (8 if mu == 14 else 0)
            tq = (rdT(mu + 2) if mu < 14 else []) + far[:nf]; far = far[nf:]
        else: lg.wait(("F", n))
        f = F + 4 * (n % 8)
        acc(j, treg(mu), f)
        if tq: ld(tq.pop(0))
        if j <= 6: acc(j + 1, treg(mu + 16), f)
        if n + 7 < len(nearq): ldF(n + 7)
        if n >= opt("sd", 8) and n % 4 == 1 and dma: a(dma.pop(0))
        if n == opt("sd", 8) + 44 and not dm:
            a("s_cmp_ge_u32 s64, 4\ns_cbranch_scc1 S_nodma")
            for x in fin.wo_group(WA, 44, 47, 81920): a(x)
            a("S_nodma:")
        if n in (58, 60): ldG((n - 58) // 2)
    assert not dma
    for x in far: ld(x)
    fin.ready_issue(a, 8, 9)
    a("s_setprio 0")
    if dm:
        a("s_cmp_ge_u32 s64, 4\ns_cbranch_scc1 S_nodma\ns_mov_b32 s46, 0\nS_dma:")
        for x in fin.wo_group(WA, 44, 45, 0): a(x)
        a(f"s_add_u32 s44, s44, 20480\ns_add_u32 s45, s45, {128*1280}\ns_add_u32 s46, s46, 1\ns_cmp_lt_u32 s46, 5\ns_cbranch_scc1 S_dma\nS_nodma:")
    stamp(a, prof, 6)
    if prof: lg.q = []
    def box(j):
        f = F + 4 * ((64 + j) % 8); g = G[j & 1]
        lg.wait(("F", 64 + j), ("G", j), "E")
        mf(BX, f, X, None); mf(BX+4, f, X+4, None); mf(BX+8, g, X, None); mf(BX+12, g, X+4, None)
        if j <= 3: mf(BX+16, f, X+8, None); mf(BX+20, g, X+12, None)
        if j + 2 <= 5: ldG(j + 2)
        acc(j + 2, T32, f)
        if j <= 3: acc(j + 4, TFIX, f)
    def pack(j):
        out = []
        for k in range(3 if j <= 3 else 2):
            for r in range(4): out.append(((BX+8*k, BX+8*k+4), f"v_cvt_pk_bf16_f32 v{PK[j&1]+4*k+r}, v{BX+8*k+r}, v{BX+8*k+4+r}"))
        return out
    box(0)
    store(0); store(1)
    for dep, x in pack(0): need(*dep); a(x)
    for j in range(6):
        pk = []
        if j < 5: box(j + 1); pk = pack(j + 1)
        else: a("s_nop 1")
        p = PK[j & 1]
        ops = [(j+d, p, EA[d]) for d in (2, 3, 4)] + [(j+d, p+4, EB[d]) for d in (2, 3, 4)] + [(j+d, p+8, E3[d]) for d in (4, 5, 6, 7)]
        ops = [o for o in ops if o[0] <= 7]
        ops.sort(key=lambda o: o[0] != j + 2)
        for i, o in enumerate(ops):
            acc(*o)
            for _ in range(2):
                if pk and i >= 1:
                    dep, x = pk.pop(0); need(*dep); a(x)
        for dep, x in pk: need(*dep); a(x)
        if j == 1: fin.ready_wait(a, 8, 9, 44, opt("rw", 1) * (1 + 25 * dm))
        if j + 1 == opt("jb", 2):
            a(f"s_cmp_lt_u32 s64, 4\ns_cbranch_scc1 S_wo\ns_waitcnt vmcnt({1 + (j > 1) + (j > 3)})\ns_barrier\nS_wo:")
        store(j + 2)
    stamp(a, prof, 5)
    a("s_branch FIN_B")
```

```python
from common import *

POLL_MAX = 1 << 14
TILE_IDS = ["s_and_b32 s62, s2, 7", "s_lshl_b32 s62, s62, 2", "s_lshr_b32 s63, s2, 6", "s_add_u32 s62, s62, s63",
            "s_bfe_u32 s63, s2, 0x30003"]

def tile_list():
    if not opt("tm", 0): return TILE_IDS
    return ["s_and_b32 s62, s2, 3", "s_lshl_b32 s62, s62, 3", "s_and_b32 s63, s2, 4", "s_add_u32 s62, s62, s63"] + TILE_IDS[2:]

def tile_ids(a):
    for x in tile_list(): a(x)

def wo_addr(a, regs, t0, t1, step=64, vid=1, sd=36):
    srd(a, sd, 8, 819200)
    a("s_mul_i32 s3, s63, 160")
    for i, r in enumerate(regs):
        a(f"""
        v_add_u32 v{t0}, {step*i}, v{vid}
        v_mul_u32_u24 v{t1}, 6554, v{t0}
        v_lshrrev_b32 v{t1}, 16, v{t1}
        v_mul_u32_u24 v{t1}, {1280-160}, v{t1}
        v_lshl_add_u32 v{t0}, v{t0}, 4, v{t1}
        v_add_u32 v{r}, s3, v{t0}
        """)

def wo_group(regs, sl, sg, dl):
    return [f"s_add_u32 m0, s{sl}, {dl + 1024*i}\ns_nop 0\nbuffer_load_dwordx4 v{r}, s[36:39], s{sg} offen lds" for i, r in enumerate(regs)]

def ready_set(a, va, vd, wave=0, n=48, off=0):
    l = a.label("rds")
    a(f"""
    s_cmp_lg_u32 s64, {wave}
    s_cbranch_scc1 {l}
    v_mov_b32 v{va}, {off}
    v_mov_b32 v{vd}, 1
    s_mov_b64 exec, 1
    global_atomic_add v{vd}, v{va}, v{vd}, s[28:29] sc0 sc1
    s_waitcnt vmcnt(0)
    v_cmp_eq_u32 vcc, {n-1}, v{vd}
    s_cbranch_vccz {l}x
    global_store_dword v{va}, v{vd}, s[28:29] offset:128 sc1
    {l}x:
    s_mov_b64 exec, -1
    {l}:
    """)

def ready_issue(a, va, vd, wave=0):
    l = a.label("rdi")
    a(f"v_mov_b32 v{va}, 0\nv_mov_b32 v{vd}, 1\ns_cmp_lg_u32 s64, {wave}\ns_cbranch_scc1 {l}")
    a(f"global_load_dword v{vd}, v{va}, s[28:29] offset:128 sc1\n{l}:")

def ready_wait(a, va, vd, st, newer=0):
    l = a.label("rdy")
    a(f"""
    s_mov_b32 s{st}, 0
    s_waitcnt vmcnt({newer})
    {l}:
    v_cmp_eq_u32 vcc, 0, v{vd}
    s_cbranch_vccz {l}x
    s_sleep 4
    global_load_dword v{vd}, v{va}, s[28:29] offset:128 sc1
    s_add_u32 s{st}, s{st}, 1
    s_cmp_lt_u32 s{st}, {POLL_MAX}
    s_waitcnt vmcnt(0)
    s_cbranch_scc1 {l}
    {l}x:
    """)

def l2_prefetch(a, sn, vd):
    l = a.label("pf")
    a(f"""
    s_cmp_ge_u32 s{sn}, 108
    s_cbranch_scc1 {l}q
    s_mul_i32 s44, s{sn}, 3641
    s_lshr_b32 s44, s44, 16
    s_mul_i32 s45, s44, 18
    s_sub_u32 s45, s{sn}, s45
    s_lshl_b32 s44, s44, 2
    s_lshr_b32 s44, 0x948631, s44
    s_and_b32 s44, s44, 15
    s_cmp_ge_u32 s45, 8
    s_cbranch_scc1 {l}w
    s_and_b32 s46, s2, 3
    s_lshl_b32 s46, s46, 3
    s_add_u32 s46, s46, s45
    s_mul_i32 s46, s46, {64*1280}
    s_lshl_b32 s44, s44, 7
    s_add_u32 s46, s46, s44
    v_mul_u32_u24 v{vd}, 1280, v1
    buffer_load_dword v{vd}, v{vd}, s[32:35], s46 offen
    s_branch {l}x
    {l}q:
    s_sub_u32 s45, s{sn}, 108
    s_mul_i32 s44, s45, 13108
    s_lshr_b32 s44, s44, 16
    s_mul_i32 s46, s44, 5
    s_sub_u32 s45, s45, s46
    s_branch {l}v
    {l}w:
    s_cmp_ge_u32 s45, 13
    s_cselect_b32 s46, 7, 2
    s_add_u32 s45, s45, s46
    {l}v:
    s_mul_i32 s44, s44, {64*3840}
    s_lshl_b32 s45, s45, 7
    s_add_u32 s44, s44, s45
    s_bfe_u32 s45, s2, 0x10002
    s_mul_i32 s45, s45, 640
    s_add_u32 s44, s44, s45
    v_mul_u32_u24 v{vd}, 3840, v1
    v_add_u32 v{vd}, s44, v{vd}
    global_load_dword v{vd}, v{vd}, s[6:7]
    {l}x:
    """)

def pf_first(a, vd):
    a("s_lshr_b32 s47, s2, 3\ns_lshl_b32 s3, s64, 4\ns_add_u32 s47, s47, s3\ns_sub_u32 s47, s47, 16")
    l2_prefetch(a, 47, vd)

def help_role(a, prof):
    if opt("l2pf", 1):
        pf_first(a, 254)
        a("s_lshr_b32 s47, s2, 3\ns_mul_i32 s3, s64, 6\ns_add_u32 s47, s47, s3\ns_add_u32 s47, s47, 102\ns_cmp_ge_u32 s47, 158\ns_cbranch_scc1 H_gate")
        l2_prefetch(a, 47, 253)
        a("H_gate:")
        if opt("pfw", 0): a("s_waitcnt vmcnt(0)")
    a("""
    s_sub_u32 s50, s2, 208
    s_lshl_b32 s52, s50, 3
    s_add_u32 s52, s52, s64
    s_and_b32 s3, s2, 3
    s_lshl_b32 s3, s3, 1
    s_bfe_u32 s44, s2, 0x10002
    s_add_u32 s3, s3, s44
    s_lshl_b32 s3, s3, 2
    s_lshr_b32 s44, s50, 3
    s_add_u32 s3, s3, s44
    s_lshl_b32 s3, s3, 3
    s_add_u32 s3, s3, s64
    s_lshl_b32 s3, s3, 3
    v_lshrrev_b32 v2, 3, v1
    v_add_u32 v2, s3, v2
    v_mul_u32_u24 v3, 1280, v2
    v_and_b32 v4, 7, v1
    v_lshlrev_b32 v5, 4, v4
    v_add_u32 v3, v3, v5
    v_lshlrev_b32 v2, 2, v2
    """)
    def gstore(v):
        a(f"""
        v_cmp_eq_u32 vcc, 0, v4
        s_mov_b32 s3, {WS_G}
        s_and_saveexec_b64 s[44:45], vcc
        buffer_store_dword v{v}, v2, s[40:43], s3 offen sc1
        s_mov_b64 exec, -1
        """)
    def gate():
        a("s_cmp_ge_u32 s50, 32\ns_cbranch_scc1 H_nogate")
        for i in range(10):
            a(f"global_load_dwordx4 {vr(8+8*i,4)}, v5, s[24:25] offset:{128*i}")
            a(f"buffer_load_dwordx4 {vr(12+8*i,4)}, v3, s[32:35], 0 offen offset:{128*i}")
        a("v_mov_b32 v6, 0\nv_mov_b32 v7, 0")
        for i in range(10):
            a(f"s_waitcnt vmcnt({18-2*i})")
            for r in range(4): a(f"v_dot2c_f32_bf16 v{6+(r&1)}, v{8+8*i+r}, v{12+8*i+r}")
        a("""
        s_nop 2
        v_add_f32 v6, v6, v7
        s_nop 1
        v_add_f32 v6, v6, v6 quad_perm:[1,0,3,2] row_mask:0xf bank_mask:0xf
        s_nop 1
        v_add_f32 v6, v6, v6 quad_perm:[2,3,0,1] row_mask:0xf bank_mask:0xf
        s_nop 1
        v_add_f32 v6, v6, v6 row_half_mirror row_mask:0xf bank_mask:0xf
        v_mul_f32 v6, 0xbfb8aa3b, v6
        v_exp_f32 v6, v6
        s_nop 0
        v_add_f32 v6, 1.0, v6
        v_rcp_f32 v6, v6
        s_nop 0
        v_and_b32 v6, 0x7fffffff, v6
        """)
        gstore(6)
        a("H_nogate:")
    first = opt("gfirst", 0)
    if first: gate()
    a(f"""
    v_mov_b32 v96, -1
    v_mov_b32 v97, -1
    v_mov_b32 v98, -1
    v_mov_b32 v99, -1
    v_lshlrev_b32 v100, 4, v1
    s_add_u32 s46, s50, 1
    s_and_b32 s46, s46, 7
    s_mul_i32 s46, s46, 5
    s_lshr_b32 s47, s50, 3
    s_add_u32 s46, s46, s47
    s_cmp_ge_u32 s50, 40
    s_cselect_b32 s46, s50, s46
    s_lshl_b32 s46, s46, 3
    s_add_u32 s46, s46, s64
    s_lshl_b32 s46, s46, 13
    s_add_u32 s46, s46, {WS_O}
    s_add_u32 s47, s46, 4096
    s_cmp_ge_u32 s50, 32
    s_cbranch_scc1 H_flag
    """)
    if not first: gstore(96)
    a(f"""
    s_branch H_fill
    H_flag:
    s_lshl_b32 s3, s52, 7
    s_add_u32 s3, s3, {WS_FLAG - 256*128}
    v_lshlrev_b32 v6, 14, v1
    s_mov_b64 exec, 3
    buffer_store_dword v96, v6, s[40:43], s3 offen sc1
    s_mov_b64 exec, -1
    H_fill:
    """)
    for i in range(8): a(f"buffer_store_dwordx4 v[96:99], v100, s[40:43], s{46+(i>>2)} offen offset:{(i&3)*1024} sc1")
    W = [101, 102, 103, 104, 105]
    wo_addr(a, W, 6, 7)
    stamp(a, prof, 1)
    a("s_waitcnt vmcnt(0)\ns_barrier")
    ready_set(a, 6, 7)
    stamp(a, prof, 2)
    if not first: gate()
    a(f"s_mul_i32 s44, s64, 5120\ns_mul_i32 s45, s64, {32*1280}")
    stamp(a, prof, 3)
    for g in range(3):
        if g == 2: a("s_cmp_ge_u32 s64, 4\ns_cbranch_scc1 H_wait")
        for x in wo_group(W, 44, 45, 40960 * g): a(x)
        a(f"s_add_u32 s45, s45, {256*1280}")
    a("H_wait:\ns_waitcnt vmcnt(0)")
    ready_issue(a, 252, 253)
    ready_wait(a, 252, 253, 44)
    a("s_barrier")
    stamp(a, prof, 7)
    a("FIN_B:\ns_mov_b32 s58, 51200\ns_mov_b32 s59, 102400")

def final(a, prof):
    FR, OF, ACC, BR, BF = 88, 28, 68, 12, 20
    NP = 21
    a(f"""
    FIN:
    s_and_b32 s44, s64, 3
    s_lshr_b32 s45, s64, 2
    s_lshl_b32 s46, s62, 2
    s_add_u32 s46, s46, s44
    s_lshl_b32 s47, s46, 1
    s_add_u32 s47, s47, s45
    s_mul_i32 s47, s47, {4*2560}
    s_add_u32 s47, s47, {WS_O}
    s_add_u32 s48, s47, 2560
    s_add_u32 s49, s47, 5120
    s_add_u32 s50, s47, 7680
    s_mul_i32 s51, s63, 80
    s_lshl_b32 s52, s51, 12
    s_lshl_b32 s53, s46, 5
    s_add_u32 s52, s52, s53
    s_add_u32 s52, s52, {WS_BT}
    s_add_u32 s53, s52, {32*4096}
    s_lshl_b32 s54, s46, 6
    s_add_u32 s54, s54, {WS_G}
    v_lshlrev_b32 v4, 4, v1
    v_lshlrev_b32 v5, 3, v1
    v_lshrrev_b32 v6, 1, v1
    v_lshlrev_b32 v6, 12, v6
    v_and_b32 v7, 1, v1
    v_lshl_add_u32 v6, v7, 4, v6
    v_cmp_gt_u32 vcc, 10, v1
    v_and_b32 v8, 15, v1
    v_lshlrev_b32 v{BF+1}, 2, v8
    s_mul_i32 s99, s63, 1280
    s_add_u32 s99, s99, {WS_FLAG}
    v_lshl_add_u32 v7, v1, 7, s99
    s_lshr_b32 s99, s62, 1
    s_lshl_b32 s99, s99, 10
    s_add_u32 s99, s99, {WS_FLAG+16384}
    v_lshl_add_u32 v{BF}, v8, 7, s99
    v_cndmask_b32 v{BF}, v{BF}, v7, vcc
    s_add_u32 s98, s52, {64*4096}
    v_mov_b32 v7, 0
    """)
    def issueC():
        for i, sr in enumerate((52, 53, 98)):
            a(f"s_add_u32 m0, s55, {1024*i}\n" + ("s_mov_b32 exec_hi, 0" if i == 2 else "s_nop 0"))
            a(f"buffer_load_dwordx4 v6, s[40:43], s{sr} offen {'' if opt('bp', 1) else 'sc1'} lds")
        a("s_mov_b32 exec_hi, -1")
    def issue(c, sc="sc1"):
        o = OF + 20 * c
        for g in range(2):
            s = 47 + 2 * c + g
            a(f"buffer_load_dwordx2 {vr(o+16+2*g,2)}, v5, s[40:43], s{s} offen offset:2048 {sc}")
            a(f"buffer_load_dwordx4 {vr(o+8*g,4)}, v4, s[40:43], s{s} offen {sc}")
            a(f"buffer_load_dwordx4 {vr(o+8*g+4,4)}, v4, s[40:43], s{s} offen offset:1024 {sc}")
    stamp(a, prof, 8)
    a(f"""
    s_mul_i32 s55, s45, s58
    v_and_b32 v27, 3, v1
    v_lshrrev_b32 v2, 2, v1
    v_mul_u32_u24 v2, 160, v2
    v_add_u32 v2, s55, v2
    v_bfe_u32 v10, v1, 2, 2
    v_mul_u32_u24 v10, 20, v10
    v_lshrrev_b32 v9, 4, v1
    v_add3_u32 v10, v10, v9, 16
    v_mul_u32_u24 v10, 160, v10
    v_add_u32 v10, s55, v10
    v_lshl_add_u32 v3, v27, 3, v2
    v_lshl_add_u32 v11, v27, 3, v10
    v_lshrrev_b32 v0, 1, v27
    v_lshlrev_b32 v0, 3, v0
    v_lshl_add_u32 v0, v27, 4, v0
    v_add_u32 v2, v2, v0
    v_add_u32 v10, v10, v0
    v_xor_b32 v0, 8, v2
    v_xor_b32 v27, 8, v10
    """)
    def rd(c, n, d):
        ks, j = divmod(n, 5)
        out = []
        for half in range(2):
            if ks < 4: ad, o = (2, 0, 2, 0, 3)[j], (80 * (ks >> 1) + 20 * (2 * (ks & 1) + half)) * 160
            else: ad, o = (10, 27, 10, 27, 11)[j], 80 * half * 160
            out.append(f"ds_read_b64_tr_b16 {vr(d+2*half,2)}, v{ad} offset:{c*25600 + o + 64*(j>>1)}")
        return "\n".join(out)
    jb = opt("jb", 4)
    gload = f"buffer_load_dword v26, v{BF+1}, s[40:43], s54 offen sc1"
    so = opt("so", 42 if jb else 0)
    first = "s_cmp_lg_u32 s45, 0\ns_cbranch_scc1 F_pre\ns_waitcnt vmcnt(4)\ns_barrier" if jb else "s_barrier"
    assert so or not jb
    assert not (opt("p1", 0) and opt("fo", 1))
    assert jb or not (so and opt("rw", 1))
    def flag(l):
        return f"""s_waitcnt vmcnt(0)
        s_barrier
        s_cmp_lg_u32 s64, 4
        s_cbranch_scc1 {l}
        s_mov_b64 exec, 1
        buffer_store_dword v7, v7, s[40:43], s97 offen sc1
        s_mov_b64 exec, -1"""
    a(f"""
    s_cmp_ge_u32 s2, 208
    s_cbranch_scc1 F_pre
    s_cmp_ge_u32 s2, 128
    s_cbranch_scc1 F_ssm
    s_cmp_eq_u32 s45, 0
    s_cbranch_scc1 {"F_lo" if opt("ep", 0) else "F_pre"}
    s_barrier
    s_branch F_pre
    F_lo:
    {"s_cmp_lg_u32 s64, 0" if opt("p1", 0) else ""}
    {"s_cbranch_scc1 F_pre" if opt("p1", 0) else ""}
    s_mov_b64 exec, 0xff0000
    buffer_load_dword v25, v{BF}, s[40:43], 0 offen sc1
    s_mov_b64 exec, -1
    s_branch F_pre
    F_ssm:
    {first if so else flag("F_pre")}
    F_pre:
    {"" if opt("gp", 1) else gload}
    """)
    def freg(c, n): return FR + 4 * NP * c + 4 * (n % NP)
    for c in range(2):
        for n in range(NP):
            a(rd(c, n, freg(c, n)))
            if c == 0 and n < 20: a(f"v_mov_b32 v{ACC+n}, 0")
            if c * NP + n + 1 == so:
                a(f"s_sub_u32 s3, s2, 128\ns_cmp_ge_u32 s3, 80\ns_cbranch_scc1 F_mid\n{flag('F_mid')}\nF_mid:")
    a(f"""
    s_mov_b32 s56, 3
    s_mov_b32 s57, 0
    s_mov_b64 s[60:61], -1
    s_mul_i32 s55, s44, {3072+5120}
    s_add_u32 s55, s55, s59
    v_lshrrev_b32 v12, 1, v9
    v_lshlrev_b32 v12, 7, v12
    v_lshl_add_u32 v12, v9, 8, v12
    v_lshl_add_u32 v12, v8, 3, v12
    v_add_u32 v12, s55, v12
    v_xor_b32 v13, 128, v12
    v_add_u32 v14, s55, v5
    v_add_u32 v15, s55, v4
    v_mul_u32_u24 v16, 1280, v8
    v_lshl_add_u32 v17, v9, 3, v16
    v_lshl_add_u32 v16, v9, 4, v16
    s_mul_i32 s46, s46, {16*1280}
    s_lshl_b32 s51, s51, 1
    s_add_u32 s46, s46, s51
    s_waitcnt lgkmcnt(0)
    """)
    srd(a, 36, 26, 2621440)
    stamp(a, prof, 9)
    bflag = f"buffer_load_dword v25, v{BF}, s[40:43], 0 offen sc1"
    a(f"""
    s_mov_b32 s96, 0
    s_cmp_lg_u32 s45, 0
    s_cbranch_scc1 F_go
    s_mov_b32 s99, 0xff0000
    s_cmp_ge_u32 s2, 128
    s_cbranch_scc1 F_id0
    s_waitcnt vmcnt(0)
    s_barrier
    {"s_mov_b32 s99, 0" if opt("gb", 0) else ""}
    {"s_cmp_lg_u32 s64, 0" if opt("p1", 0) else ""}
    {"s_cbranch_scc1 F_seen" if opt("p1", 0) else ""}
    {"s_mov_b64 exec, 0xff0000" if opt("ep", 0) else ""}
    {"s_branch F_chk" if opt("ep", 0) else ""}
    F_id0:
    {"s_cmp_lg_u32 s64, 0" if opt("p1", 0) else ""}
    {"s_cbranch_scc1 F_seen" if opt("p1", 0) else ""}
    F_idle:
    s_or_b32 exec_lo, s99, {0 if opt("bg", 1) else 0x3ff}
    s_mov_b32 exec_hi, 0
    {bflag}
    s_add_u32 s57, s57, 1
    s_waitcnt vmcnt(0)
    F_chk:
    v_cmp_eq_u32 vcc, -1, v25
    s_mov_b64 exec, -1
    s_and_b32 s3, vcc_lo, 0x3ff
    s_or_b32 s3, s3, {1 if opt("bg", 1) else "s96"}
    s_cbranch_scc1 F_nob
    s_mov_b32 s96, 1
    """)
    issueC()
    a(f"""
    F_nob:
    s_and_b32 s3, vcc_lo, s99
    s_cbranch_scc0 F_seen
    s_cmp_lt_u32 s57, {POLL_MAX}
    s_cbranch_scc1 F_idle
    F_seen:
    s_mov_b32 s57, 0
    """)
    if opt("fo", 1):
        nb = opt("fn", 2)
        for c in range(nb): issue(c)
        a("s_barrier")
        for c in range(nb, 2): issue(c)
        a("s_branch F_in")
    a("F_go:\ns_barrier")
    def run(h):
        t = "FH" if h else "FL"
        if opt("br", 1) == 2:
            a(f"s_or_b32 s3, s96, s45\ns_cbranch_scc1 F_nrp\ns_mov_b64 exec, 0x3ff\n{bflag}\ns_mov_b64 exec, -1\nF_nrp:")
        for c in range(2): issue(c, ("sc1", "", "sc0", "nt")[opt("op", 0)])
        a("F_in:")
        if opt("gp", 1): a(gload)
        if opt("br", 1) == 1:
            a(f"s_or_b32 s3, s96, s45\ns_cbranch_scc1 F_nrp\ns_mov_b64 exec, 0x3ff\n{bflag}\ns_mov_b64 exec, -1\nF_nrp:")
        stamp(a, prof, 10)
        a(f"{t}_loop:")
        for c in range(2):
            o = OF + 20 * c
            a(f"""
            s_bitcmp1_b32 s56, {c}
            s_cbranch_scc0 {t}_n{c}
            s_waitcnt vmcnt({(6 + opt("gp", 1)) * (1 - c)})
            v_max3_u32 v1, v{o}, v{o+4}, v{o+8}
            v_max3_u32 v1, v1, v{o+12}, v{o+16}
            v_max_u32 v1, v1, v{o+18}
            v_cmp_eq_u32 vcc, -1, v1
            s_and_b64 vcc, vcc, s[60:61]
            s_cbranch_scc1 {t}_n{c}
            s_bitset0_b32 s56, {c}
            """)
            if c == 2 - opt("br", 1):
                a("v_cmp_eq_u32 vcc, -1, v25\ns_or_b32 s3, s96, s45\ns_and_b32 vcc_lo, vcc_lo, 0x3ff\ns_or_b32 s3, s3, vcc_lo\ns_cbranch_scc1 F_nbr\ns_mov_b32 s96, 1")
                issueC()
                a("F_nbr:")
            for n in range(25):
                ks, j = divmod(n, 5)
                if n == NP: a("s_waitcnt lgkmcnt(0)")
                mfma16(a, ACC + 4 * j, freg(c, n), o + 4 * ks, ACC + 4 * j)
                if 2 <= n < 2 + 25 - NP: a(rd(c, NP + n - 2, freg(c, NP + n - 2)))
            a(f"{t}_n{c}:")
        a(f"""
        s_cmp_eq_u32 s56, 0
        s_cbranch_scc1 {t}_done
        s_bitcmp1_b32 s56, 0
        s_cbranch_scc0 {t}_r1
        """)
        issue(0)
        a(f"{t}_r1:\ns_bitcmp1_b32 s56, 1\ns_cbranch_scc0 {t}_r2")
        issue(1)
        a(f"""
        {t}_r2:
        s_add_u32 s57, s57, 1
        s_cmp_lt_u32 s57, {POLL_MAX}
        s_cselect_b64 s[60:61], -1, 0
        s_waitcnt vmcnt(0)
        s_branch {t}_loop
        {t}_done:
        """)
        stamp(a, prof, 13)
    def end():
        stamp(a, prof, 12)
        stamp_out(a, prof, 14, 65)
        a("s_endpgm")
    B, P = OF, OF + 12
    run(0)
    a(f"""
    v_cmp_eq_u32 vcc, -1, v26
    s_cbranch_vccnz F_gw
    F_gok:
    s_cmp_lg_u32 s45, 0
    s_cbranch_scc1 F_hi
    s_cmp_lg_u32 s96, 0
    s_cbranch_scc1 F_bin
    s_mov_b32 s57, 0
    s_mov_b64 exec, 0x3ff
    F_bw:
    {bflag}
    s_add_u32 s57, s57, 1
    s_cmp_lt_u32 s57, {POLL_MAX}
    s_waitcnt vmcnt(0)
    s_cbranch_scc0 F_bok
    v_cmp_eq_u32 vcc, -1, v25
    s_cbranch_vccnz F_bw
    F_bok:
    s_mov_b64 exec, -1
    """)
    issueC()
    a(f"""
    F_bin:
    s_waitcnt vmcnt(0)
    ds_read_b64_tr_b16 v[16:17], v12
    ds_read_b64_tr_b16 v[18:19], v13
    ds_read_b64_tr_b16 v[20:21], v12 offset:1024
    ds_read_b64_tr_b16 v[22:23], v13 offset:1024
    ds_read_b64_tr_b16 v[24:25], v14 offset:2048
    """)
    stamp(a, prof, 11)
    for j in range(5):
        a("s_waitcnt lgkmcnt(4)")
        d = ACC + 4 * j
        for p in range(2):
            a(f"v_lshlrev_b32 v{P+4*j+2*p}, 16, v{16+2*j+p}\nv_and_b32 v{P+4*j+2*p+1}, 0xffff0000, v{16+2*j+p}")
        for r in range(4): a(f"v_sub_f32 v{d+r}, v{d+r}, v{P+4*j+r}")
        for r in range(4): a(f"v_fmac_f32 v{P+4*j+r}, v{d+r}, v26")
        a(f"ds_write_b128 v15, {vr(P+4*j,4)} offset:{3072+1024*j}")
    a("s_waitcnt lgkmcnt(0)\ns_barrier")
    end()
    a("F_hi:")
    a("v_cmp_lt_u32 vcc, 1, v9\ns_barrier")
    stamp(a, prof, 11)
    for j in range(5): a(f"ds_read_b128 {vr(FR+4*j,4)}, v15 offset:{3072+1024*j}")
    for j in range(5):
        a(f"s_waitcnt lgkmcnt({4-j})")
        for r in range(4): a(f"v_fmac_f32 v{FR+4*j+r}, v{ACC+4*j+r}, v26")
        for p in range(2): a(f"v_cvt_pk_bf16_f32 v{B+2*j+p}, v{FR+4*j+2*p}, v{FR+4*j+2*p+1}")
        if j & 1:
            for p in range(4): a(f"v_cndmask_b32 v{P+2*j-2+p}, v{B+2*j-2+p}, v{B+2*j-2+(p^2)}, vcc")
            a(f"buffer_store_dwordx4 {vr(P+2*j-2,4)}, v16, s[36:39], s46 offen offset:{32*(j-1)}")
    a(f"buffer_store_dwordx2 {vr(B+8,2)}, v17, s[36:39], s46 offen offset:128")
    end()
    a(f"""
    F_gw:
    s_sleep 8
    buffer_load_dword v26, v{BF+1}, s[40:43], s54 offen sc1
    s_add_u32 s57, s57, 1
    s_cmp_ge_u32 s57, {POLL_MAX}
    s_waitcnt vmcnt(0)
    s_cbranch_scc1 F_gok
    v_cmp_eq_u32 vcc, -1, v26
    s_cbranch_vccnz F_gw
    s_branch F_gok
    """)
```

```python
from common import *
import fin

RS = 2064
BROW = 24 * RS
XB = 56 * RS
US = 4608
UB = 163840 - 8 * US
TB, TS = 102400, 3072
EO, FO = 2176, 2880
LOG2E = "0x3fb8aa3b"

def cmul(a, d, x, y, t):
    a(f"v_pk_mul_f32 {vr(t,2)}, {vr(x,2)}, {vr(y,2)} op_sel:[0,0] op_sel_hi:[0,1]")
    a(f"v_pk_fma_f32 {vr(d,2)}, {vr(x,2)}, {vr(y,2)}, {vr(t,2)} op_sel:[1,1,0] op_sel_hi:[1,0,1] neg_lo:[1,0,0]")

def cmul2(a, jobs):
    for d, x, y, t in jobs:
        a(f"v_pk_mul_f32 {vr(t,2)}, {vr(x,2)}, {vr(y,2)} op_sel:[0,0] op_sel_hi:[0,1]")
    for d, x, y, t in jobs:
        a(f"v_pk_fma_f32 {vr(d,2)}, {vr(x,2)}, {vr(y,2)}, {vr(t,2)} op_sel:[1,1,0] op_sel_hi:[1,0,1] neg_lo:[1,0,0]")

def ssm_role(a, prof=False, st=""):
    lg = Q(a, "lgkmcnt", 15); vm = Q(a, "vmcnt", 63)
    R, PRM, X = 12, 28, 32
    a(f"""
    s_lshl_b32 s52, s50, 3
    s_add_u32 s52, s52, s51
    s_lshl_b32 s53, s52, 8
    v_lshl_add_u32 v2, v1, 2, s53
    s_lshl_b32 s54, s52, 1
    s_and_b32 s55, s54, 0xfffffffc
    s_load_dword s56, s[20:21], s55
    s_load_dword s57, s[22:23], s55
    global_load_dword v{PRM}, v2, s[12:13]
    global_load_dword v{PRM+1}, v2, s[14:15]
    global_load_dword v{PRM+2}, v2, s[16:17]
    global_load_dword v{PRM+3}, v2, s[18:19]
    s_and_b32 s58, s50, 7
    s_lshl_b32 s58, s58, 8
    v_lshl_add_u32 v3, v0, 2, s58
    v_and_b32 v3, 2047, v3
    v_mul_u32_u24 v251, 1280, v3
    v_bfe_u32 v250, v1, 1, 2
    v_or_b32 v250, v250, v3
    s_and_b32 s58, s50, {opt("gr", 3)}
    v_xor_b32 v250, s58, v250
    s_lshl_b32 s59, s50, 4
    s_lshl_b32 s97, s50, 7
    s_add_u32 s97, s97, {WS_FLAG}
    """)
    for i in range(4): vm.push("prm")
    if opt("l2pf", 1):
        fin.pf_first(a, 254); vm.push("pf")
    def gather(i):
        if opt("gx", 1):
            a(f"v_xor_b32 v{R+4*i}, {i}, v250\nv_mul_u32_u24 v{R+4*i}, 1280, v{R+4*i}")
            a(f"buffer_load_dwordx4 {vr(R+4*i,4)}, v{R+4*i}, s[32:35], s59 offen")
        else: a(f"buffer_load_dwordx4 {vr(R+4*i,4)}, v251, s[32:35], s59 offen offset:{1280*i}")
        vm.push("g")
    late = opt("gl", 1)
    if not late:
        for i in range(4): gather(i)
    if late >= 4:
        a("s_cmp_lt_u32 s51, 4\ns_cbranch_scc1 S_g0")
        if opt("gw", 0): a("s_waitcnt vmcnt(1)")
        for i in range(4): gather(i)
        a("S_g0:")
    a(f"""
    v_lshlrev_b32 v3, 1, v3
    v_add_u32 v3, {UB+512}, v3
    v_and_b32 v5, 15, v1
    v_lshrrev_b32 v6, 4, v1
    s_mul_i32 s60, s51, {US}
    s_add_u32 s60, s60, {UB}
    v_mov_b32 v8, 0
    v_mov_b32 v9, 0
    v_mov_b32 v10, 0
    v_mov_b32 v11, 0
    v_lshl_add_u32 v7, v1, 3, s60
    ds_write_b64 v7, v[8:9]
    s_lshl_b32 s61, s51, 10
    s_add_u32 s61, s61, {XB}
    v_lshl_add_u32 v7, v1, 2, s61
    v_mov_b32 v50, 0x3f80
    v_mov_b32 v51, 0x3f800000
    """)
    for h in range(1, 5):
        a(f"""
        v_subrev_u32 v48, {32-h}, v1
        v_subrev_u32 v49, {33-h}, v1
        v_cmp_ge_u32 vcc, {2*h}, v48
        v_cmp_ge_u32 s[62:63], {2*h}, v49
        s_nop 0
        v_cndmask_b32 v48, 0, v50, vcc
        v_cndmask_b32 v49, 0, v51, s[62:63]
        v_or_b32 v{51+h}, v48, v49
        ds_write_b32 v7, v{51+h} offset:{256*(h-1)}
        """)
    a(f"""
    v_lshlrev_b32 v2, 3, v6
    v_sub_u32 v2, v5, v2
    v_add_u32 v2, 24, v2
    v_lshlrev_b32 v2, 2, v2
    v_add_u32 v7, s61, v2
    """)
    for h in range(1, 5):
        o = 64 * (h - 1) + (20 if h == 1 else 16)
        a(f"ds_read2_b32 {vr(X+4*(h-1),2)}, v7 offset0:{o} offset1:{o-2}")
        a(f"ds_read2_b32 {vr(X+4*(h-1)+2,2)}, v7 offset0:{o-4} offset1:{o-6}")
    a(f"""
    v_and_b32 v48, 31, v1
    v_lshrrev_b32 v49, 5, v1
    v_mul_u32_u24 v4, {RS}, v48
    s_lshl_b32 s53, s51, 8
    v_lshl_add_u32 v4, v49, 4, v4
    v_add_u32 v4, s53, v4
    s_waitcnt lgkmcnt(0)
    s_and_b32 s54, s54, 2
    s_lshl_b32 s54, s54, 3
    s_lshr_b32 s56, s56, s54
    s_lshl_b32 s56, s56, 16
    s_lshr_b32 s57, s57, s54
    s_lshl_b32 s57, s57, 16
    v_mov_b32 v60, {LOG2E}
    v_mul_f32 v61, s56, v60
    v_exp_f32 v61, v61
    s_nop 0
    v_cvt_pk_bf16_f32 v61, v61, v61
    v_and_b32 v61, 0xffff0000, v61
    v_mul_f32 v62, v61, v60
    v_mul_f32 v63, 0.15915494, v61
    v_add_f32 v61, v61, v61
    """)
    stamp(a, prof, 1)
    def older(gs):
        l = a.label("sg")
        a(f"s_cmp_ge_u32 s51, 4\ns_cbranch_scc1 {l}")
        for i in gs: gather(i)
        a(f"{l}:")
    if late >= 4:
        a("s_cmp_ge_u32 s51, 4\ns_cbranch_scc1 S_prm\ns_waitcnt vmcnt(1)\nS_prm:\ns_waitcnt vmcnt(5)")
    else: vm.wait("prm")
    OP, KA = 128, 192
    W1, W8, W256, A0 = 64, 66, 68, 70
    tmpi = [0]
    def put(src, rows):
        t = 56 + tmpi[0] % 4; tmpi[0] += 1
        a(f"v_cvt_pk_bf16_f32 v{t}, v{src}, v{src+1}")
        for r in rows: a(f"ds_write_addtid_b32 v{t} offset:{r*RS}")
    for p in range(2):
        if late == 3 and p == 0: gather(0)
        if opt("kp", 1): a(f"s_setprio {3-2*p}")
        for i in range(4):
            a(f"v_lshlrev_b32 v{48+i}, 16, v{PRM+i}" if p == 0 else f"v_and_b32 v{48+i}, 0xffff0000, v{PRM+i}")
        a(f"""
        v_mul_f32 v48, v48, v60
        v_exp_f32 v48, v48
        v_mul_f32 v49, v49, v63
        v_mul_f32 v{A0}, v50, v61
        v_mul_f32 v{A0+1}, v51, -v61
        v_cvt_pk_bf16_f32 v48, v48, v48
        v_and_b32 v48, 0xffff0000, v48
        v_mul_f32 v48, v48, -v62
        v_mul_f32 v50, 0x41000000, v49
        v_mul_f32 v51, 0x43800000, v49
        v_mul_f32 v52, 0x41000000, v48
        v_mul_f32 v53, 0x43800000, v48
        v_fract_f32 v49, v49
        v_fract_f32 v50, v50
        v_fract_f32 v51, v51
        v_exp_f32 v48, v48
        v_exp_f32 v52, v52
        v_exp_f32 v53, v53
        v_cos_f32 v{W1}, v49
        v_sin_f32 v{W1+1}, v49
        v_cos_f32 v{W8}, v50
        v_sin_f32 v{W8+1}, v50
        v_cos_f32 v{W256}, v51
        v_sin_f32 v{W256+1}, v51
        s_mov_b32 m0, s53
        v_mul_f32 v{W1}, v{W1}, v48
        v_mul_f32 v{W1+1}, v{W1+1}, -v48
        v_mul_f32 v{W8}, v{W8}, v52
        v_mul_f32 v{W8+1}, v{W8+1}, v52
        v_mul_f32 v{W256}, v{W256}, v53
        v_mul_f32 v{W256+1}, v{W256+1}, -v53
        """)
        rowA = {0:[0],1:[1],2:[2],3:[3],4:[4,8],5:[5],6:[6],7:[7],8:[12],256:[9],258:[10],260:[11,13],262:[14],264:[15],
                516:[16],520:[17],1032:[18],1544:[19],772:[20],776:[21],1288:[22],1800:[23]}
        reg = {0: A0}; nxt = [72]
        def R_(t):
            reg[t] = nxt[0]; nxt[0] += 2; return reg[t]
        W2, W512, T0, T1, T2 = 118, 120, 122, 124, 126
        cmul2(a, [(R_(1), A0, W1, T0), (W2, W1, W1, T1), (W512, W256, W256, T2)])
        put(A0, rowA[0])
        for t in (2, 4, 6):
            cmul2(a, [(R_(t), reg[t-2], W2, T0), (R_(t+1), reg[t-1], W2, T1), (R_(254+t), reg[t-2], W256, T2)])
            put(reg[t-1], rowA[t-1])
            put(reg[t], rowA[t]); put(reg[254+t], rowA[254+t])
        cmul2(a, [(R_(8), reg[6], W2, T0), (R_(262), reg[6], W256, T1), (R_(516), reg[4], W512, T2)])
        put(reg[7], rowA[7])
        cmul2(a, [(R_(264), reg[8], W256, T0), (R_(520), reg[8], W512, T1), (R_(772), reg[260], W512, T2)])
        for t in (8, 262, 516): put(reg[t], rowA[t])
        cmul2(a, [(R_(776), reg[264], W512, T0), (R_(1032), reg[520], W512, T1), (W2, W8, W8, T2)])
        for t in (264, 520, 772): put(reg[t], rowA[t])
        B3, W32 = 114, 116
        cmul2(a, [(R_(1288), reg[776], W512, T0), (R_(1544), reg[1032], W512, T1), (B3, W2, W8, T2)])
        for t in (776, 1032): put(reg[t], rowA[t])
        cmul2(a, [(R_(1800), reg[1288], W512, T0), (W32, W2, W2, T1)])
        for t in (1288, 1544, 1800): put(reg[t], rowA[t])
        assert nxt[0] <= 114
        if late == 1: gather(2 * p)
        if late == 2 and p == 0: gather(0); gather(1)
        if late == 3 and p == 0: gather(1); gather(2)
        if late == 5 and p == 1: older([0, 1])
        if late == 6 and p == 1: older([1])
        if opt("kp", 1) == 2: a(f"s_setprio {2-2*p}")
        a(f"s_add_u32 m0, s53, {BROW}\nv_mov_b32 v55, 0x3f80")
        if p == 0: a("ds_write_addtid_b32 v55 offset:0")
        cur = [W8, W2, B3, W32]
        buf = [[72, 74, 76, 78], [80, 82, 84, 86]]
        tmp = [88, 90, 92, 94]
        for g in range(8):
            n = 4 if g < 6 else (3 if g == 6 else 0)
            new = buf[g & 1]
            cmul2(a, [(new[i], cur[i], W32, tmp[i]) for i in range(n)])
            for i in range(4 if g < 7 else 3): put(cur[i], [4*g+1+i])
            cur = new
        if late == 1: gather(2 * p + 1)
        if late == 2 and p == 0: gather(2); gather(3)
        if late == 3 and p == 0: gather(3)
        if late == 5 and p == 1: older([2, 3])
        if late == 6: older([[0], [2]][p])
        for ks in range(8):
            a(f"ds_read_b128 {vr(OP+8*ks,4)}, v4 offset:{32*ks}")
            a(f"ds_read_b128 {vr(OP+8*ks+4,4)}, v4 offset:{BROW+32*ks}")
        for ks in range(8):
            a(f"s_waitcnt lgkmcnt({14-2*ks})")
            mfma32(a, KA, OP+8*ks, OP+8*ks+4, None if (p == 0 and ks == 0) else KA)
    stamp(a, prof, 2)
    if late == 4: older(range(4))
    if late == 6: older([3])
    a(f"""
    s_mov_b32 s46, 0x05040100
    s_mov_b32 s47, 0x07060302
    s_mul_i32 s53, s51, {TS}
    s_add_u32 s53, s53, {TB}
    v_lshl_add_u32 v48, v1, 4, s53
    v_and_b32 v49, 31, v1
    v_lshrrev_b32 v50, 5, v1
    v_lshlrev_b32 v51, 5, v49
    v_lshl_add_u32 v51, v50, 4, v51
    v_add_u32 v51, s53, v51
    v_and_b32 v52, 1, v1
    v_mul_u32_u24 v52, 192, v52
    v_lshl_add_u32 v52, v50, 6, v52
    v_and_b32 v53, 30, v1
    v_lshl_add_u32 v52, v53, 1, v52
    v_add_u32 v52, s53, v52
    v_lshl_add_u32 v53, v1, 1, s53
    v_mov_b32 v54, s53
    s_add_u32 s54, s53, 4
    v_add_u32 v2, s54, v2
    v_add_u32 v4, 1024, v2
    v_add_u32 v7, 2048, v2
    v_lshlrev_b32 v253, 2, v6
    v_sub_u32 v253, v5, v253
    s_add_u32 s54, s53, {EO+52}
    v_lshl_add_u32 v253, v253, 2, s54
    """)
    ro = opt("ro", 1)
    def transpose():
        a("s_waitcnt vmcnt(0)")
        if opt("gx", 1):
            a("v_and_b32 v251, 1, v250\nv_and_b32 v250, 2, v250\nv_cmp_ne_u32 s[44:45], 0, v250\nv_cmpx_ne_u32 vcc, 0, v251")
            for d in range(4): a(f"v_swap_b32 v{R+d}, v{R+4+d}\nv_swap_b32 v{R+8+d}, v{R+12+d}")
            a("s_mov_b64 exec, s[44:45]")
            for d in range(8): a(f"v_swap_b32 v{R+d}, v{R+8+d}")
            a("s_mov_b64 exec, -1")
        for c in range(8):
            d, sel = c >> 1, 46 + (c & 1)
            t = 72 + 2 * c
            a(f"v_perm_b32 v{t}, v{R+4+d}, v{R+d}, s{sel}\nv_perm_b32 v{t+1}, v{R+12+d}, v{R+8+d}, s{sel}")
            a(f"ds_write_b64 v3, {vr(t,2)} offset:{c*US}")
    def tab1():
        a(f"""
        ds_write_b128 v48, v[8:11]
        ds_write_b128 v48, v[8:11] offset:2048
        ds_write_b128 v51, v[56:59] offset:64
        ds_write_b128 v51, v[60:63] offset:1088
        s_mov_b64 exec, 1
        ds_write_b32 v54, v55 offset:60
        s_mov_b64 exec, -1
        """)
    def tab2():
        a(f"""
        ds_write_b32 v52, v64 offset:{EO+64}
        ds_write_b16 v53, v65 offset:{EO+384+64}
        ds_write_b16_d16_hi v53, v65 offset:{EO+384+64+128}
        s_mov_b32 exec_lo, 0
        s_mov_b32 exec_hi, 0x80000000
        ds_write2_b32 v54, v63, v63 offset0:0 offset1:1
        ds_write2_b32 v54, v66, v67 offset0:2 offset1:{(FO+72-2112)//4}
        ds_write2_b32 v54, v68, v69 offset0:{(FO+76-2112)//4} offset1:{(FO+80-2112)//4}
        s_mov_b64 exec, -1
        """.replace("s_mov_b32 exec_lo, 0", "v_add_u32 v54, 2112, v54\ns_mov_b32 exec_lo, 0"))
    if ro == 0: transpose()
    a(f"""
    s_waitcnt vmcnt(4)
    v_lshlrev_b32 v70, 5, v5
    v_and_b32 v254, 1, v6
    v_lshl_add_u32 v254, v254, 9, v70
    v_lshrrev_b32 v71, 1, v6
    v_lshl_add_u32 v254, v71, 4, v254
    v_lshl_add_u32 v70, v6, 4, v70
    v_add_u32 v70, s60, v70
    s_lshl_b32 s53, s52, 12
    s_add_u32 s53, s53, {WS_BT}
    """)
    fin.tile_ids(a)
    WA = [28, 29, 30, 31, 252]
    fin.wo_addr(a, WA, 72, 73)
    a(f"""
    s_mov_b64 exec, 1
    v_add_f32 v{KA}, s57, v{KA}
    s_mov_b64 exec, -1
    v_cvt_pk_bf16_f32 v55, v{KA}, 0
    """)
    for i in range(4): a(f"v_cvt_pk_bf16_f32 v{56+i}, v{KA+i+1}, v{KA+i}")
    for i, (lo, hi) in enumerate([(5,5),(6,5),(7,6),(7,7)]): a(f"v_cvt_pk_bf16_f32 v{60+i}, v{KA+lo}, v{KA+hi}")
    a(f"""
    v_cvt_pk_bf16_f32 v64, v{KA+8}, v{KA+9}
    v_cvt_pk_bf16_f32 v65, v{KA+10}, v{KA+11}
    v_and_b32 v66, 0xffff0000, v63
    v_lshrrev_b32 v67, 16, v64
    v_and_b32 v69, 0xffff0000, v64
    v_or_b32 v68, v67, v69
    """)
    if ro == 2: a("s_barrier"); tab1(); tab2()
    if ro: transpose()
    a(f"""
    v_mov_b32 v3, v70
    s_mul_i32 s44, s64, 5120
    s_mul_i32 s45, s64, {32*1280}
    s_add_u32 s46, s45, {256*1280}
    s_add_u32 s47, s45, {512*1280}
    s_waitcnt lgkmcnt(0)
    """)
    stamp(a, prof, 3)
    a(f"s_setprio {opt('sp', 1)}\ns_barrier")
    if ro < 2: tab1()
    T, E, ACC, F, BX, OUT = 72, 120, 160, 192, 228, 24
    G, PK = [224, 104], [12, 108]
    T32, TFIX = 96, 100
    def treg(m): return T + 8 * ((m % 16) // 2 % 3) + (4 if m >= 16 else 0)
    def rd2(d, addr, o, step, tag):
        return [(f"ds_read2_b32 {vr(d,2)}, v{addr} offset0:{o+3*step} offset1:{o+2*step}", None),
                (f"ds_read2_b32 {vr(d+2,2)}, v{addr} offset0:{o+step} offset1:{o}", tag)]
    def ld(x): a(x[0]); lg.push(x[1])
    def rdT(mu): return rd2(treg(mu), 2, 16 * mu, 2, None) + rd2(treg(mu + 16), 4, 16 * mu, 2, ("T", mu))
    nearq = [(mu, j) for mu in range(0, 16, 2) for j in range(8)] + [(0, j) for j in range(6)]
    def ldF(n):
        mu, j = nearq[n]
        ld((f"ds_read_b128 {vr(F+4*(n%8),4)}, v3 offset:{480+512*j-32*mu}", ("F", n)))
    def ldG(j): ld((f"ds_read_b128 {vr(G[j&1],4)}, v3 offset:{464+512*j}", ("G", j)))
    for i in range(5 * (ro < 2)): lg.push(None)
    for x in rdT(0): ld(x)
    for n in range(3): ldF(n)
    if ro < 2: tab2()
    for i in range(6 * (ro < 2)): lg.push(None)
    for n in range(3, 7): ldF(n)
    stamp(a, prof, 4)
    if prof: lg.q = []
    EA = {d: E + 4 * (d - 2) for d in (2, 3, 4)}
    EB = {d: E + 12 + 4 * (d - 2) for d in (2, 3, 4)}
    E3 = {d: E + 24 + 4 * (d - 4) for d in (4, 5, 6, 7)}
    far = rd2(T32, 7, 0, 2, "E") + rd2(TFIX, 7, (FO - 2048) // 4, 2, "E")
    for d in (2, 3, 4): far += rd2(EA[d], 253, 16 * (d - 2), 1, "E") + rd2(EB[d], 253, 48 + 16 * (d - 2), 1, "E")
    for d in (4, 5, 6, 7): far += rd2(E3[d], 253, 96 + 16 * (d - 4), 1, "E")
    last = {}
    def mf(d, x, y, c):
        mfma16(a, d, x, y, c); last[d] = len(a.lines)
    def need(*ds):
        n = 8 - min(sum(1 for l in a.lines[last[d]:] if l.strip()) for d in ds)
        if n > 0: a(f"s_nop {n-1}")
    started = set()
    def acc(i, x, y):
        mf(ACC+4*i, x, y, ACC+4*i if i in started else None); started.add(i)
    def store(i):
        o = OUT + 2 * (i & 1)
        need(ACC + 4 * i)
        a(f"v_cvt_pk_bf16_f32 v{o}, v{ACC+4*i}, v{ACC+4*i+1}\nv_cvt_pk_bf16_f32 v{o+1}, v{ACC+4*i+2}, v{ACC+4*i+3}")
        if i & 1:
            a(f"s_nop 1\nv_permlane16_swap_b32 v{OUT}, v{OUT+2}\nv_permlane16_swap_b32 v{OUT+1}, v{OUT+3}")
            a(f"buffer_store_dwordx4 {vr(OUT,4)}, v254, s[40:43], s53 offen offset:{512*(i-1)} sc1")
    dma = fin.wo_group(WA, 44, 45, 0) + fin.wo_group(WA, 44, 46, 40960)
    dm, fr = opt("dm", 0), opt("fr", 0)
    if dm: dma = []
    tq = []
    for n in range(64):
        mu, j = nearq[n]
        if j == 0:
            lg.wait(("T", mu), ("F", n))
            nf = 4 if not fr else (8 if mu == 14 else 0)
            tq = (rdT(mu + 2) if mu < 14 else []) + far[:nf]; far = far[nf:]
        else: lg.wait(("F", n))
        f = F + 4 * (n % 8)
        acc(j, treg(mu), f)
        if tq: ld(tq.pop(0))
        if j <= 6: acc(j + 1, treg(mu + 16), f)
        if n + 7 < len(nearq): ldF(n + 7)
        if n >= opt("sd", 8) and n % 4 == 1 and dma: a(dma.pop(0))
        if n == opt("sd", 8) + 44 and not dm:
            a("s_cmp_ge_u32 s64, 4\ns_cbranch_scc1 S_nodma")
            for x in fin.wo_group(WA, 44, 47, 81920): a(x)
            a("S_nodma:")
        if n in (58, 60): ldG((n - 58) // 2)
    assert not dma
    for x in far: ld(x)
    fin.ready_issue(a, 8, 9)
    a("s_setprio 0")
    if dm:
        a("s_cmp_ge_u32 s64, 4\ns_cbranch_scc1 S_nodma\ns_mov_b32 s46, 0\nS_dma:")
        for x in fin.wo_group(WA, 44, 45, 0): a(x)
        a(f"s_add_u32 s44, s44, 20480\ns_add_u32 s45, s45, {128*1280}\ns_add_u32 s46, s46, 1\ns_cmp_lt_u32 s46, 5\ns_cbranch_scc1 S_dma\nS_nodma:")
    stamp(a, prof, 6)
    if prof: lg.q = []
    def box(j):
        f = F + 4 * ((64 + j) % 8); g = G[j & 1]
        lg.wait(("F", 64 + j), ("G", j), "E")
        mf(BX, f, X, None); mf(BX+4, f, X+4, None); mf(BX+8, g, X, None); mf(BX+12, g, X+4, None)
        if j <= 3: mf(BX+16, f, X+8, None); mf(BX+20, g, X+12, None)
        if j + 2 <= 5: ldG(j + 2)
        acc(j + 2, T32, f)
        if j <= 3: acc(j + 4, TFIX, f)
    def pack(j):
        out = []
        for k in range(3 if j <= 3 else 2):
            for r in range(4): out.append(((BX+8*k, BX+8*k+4), f"v_cvt_pk_bf16_f32 v{PK[j&1]+4*k+r}, v{BX+8*k+r}, v{BX+8*k+4+r}"))
        return out
    box(0)
    store(0); store(1)
    for dep, x in pack(0): need(*dep); a(x)
    for j in range(6):
        pk = []
        if j < 5: box(j + 1); pk = pack(j + 1)
        else: a("s_nop 1")
        p = PK[j & 1]
        ops = [(j+d, p, EA[d]) for d in (2, 3, 4)] + [(j+d, p+4, EB[d]) for d in (2, 3, 4)] + [(j+d, p+8, E3[d]) for d in (4, 5, 6, 7)]
        ops = [o for o in ops if o[0] <= 7]
        ops.sort(key=lambda o: o[0] != j + 2)
        for i, o in enumerate(ops):
            acc(*o)
            for _ in range(2):
                if pk and i >= 1:
                    dep, x = pk.pop(0); need(*dep); a(x)
        for dep, x in pk: need(*dep); a(x)
        if j == 1: fin.ready_wait(a, 8, 9, 44, opt("rw", 1) * (1 + 25 * dm))
        if j + 1 == opt("jb", 4):
            a(f"s_cmp_lt_u32 s64, 4\ns_cbranch_scc1 S_wo\ns_waitcnt vmcnt({1 + (j > 1) + (j > 3)})\ns_barrier\nS_wo:")
        store(j + 2)
    stamp(a, prof, 5)
    a("s_branch FIN_B")
```

```python
from common import *
import fin

SLOT = 36880
WK, WV = 16384, 16384 + 10240 + 16
QB = 3 * SLOT
Q2 = QB - 51200
KVT = 51200
KV32, KS = 45056, 3584
PSTR = 4096
LOG2E = "0x3fb8aa3b"
EPS = "0x358637bd"

def MOD(k): return ("", "sc0", "sc1", "nt", "sc0 sc1", "sc1 nt", "sc0 nt")[opt(k, 0)]

def qloc(s):
    return QB + s * 10240 if s < 5 else Q2 + (s - 5) * 10240

def phi(r, n, tmp):
    out = [f"v_mul_f32 v{tmp+i}, s60, v{r+i}" for i in range(n)]
    for i in range(n): out += [f"v_exp_f32 v{tmp+i}, v{tmp+i} clamp", f"v_max_f32 v{r+i}, s61, v{r+i}"]
    return out + [f"v_add_f32 v{r+i}, v{r+i}, v{tmp+i}" for i in range(n)]

def gemm_role(a, prof=False, ost="sc1"):
    a(f"""
    s_and_b32 s3, s2, 7
    s_lshr_b32 s54, s2, 3
    s_and_b32 s50, s3, 3
    s_lshl_b32 s50, s50, 2
    s_and_b32 s55, s54, 3
    s_add_u32 s50, s50, s55
    s_lshr_b32 s52, s3, 2
    s_lshl_b32 s52, s52, 2
    s_lshr_b32 s54, s54, 2
    s_add_u32 s52, s52, s54
    s_add_u32 s53, s54, s55
    s_and_b32 s53, s53, 3
    s_mul_i32 s53, s53, 5
    s_lshr_b32 s53, s53, 1
    s_mov_b32 s60, {LOG2E}
    s_mov_b32 s61, {EPS}
    s_cmp_lt_u32 s51, 4
    s_cbranch_scc1 G_kv
    """)
    q_waves(a, prof, ost)
    a("G_kv:")
    kv_waves(a, prof)

def lane_addrs(a):
    a("""
    v_and_b32 v5, 15, v1
    v_lshrrev_b32 v6, 4, v1
    v_and_b32 v7, 3, v1
    v_lshrrev_b32 v2, 1, v5
    v_xor_b32 v2, v2, v6
    v_lshlrev_b32 v2, 4, v2
    v_lshl_add_u32 v2, v5, 7, v2
    v_bfe_u32 v3, v1, 2, 3
    v_lshrrev_b32 v4, 5, v1
    v_lshl_add_u32 v3, v4, 4, v3
    v_mul_u32_u24 v3, 160, v3
    """)

def q_waves(a, prof, ost):
    vm = Q(a, "vmcnt", 63); lg = Q(a, "lgkmcnt", 15)
    XO, WO, XS, ACC, WB = 8, 12, 20, 180, 220
    srd(a, 36, 6, 2457600)
    a(f"""
    s_sub_u32 s51, s51, 4
    s_lshl_b32 s54, s50, 2
    s_add_u32 s54, s54, s51
    s_mul_i32 s54, s54, {32*1280}
    v_lshrrev_b32 v2, 3, v1
    v_mul_u32_u24 v2, 1280, v2
    v_lshrrev_b32 v3, 4, v1
    v_and_b32 v4, 7, v1
    v_xor_b32 v3, v3, v4
    v_lshl_add_u32 v2, v3, 4, v2
    v_add_u32 v{XO}, s54, v2
    v_xor_b32 v2, 64, v2
    s_add_u32 s54, s54, {8*1280}
    v_add_u32 v{XO+1}, s54, v2
    v_add_u32 v{XO+2}, {16*1280}, v{XO}
    v_add_u32 v{XO+3}, {16*1280}, v{XO+1}
    s_lshl_b32 s44, s51, 12
    s_lshl_b32 s46, s53, 7
    """)
    def ldx(slot):
        for i in range(4):
            a(f"s_add_u32 m0, s44, {slot*SLOT + i*1024}\ns_nop 0\nbuffer_load_dwordx4 v{XO+i}, s[32:35], s46 offen lds")
    ldx(0)
    a(f"""
    s_and_b32 s54, s51, 1
    s_lshr_b32 s55, s51, 1
    s_mul_i32 s56, s54, {32*3840}
    s_mul_i32 s57, s52, 160
    s_add_u32 s56, s56, s57
    s_mul_i32 s45, s54, 5120
    s_mul_i32 s57, s55, {WV-WK}
    s_add_u32 s48, s45, s57
    s_add_u32 s48, s48, {WK}
    s_mul_i32 s49, s55, 1280
    s_add_u32 s49, s49, 1280
    s_mul_i32 s47, s53, {64*3840}
    s_add_u32 s47, s47, s49
    """)
    for i in range(5):
        a(f"""
        v_add_u32 v2, {64*i}, v1
        v_mul_u32_u24 v3, 6554, v2
        v_lshrrev_b32 v3, 16, v3
        v_mul_u32_u24 v4, 10, v3
        v_sub_u32 v2, v2, v4
        v_lshrrev_b32 v4, 1, v3
        v_xor_b32 v4, v4, v3
        v_and_b32 v4, 4, v4
        v_mul_u32_u24 v4, 3, v4
        v_xor_b32 v3, v3, v4
        v_mul_u32_u24 v3, 3840, v3
        v_lshl_add_u32 v2, v2, 4, v3
        v_add_u32 v{WO+i}, s56, v2
        s_add_u32 m0, s48, {i*1024}
        s_nop 0
        buffer_load_dwordx4 v{WO+i}, s[36:39], s47 offen {MOD('wm')} lds
        """)
    def adv():
        return (f"""
        s_add_u32 s46, s46, 128
        s_add_u32 s47, s47, {64*3840}
        s_cmp_eq_u32 s46, 1280
        s_cselect_b32 s46, 0, s46
        s_cselect_b32 s47, s49, s47
        """)
    def stage_list(s):
        out = [f"s_add_u32 m0, s44, {(s%3)*SLOT + i*1024}\ns_nop 0\nbuffer_load_dwordx4 v{XO+i}, s[32:35], s46 offen lds" for i in range(4)]
        out += [f"s_add_u32 m0, s48, {(s%3)*SLOT + i*1024}\ns_nop 0\nbuffer_load_dwordx4 v{WO+i}, s[36:39], s47 offen lds" for i in range(5)]
        out[0] = adv() + out[0]
        return [(x, ("S", s)) for x in out]
    def emit(x):
        a(x[0]); vm.push(x[1])
    def qpair(n):
        head = f"""
        s_add_u32 s57, s53, s55
        s_add_u32 s57, s57, {2*n}
        s_cmp_ge_u32 s57, 10
        s_cselect_b32 s58, 10, 0
        s_sub_u32 s57, s57, s58
        s_mul_i32 s57, s57, {64*3840}
        s_cmp_eq_u32 s55, 0
        s_mov_b32 s58, {qloc(2*n+1)}
        s_cselect_b32 s58, {qloc(2*n)}, s58
        s_add_u32 s58, s58, s45
        """
        return [((head if i == 0 else "") + f"s_add_u32 m0, s58, {i*1024}\ns_nop 0\nbuffer_load_dwordx4 v{WO+i}, s[36:39], s57 offen lds", ("Q", n)) for i in range(5)]
    for i in range(9): vm.push(("S", 0))
    stream = sum((stage_list(s) for s in range(1, 10)), [])
    for i in range(9 - opt("sk", 0)): emit(stream.pop(0))
    lane_addrs(a)
    a(f"""
    v_add_u32 v2, s44, v2
    v_xor_b32 v4, 64, v2
    v_add_u32 v18, {2*SLOT}, v2
    v_add_u32 v19, {2*SLOT}, v4
    v_mul_u32_u24 v17, 40, v7
    v_add3_u32 v17, v17, v3, 32
    v_lshl_add_u32 v3, v7, 3, v3
    """)
    stamp(a, prof, 1)
    WA = [250, 251, 252, 253, 254]
    side = Asm()
    fin.tile_ids(side)
    side("v_and_b32 v255, 255, v0\ns_lshl_b32 s59, s51, 10")
    fin.wo_addr(side, WA, 248, 249, 256, 255, 92)
    side = [x for x in side.lines if x.strip()]
    dma = sum((qpair(n) for n in range(5)), [])
    dma.insert(15 if opt("qs", 0) else 25, ("v_mov_b32 v248, 0\nglobal_load_dword v249, v248, s[28:29] offset:128 sc1", "R"))
    dma += [(f"s_add_u32 m0, s59, {4096*k}\ns_mov_b32 s98, {(k//5)*128*1280}\nbuffer_load_dwordx4 v{WA[k%5]}, s[92:95], s98 offen lds", ("W", 9)) for k in range(11)]
    for s in range(10):
        if opt("ls", 0) == 3: stamp(a, prof, 102 + s)
        vm.wait(("S", s))
        if opt("ls", 0) == 2: stamp(a, prof, 102 + s)
        a("s_waitcnt lgkmcnt(0)\ns_barrier")
        if s == 0: stamp(a, prof, 2)
        if opt("ls", 0) == 1: stamp(a, prof, 102 + s)
        loads = stream[:9]; del stream[:9]
        if s >= 7:
            c = (opt("c7", 1), opt("c8", 7), opt("c9", 8))[s - 7]
            loads += dma[:c]; del dma[:c]
            assert all(x[1] == "R" or x[1][0] == "S" or x[1][1] < (2, 3, 5)[s - 7] for x in loads)
        fill = []
        for ks in range(2):
            for i in range(2):
                ad = (2, 4)[ks] if s % 3 < 2 else (18, 19)[ks]
                fill.append(f"ds_read_b128 {vr(XS+16*s+8*ks+4*i,4)}, v{ad} offset:{(s%3%2)*SLOT + i*2048}")
        fill = ["\n".join(fill)]
        if 1 <= s <= 6:
            n = (len(side) + 6 - s) // (7 - s)
            fill.append("\n".join(side[:n])); del side[:n]
        for j, x in enumerate(loads):
            emit(x)
            if j >= opt("dp", 2) and fill: a(fill.pop(0))
        for x in fill: a(x)
    a(f"v_add_u32 v18, {QB}, v3\nv_add_u32 v19, {QB}, v17\nv_add_u32 v3, {Q2}, v3\nv_add_u32 v17, {Q2}, v17")
    vm.wait(("Q", 0))
    a("s_waitcnt lgkmcnt(0)\ns_barrier")
    stamp(a, prof, 3); stamp(a, prof, 112)
    NB = 7
    BQ, AF, D0, TMP = 20, 52, 84, 148
    T8 = 52
    order = (4, 0, 1, 2, 3)
    seq = [(s, ks, t) for s in range(5) for ks in range(2) for t in range(5)]
    seq += [(s, ks, t) for t in order for s in range(5, 10) for ks in range(2)]
    n1, n2 = opt("n1", 40), opt("n2", 52 if opt("qs", 0) else 56)
    assert n1 <= 40 and n2 >= 50 and (n2 <= 52 or not opt("qs", 0))
    nd, d0, d1 = len(dma), opt('d0', 5), opt('d1', 40)
    def rd(n):
        s, ks, t = seq[n]
        if n == 20 and n1 > 20:
            vm.wait(("Q", 2 if n1 > 40 else 1)); a("s_barrier")
        while dma and n > d0 and (nd - len(dma)) * (d1 - d0) < (n - d0) * nd: emit(dma.pop(0))
        if n == n1:
            while any(x[1] == "R" for x in dma): emit(dma.pop(0))
            newer = vm.q[vm.q.index("R") + 1:]
            vm.q = newer; fin.ready_wait(a, 248, 249, 99, len(newer)); a("s_barrier")
        if n == n2:
            while any(x[1][0] == "Q" for x in dma): emit(dma.pop(0))
            vm.wait(("Q", 4)); lg.wait(49); a("s_barrier")
        ad = ((18, 19), (3, 17))[s >= 5][t == 4]
        o = (s % 5) * 10240 + ks * 5120 + (40 * t if t < 4 else 0)
        d = WB + 4 * (n % NB)
        a(f"ds_read_b64_tr_b16 {vr(d,2)}, v{ad} offset:{o}\nds_read_b64_tr_b16 {vr(d+2,2)}, v{ad} offset:{o+1280}")
        lg.push(None); lg.push(n)
    msk = ["s[44:45]", "s[46:47]", "s[48:49]", "s[56:57]"]
    setup = f"""
    v_mul_u32_u24 v9, 40, v5
    v_add_u32 v9, {KVT}, v9
    v_lshl_add_u32 v8, v6, 3, v9
    v_lshrrev_b32 v11, 2, v5
    v_cmp_eq_u32 vcc, 0, v7
    v_mov_b32 v12, 4
    v_cmp_eq_u32 s[44:45], 0, v6
    v_cndmask_b32 v11, v12, v11, vcc
    v_cmp_eq_u32 s[46:47], 1, v6
    v_mul_u32_u24 v11, 40, v11
    v_cmp_eq_u32 s[48:49], 2, v6
    v_add_u32 v11, {KVT+640}, v11
    v_cmp_eq_u32 s[56:57], 3, v6
    v_lshl_add_u32 v10, v6, 3, v11
    v_lshlrev_b32 v12, 4, v1
    v_lshlrev_b32 v13, 3, v1
    s_lshl_b32 s54, s50, 3
    s_lshl_b32 s55, s51, 1
    s_add_u32 s54, s54, s55
    s_lshl_b32 s54, s54, 3
    s_add_u32 s54, s54, s52
    s_mul_i32 s54, s54, 2560
    s_add_u32 s54, s54, {WS_O}
    s_add_u32 s55, s54, {8*2560}
    s_lshl_b32 s3, s50, 3
    s_add_u32 s3, s3, s52
    s_lshl_b32 s3, s3, 7
    s_add_u32 s3, s3, {WS_FLAG+16384}
    v_lshlrev_b32 v16, 23, v255
    """.strip().split("\n") + [f"s_mov_b32 s58, {QB}", ]
    def post(t):
        out = []
        for i in range(2):
            r = ACC + 20 * i + 4 * t
            out += phi(r, 4, T8 + 4 * i)
            b = 14 if t == 4 else BQ + 16 * i + 4 * t
            out += [f"v_cvt_pk_bf16_f32 v{b}, v{r}, v{r+1}", f"v_cvt_pk_bf16_f32 v{b+1}, v{r+2}, v{r+3}"]
            if t == 4:
                for h in range(4): out += [f"v_cndmask_b32 v{BQ+16*i+4*h+2+p}, 0, v{14+p}, {msk[h]}" for p in range(2)]
        return out
    for n in range(NB - 1): rd(n)
    fill = []
    for n, (s, ks, t) in enumerate(seq):
        if n == 51: fill = setup
        if n >= 60 and n % 10 == 1: fill = fill + post(order[n // 10 - 6])
        lg.wait(n)
        for i in range(2):
            d = ACC + 20 * i + 4 * t
            mfma16(a, d, WB + 4 * (n % NB), XS + 16 * s + 8 * ks + 4 * i, None if n < 5 else d)
            if i == 1 and n + NB - 1 < len(seq): rd(n + NB - 1)
            for _ in range(2):
                if fill: a(fill.pop(0))
    assert not dma
    stamp(a, prof, 4)
    a("s_mov_b32 s59, 59648\ns_nop 6")
    for x in fill + post(order[4]): a(x)
    stamp(a, prof, 5)
    hint = "buffer_store_dword v16, v16, s[40:43], s3 offen sc1"
    a("s_waitcnt vmcnt(0)")
    if opt("he", 0) == 1: a(hint)
    a("s_barrier")
    if opt("he", 0) == 0: a(hint)
    stamp(a, prof, 6)
    for h in range(4):
        f = AF + 8 * h
        a(f"""
        ds_read_b64 {vr(f+4,2)}, v10 offset:{840*h}
        ds_read_b64 {vr(f+6,2)}, v11 offset:{840*h+32}
        ds_read_b64 {vr(f,2)}, v8 offset:{840*h}
        ds_read_b64 {vr(f+2,2)}, v9 offset:{840*h+32}
        """)
    for h in range(4):
        a(f"s_waitcnt lgkmcnt({12-4*h})")
        for i in range(2): mfma16(a, D0 + 32*i + 8*h + 4, AF + 8*h + 4, BQ + 16*i + 4*h)
        for i in range(2): mfma16(a, D0 + 32*i + 8*h, AF + 8*h, BQ + 16*i + 4*h)
    a("s_nop 1")
    if opt("he", 0) == 2: a(hint)
    for i in range(2):
        for h in range(4):
            d = D0 + 32*i + 8*h
            a(f"v_add_f32 v{d+5}, s61, v{d+5}")
        for h in range(4):
            d = D0 + 32*i + 8*h
            a(f"v_rcp_f32 v{d+5}, v{d+5}")
        o = TMP + 12 * i
        for h in range(4):
            d = D0 + 32*i + 8*h
            for r in range(5): a(f"v_mul_f32 v{d+r}, v{d+r}, v{d+5}")
            a(f"v_cvt_pk_bf16_f32 v{o+2*h}, v{d}, v{d+1}\nv_cvt_pk_bf16_f32 v{o+2*h+1}, v{d+2}, v{d+3}")
            if h & 1:
                a(f"v_cvt_pk_bf16_f32 v{o+8+(h>>1)}, v{d-8+4}, v{d+4}")
                a(f"buffer_store_dwordx4 {vr(o+2*h-2,4)}, v12, s[40:43], s{54+i} offen offset:{(h>>1)*1024} {ost}")
        a(f"buffer_store_dwordx2 {vr(o+8,2)}, v13, s[40:43], s{54+i} offen offset:2048 {ost}")
        if opt("he", 0) == 3 + i: a(hint)
    stamp(a, prof, 7)
    a("s_branch FIN")

def kv_waves(a, prof):
    ACC, B0, B1 = 16, 96, 132
    lane_addrs(a)
    a(f"""
    s_and_b32 s54, s51, 1
    s_lshr_b32 s55, s51, 1
    s_lshl_b32 s56, s54, 13
    v_add_u32 v8, s56, v2
    v_xor_b32 v9, 64, v8
    s_mul_i32 s56, s55, 80
    s_add_u32 s56, s56, {WK}
    v_lshl_add_u32 v10, v7, 3, v3
    v_add_u32 v10, s56, v10
    v_lshrrev_b32 v4, 1, v7
    v_cmp_eq_u32 vcc, s55, v4
    v_and_b32 v4, 1, v7
    v_mul_u32_u24 v4, 40, v4
    v_mov_b32 v11, {WV-WK+32}
    v_cndmask_b32 v11, v11, 32, vcc
    v_add3_u32 v11, v11, v4, v3
    v_add_u32 v11, s56, v11
    s_mov_b32 s57, 0
    s_mov_b32 s58, 0
    """)
    for r in range(80): a(f"v_mov_b32 v{ACC+r}, 0")
    PK, P, TMP, EA, ONE, TID, GA, SEL, KA, RA = 168, 96, 216, 228, 235, 241, 242, 244, 252, 253
    WA = [236, 237, 238, 239, 240]
    a(f"""
    s_mul_i32 s3, s55, 210
    v_mul_u32_u24 v12, 5, v5
    v_add_u32 v12, s3, v12
    v_lshrrev_b32 v13, 3, v5
    v_cmp_eq_u32 s[94:95], s55, v13
    v_and_b32 v14, 1, v6
    v_mul_u32_u24 v14, 105, v14
    v_cndmask_b32 v13, v7, 4, s[94:95]
    v_mul_u32_u24 v13, 5, v13
    v_add_u32 v13, s3, v13
    v_add_u32 v{EA}, v12, v6
    v_add_u32 v{EA+1}, 105, v{EA}
    v_add_u32 v{EA+2}, v13, v6
    v_add_u32 v{EA+2}, 80, v{EA+2}
    v_add_u32 v{EA+3}, 105, v{EA+2}
    v_add3_u32 v{EA+4}, v12, v14, 4
    v_add3_u32 v{EA+5}, v13, v14, 4
    v_add_u32 v{EA+5}, 80, v{EA+5}
    s_mul_i32 s3, s54, {2*KS}
    s_add_u32 s3, s3, {KV32}
    v_mov_b32 v14, {KS}
    """)
    for i in range(6):
        a(f"""
        v_and_b32 v12, 1, v{EA+i}
        v_lshrrev_b32 v{EA+i}, 1, v{EA+i}
        v_mad_u32_u24 v12, v12, v14, s3
        v_lshl_add_u32 v{EA+i}, v{EA+i}, 4, v12
        """)
    def rep(m16, qs): return sum(m16 << (16 * q) for q in qs)
    def colmask(h): return (0xf << (4 * (h ^ 2))) | (1 << (4 * h))
    masks = []
    for hp in range(2):
        ha, hb = 2 * hp, 2 * hp + 1
        masks.append([rep(colmask(ha), range(4)), rep(colmask(hb), range(4)), rep(0xffff, [ha]), rep(0xffff, [hb]),
                      rep(colmask(ha), [ha]) | rep(colmask(hb), [hb])])
    a("s_cmp_eq_u32 s55, 0")
    for n in range(5):
        for half in range(2):
            c0, c1 = (masks[0][n] >> (32 * half)) & 0xffffffff, (masks[1][n] >> (32 * half)) & 0xffffffff
            a(f"s_mov_b32 s{84+2*n+half}, {hex(c1)}\ns_cselect_b32 s{84+2*n+half}, {hex(c0)}, s{84+2*n+half}")
    a(f"""
    v_mov_b32 v{ONE}, 0x3f803f80
    v_lshlrev_b32 v{TID}, 4, v0
    s_lshl_b32 s3, s52, 4
    s_add_u32 s48, s3, s50
    s_mul_i32 s48, s48, {PSTR}
    s_add_u32 s48, s48, {WS_PART}
    s_mul_i32 s44, s3, {PSTR}
    s_add_u32 s44, s44, {WS_PART}
    s_lshl_b32 s49, s51, 10
    s_add_u32 s44, s44, s49
    s_add_u32 s45, s44, {4*PSTR}
    s_add_u32 s46, s44, {8*PSTR}
    s_add_u32 s47, s44, {12*PSTR}
    s_cmp_lt_u32 s51, 2
    s_mov_b32 s99, {QB-2048}
    s_cselect_b32 s99, {48*1024}, s99
    s_add_u32 s99, s99, s49
    v_mul_u32_u24 v{GA}, {PSTR}, v6
    v_lshl_add_u32 v{GA}, v5, 4, v{GA}
    s_cmp_eq_u32 s51, 3
    s_cselect_b32 s3, 0x7fff0000, 0
    v_or_b32 v{GA+1}, s3, v{GA}
    v_lshrrev_b32 v12, 1, v5
    v_and_b32 v13, 1, v5
    v_lshlrev_b32 v13, 4, v13
    v_mov_b32 v14, 0x3f80
    v_lshlrev_b32 v13, v13, v14
    """)
    for r in range(8):
        a(f"v_cmp_eq_u32 vcc, {r}, v12\ns_nop 1\nv_cndmask_b32 v{SEL+r}, 0, v13, vcc")
    a(f"""
    v_lshrrev_b32 v12, 1, v6
    v_lshlrev_b32 v12, 8, v12
    v_lshl_add_u32 v12, v5, 4, v12
    v_and_b32 v13, 1, v6
    v_lshl_add_u32 v12, v13, 3, v12
    s_add_u32 s3, s49, {KVT}
    v_add_u32 v{KA}, s3, v12
    v_cmp_gt_u32 s[100:101], 210, v0
    """.replace("v_cmp_gt_u32 s[100:101], 210, v0", "v_cmp_gt_u32 vcc, 210, v0\ns_mov_b64 s[100:101], vcc"))
    fin.tile_ids(a)
    fin.wo_addr(a, WA, 12, 13, 256, 0)
    def wo(k):
        m0 = "s_mov_b32 m0, s99" if k == 12 else f"s_add_u32 m0, s49, {4096*k if k < 12 else QB+(4*k-50)*1024}"
        return f"{m0}\ns_mov_b32 s98, {(k//5)*128*1280}\nbuffer_load_dwordx4 v{WA[k%5]}, s[36:39], s98 offen lds"
    def reads(buf, ks):
        out = []
        x = [f"ds_read_b128 {vr(buf+4*i,4)}, v{8+ks} offset:{2048*i}" for i in range(4)]
        w = []
        for t, (ad, o) in enumerate([(10, 0), (10, 40), (11, 0), (10, WV-WK), (10, WV-WK+40)]):
            d = buf + 16 + 4 * t
            w += [f"ds_read_b64_tr_b16 {vr(d,2)}, v{ad} offset:{o+ks*5120}", f"ds_read_b64_tr_b16 {vr(d+2,2)}, v{ad} offset:{o+ks*5120+1280}"]
        return x[:1] + w + x[1:]
    def group(buf, fill):
        fill = list(fill)
        for i in range(4):
            for t in range(5):
                d = ACC + 20 * i + 4 * t
                mfma16(a, d, buf + 4 * i, buf + 16 + 4 * t, d)
                if fill: a(fill.pop(0))
        assert not fill
    stamp(a, prof, 1)
    a("s_waitcnt lgkmcnt(0)\ns_barrier")
    stamp(a, prof, 2)
    for r in reads(B0, 0): a(r)
    a("s_branch G_mid\nG_loop:")
    group(B1, reads(B0, 0))
    a("G_mid:\ns_waitcnt lgkmcnt(0)")
    a(f"""
    s_add_u32 s57, s57, 1
    s_cmp_eq_u32 s57, 3
    s_cselect_b32 s57, 0, s57
    s_mov_b32 s59, {SLOT}
    s_cselect_b32 s59, {-2*SLOT}, s59
    s_add_u32 s58, s58, 1
    s_cmp_lt_u32 s58, 10
    """)
    group(B0, reads(B1, 1) + [f"v_add_u32 v{8+i}, s59, v{8+i}" for i in range(4)])
    a("s_waitcnt lgkmcnt(0)\ns_barrier\ns_cbranch_scc1 G_loop")
    if opt("prio", 1): a("s_setprio 2")
    def post(i):
        b = ACC + 20 * i
        pk = PK + 24 * (i >> 1) + 2 * (i & 1)
        cv = lambda o, t: [f"v_cvt_pk_bf16_f32 v{pk+o}, v{b+4*t}, v{b+4*t+1}", f"v_cvt_pk_bf16_f32 v{pk+o+1}, v{b+4*t+2}, v{b+4*t+3}"]
        ph = phi(b, 12, TMP)
        out = ph[:12] + cv(20, 2) + ph[12:28] + cv(12, 3) + cv(16, 4) + ph[28:]
        out += [f"v_cndmask_b32 v{pk+20+p}, v{pk+20+p}, v{ONE}, s[94:95]" for p in range(2)]
        out += cv(0, 0) + cv(4, 1) + cv(8, 2) + (["s_barrier"] if i == opt("kb", 1) and opt("n1", 40) > 20 else []) + (["s_nop 1"] if i & 1 else [])
        if i & 1:
            k = PK + 24 * (i >> 1)
            for n, (x, y) in enumerate([(0, 12), (4, 16), (0, 20), (4, 20), (8, 12), (8, 16), (8, 20)]):
                out.append(f"v_mfma_f32_16x16x32_bf16 {vr(P+4*n,4)}, {vr(k+x,4)}, {vr(k+y,4)}, {vr(P+4*n,4) if i == 3 else 0}")
        return out
    fill = post(0) + post(1)
    for n in range(20):
        i, t = divmod(n, 5)
        d = ACC + 20 * i + 4 * t
        mfma16(a, d, B1 + 4 * i, B1 + 16 + 4 * t, d)
        if n >= 8:
            for _ in range(opt("kf", 2)): a(fill.pop(0))
    stamp(a, prof, 3)
    for x in fill + post(2) + post(3): a(x)
    a("s_nop 3")
    a(f"""
    ds_write_b128 v{EA}, {vr(P,4)}
    ds_write_b128 v{EA+1}, {vr(P+4,4)}
    s_mov_b64 exec, s[84:85]
    ds_write_b128 v{EA+2}, {vr(P+8,4)}
    s_mov_b64 exec, s[86:87]
    ds_write_b128 v{EA+3}, {vr(P+12,4)}
    s_mov_b64 exec, s[88:89]
    ds_write_b128 v{EA+4}, {vr(P+16,4)}
    s_mov_b64 exec, s[90:91]
    ds_write_b128 v{EA+4}, {vr(P+20,4)}
    s_mov_b64 exec, s[92:93]
    ds_write_b128 v{EA+5}, {vr(P+24,4)}
    s_mov_b64 exec, -1
    s_waitcnt lgkmcnt(0)
    s_barrier
    """)
    stamp(a, prof, 4)
    a(f"""
    ds_read_b128 v[16:19], v{TID} offset:{KV32}
    ds_read_b128 v[24:27], v{TID} offset:{KV32+2*KS}
    ds_read_b128 v[20:23], v{TID} offset:{KV32+KS}
    ds_read_b128 v[28:31], v{TID} offset:{KV32+3*KS}
    s_waitcnt lgkmcnt(2)
    """)
    for r in range(4): a(f"v_add_f32 v{16+r}, v{16+r}, v{24+r}")
    a("s_waitcnt lgkmcnt(0)")
    for r in range(4, 8): a(f"v_add_f32 v{16+r}, v{16+r}, v{24+r}")
    for r in range(4): a(f"v_cvt_pk_bf16_f32 v{32+r}, v{16+2*r}, v{17+2*r}")
    for r in range(4): a(f"v_cndmask_b32 v{32+r}, 0, v{32+r}, s[100:101]")
    L, D = 48, 16
    a(f"buffer_store_dwordx4 v[32:35], v{TID}, s[40:43], s48 offen sc1")
    if opt("prio", 1): a("s_setprio 0")
    n1 = opt("wo1", 21)
    for r in range(8): a(f"v_mov_b32 v{D+r}, 0")
    a("s_barrier")
    for k in range(11, n1): a(wo(k))
    def issue(i, sc="sc1"):
        for g in range(4):
            a(f"buffer_load_dwordx4 {vr(L+16*i+4*g,4)}, v{GA if g < 2 else GA+1}, s[40:43], s{44+i} offen offset:{256*g} {sc}")
    for i in range(4): issue(i, '' if opt('pp', 0) else 'sc1')
    stamp(a, prof, 5)
    for k in range(n1, 25): a(wo(k))
    a("s_mov_b32 s56, 15\ns_mov_b32 s58, 0\ns_mov_b64 s[96:97], -1")
    stamp(a, prof, 7)
    a("G_poll:")
    for i in range(4):
        b = L + 16 * i
        a(f"""
        s_bitcmp1_b32 s56, {i}
        s_cbranch_scc0 G_n{i}
        s_waitcnt vmcnt({25-n1+12-4*i})
        v_max3_u32 v2, v{b}, v{b+4}, v{b+8}
        v_max_u32 v2, v2, v{b+12}
        v_cmp_eq_u32 vcc, -1, v2
        s_and_b64 vcc, vcc, s[96:97]
        s_cbranch_scc1 G_n{i}
        s_bitset0_b32 s56, {i}
        """)
        for g in range(4):
            d = D + 4 * (g >> 1)
            mfma16(a, d, SEL + 4 * (g & 1), b + 4 * g, d)
        a(f"G_n{i}:")
    a("s_cmp_eq_u32 s56, 0\ns_cbranch_scc1 G_done")
    for i in range(4):
        a(f"s_bitcmp1_b32 s56, {i}\ns_cbranch_scc0 G_r{i}")
        issue(i)
        a(f"G_r{i}:")
    a(f"""
    s_add_u32 s58, s58, 1
    s_cmp_lt_u32 s58, {fin.POLL_MAX}
    s_cselect_b64 s[96:97], -1, 0
    s_waitcnt vmcnt(0)
    s_branch G_poll
    G_done:
    s_nop 2
    s_mov_b32 s58, {QB}
    s_mov_b32 s59, 59648
    s_nop 1
    """)
    for p in range(2):
        d = D + 4 * p
        a(f"v_cvt_pk_bf16_f32 v{d}, v{d}, v{d+1}\nv_cvt_pk_bf16_f32 v{d+1}, v{d+2}, v{d+3}")
        a(f"ds_write_b64 v{KA}, {vr(d,2)} offset:{512*p}")
    a("s_waitcnt lgkmcnt(0)\ns_barrier")
    stamp(a, prof, 6)
    a("s_branch FIN")
```
